```python
import torch

def _softmax(x, axis=-1):
    return torch.softmax(x, dim=axis)
def _gelu(x):
    return torch.nn.functional.gelu(x, approximate="tanh")
def _silu(x):
    return torch.nn.functional.silu(x)
def _sigmoid(x):
    return torch.sigmoid(x)
def _layernorm(x, axis=-1, eps=1e-5):
    m = x.mean(dim=axis, keepdim=True)
    v = x.var(dim=axis, keepdim=True, unbiased=False)
    return (x - m) / torch.sqrt(v + eps)
def _scatter_add(tgt, idx, src, axis=0):
    return tgt.clone().index_add_(axis, idx, src)
def _segment_sum(src, seg, n):
    out = torch.zeros((n,) + src.shape[1:], dtype=src.dtype)
    return out.index_add_(0, seg, src)
def _pad(x, pw):
    flat = tuple(v for pair in reversed(pw) for v in pair)
    return torch.nn.functional.pad(x, flat)

kernel_name = 'recurrent_scan__mha_block_cached__mixer_channel_mlp__decode'

def setup_inputs():

    _w = (lambda a: (lambda t: t.to(torch.bfloat16) if t.is_floating_point() else t)(torch.as_tensor(a)))
    def _A_setup():
        B, Sq, D = 4, 1, 512
        H, Sk, Dh = 32, 4096, 128
        return {
            "x": _w((lambda *s: torch.randn(*s, dtype=torch.bfloat16) * 0.1)(B, Sq, D)),
            "k_cache": _w((lambda *s: torch.randn(*s, dtype=torch.bfloat16) * 0.8)(B, H, Sk, Dh)),
            "v_cache": _w((lambda *s: torch.randn(*s, dtype=torch.bfloat16) * 3.2)(B, H, Sk, Dh)),
            "wq": _w((lambda *s: torch.randn(*s, dtype=torch.bfloat16) * 0.8)(D, H * Dh) * (D ** -0.5)),
            "wo": _w((lambda *s: torch.randn(*s, dtype=torch.bfloat16) * 3.2)(H * Dh, D) * ((H * Dh) ** -0.5)),
        }
    _A_in = _A_setup()

    def _B_setup():
        B, S, D, F = 4, 1, 512, 1792
        return {
            "x": _w((lambda *s: torch.randn(*s, dtype=torch.bfloat16) * 0.1)(B, S, D)),
            "w1": _w((lambda *s: torch.randn(*s, dtype=torch.bfloat16) * 3.2)(D, F) * (D ** -0.5)),
            "b1": _w((lambda *s: torch.randn(*s, dtype=torch.bfloat16) * 3.2)(F)),
            "w2": _w((lambda *s: torch.randn(*s, dtype=torch.bfloat16) * 3.2)(F, D) * (F ** -0.5)),
            "b2": _w((lambda *s: torch.randn(*s, dtype=torch.bfloat16) * 3.2)(D)),
        }
    _B_in = _B_setup()

    return {
        "A_x": _A_in["x"],
        "A_k_cache": _A_in["k_cache"],
        "A_v_cache": _A_in["v_cache"],
        "A_wq": _A_in["wq"],
        "A_wo": _A_in["wo"],
        "B_x": _B_in["x"],
        "B_w1": _B_in["w1"],
        "B_b1": _B_in["b1"],
        "B_w2": _B_in["w2"],
        "B_b2": _B_in["b2"],
    }

def reference(A_x, A_k_cache, A_v_cache, A_wq, A_wo, B_x, B_w1, B_b1, B_w2, B_b2):
    def _A_ref(x, k_cache, v_cache, wq, wo):
        B, Sq, D = x.shape
        H, Dh = 32, 128
        q = (lambda x, *d: x.permute(*d))((x @ wq).reshape(B, Sq, H, Dh), 0, 2, 1, 3)
        scores = torch.einsum("bhqd,bhkd->bhqk", q, k_cache) * (Dh ** -0.5)
        p = _softmax(scores, axis=-1)
        o = torch.einsum("bhqk,bhkd->bhqd", p, v_cache)
        return (lambda x, *d: x.permute(*d))(o, 0, 2, 1, 3).reshape(B, Sq, H * Dh) @ wo

    def _B_ref(x, w1, b1, w2, b2):
        y = _layernorm(x, axis=-1)
        h = _gelu(torch.einsum("bsd,df->bsf", y, w1) + b1)
        return torch.einsum("bsf,fd->bsd", h, w2) + b2

    x = A_x
    xn = _layernorm(x, axis=-1)
    s = _A_ref(xn, A_k_cache, A_v_cache, A_wq, A_wo)
    g = _silu(_B_ref(xn, B_w1, B_b1, B_w2, B_b2))
    return x + s * g
```

```python
import re

RE_V = re.compile(r'(?<![\w.])v\[(\d+):(\d+)\]|(?<![\w.\[])v(\d+)(?![\w\[])')
RE_S = re.compile(r'(?<![\w.])s\[(\d+):(\d+)\]|(?<![\w.\[])s(\d+)(?![\w\[])')
TRANS = ("v_exp_f32", "v_log_f32", "v_rcp_f32", "v_rsq_f32", "v_sqrt_f32", "v_sin_f32", "v_cos_f32")

def regs(rx, text):
    out = set()
    for m in rx.finditer(text):
        if m.group(1) is not None:
            out.update(range(int(m.group(1)), int(m.group(2)) + 1))
        else:
            out.add(int(m.group(3)))
    return out

def split_ops(rest):
    ops, depth, cur = [], 0, ""
    for ch in rest:
        if ch == "[": depth += 1
        if ch == "]": depth -= 1
        if ch == "," and depth == 0:
            ops.append(cur.strip()); cur = ""
        else:
            cur += ch
    if cur.strip(): ops.append(cur.strip())
    return ops

class Ins:
    def __init__(self, text):
        self.text = text
        t = text.split(";")[0].strip()
        parts = t.split(None, 1)
        self.op = parts[0]
        rest = parts[1] if len(parts) > 1 else ""
        ops = split_ops(rest)
        self.ops = ops
        op = self.op
        self.valu = op.startswith("v_") and not op.startswith("v_mfma")
        self.mfma = op.startswith("v_mfma")
        self.vmem = op.startswith(("buffer_", "global_", "flat_"))
        self.ds = op.startswith("ds_")
        self.salu = op.startswith("s_")
        self.dpp = "_dpp" in op or "row_" in rest or "quad_perm" in rest
        self.trans = op.replace("_e32", "").replace("_e64", "") in TRANS
        self.dot = op.startswith("v_dot")
        self.perml = op.startswith("v_permlane")
        self.rdlane = op.startswith(("v_readlane", "v_readfirstlane"))
        self.vw, self.vr, self.sw, self.sr = set(), set(), set(), set()
        self.wvcc = self.rvcc = self.wexec = self.wm0 = False
        self.srcc = set(); self.srcab = set()
        self.ldsdma = self.vmem and (" lds" in (" " + rest) or "load_lds" in op)
        self.wide_store_data = set()
        def V(x): return regs(RE_V, x)
        def S(x): return regs(RE_S, x)
        if self.mfma:
            self.vw = V(ops[0]); self.srcab = V(ops[1]) | V(ops[2]); self.srcc = V(ops[3]); self.vr = self.srcab | self.srcc
            self.passes = 8 if "32x32" in op else 4
        elif self.valu:
            if op.startswith("v_cmp"):
                if ops[0] == "vcc": self.wvcc = True
                else: self.sw = S(ops[0])
                if op.startswith("v_cmpx"): self.wexec = True
                for o in ops[1:]: self.vr |= V(o); self.sr |= S(o)
            elif self.rdlane:
                self.sw = S(ops[0])
                for o in ops[1:]: self.vr |= V(o); self.sr |= S(o)
            elif self.perml and "swap" in op:
                self.vw = V(ops[0]) | V(ops[1]); self.vr = set(self.vw)
            else:
                self.vw = V(ops[0])
                for o in ops[1:]:
                    self.vr |= V(o); self.sr |= S(o)
                    if o.split()[0] == "vcc": self.rvcc = True
                if op.startswith(("v_fmac", "v_dot2c", "v_mac", "v_writelane")) or self.dpp: self.vr |= self.vw
                if "_co_" in op: self.wvcc = True
        elif self.vmem:
            allv = set(); alls = set()
            for o in ops: allv |= V(o); alls |= S(o)
            self.sr = alls
            if "store" in op or "atomic" in op:
                self.vr = allv
                if "x4" in op or "x3" in op:
                    self.wide_store_data = V(ops[0]) if op.startswith("buffer") else V(ops[1])
            elif self.ldsdma:
                self.vr = allv
            else:
                self.lw = V(ops[0]); self.vr = set()
                for o in ops[1:]: self.vr |= V(o)
                self.vr_or_w = self.lw
        elif self.ds:
            if op.startswith(("ds_read", "ds_bpermute", "ds_swizzle", "ds_permute")):
                self.lw = V(ops[0])
                for o in ops[1:]: self.vr |= V(o)
            else:
                for o in ops: self.vr |= V(o)
        elif self.salu:
            if ops and ops[0] == "m0" and not op.startswith("s_cmp"): self.wm0 = True
        if not hasattr(self, "lw"): self.lw = set()
        self.slots = 1
        if op == "s_nop": self.slots = int(ops[0], 0) + 1

def need(p, c):
    n = 0
    if p.valu:
        if (p.vw & c.vr):
            if c.valu and c.dpp: n = max(n, 2)
            if c.mfma: n = max(n, 2) if not p.dot else max(n, 3)
            if c.perml: n = max(n, 2)
            if c.rdlane: n = max(n, 1)
            if p.trans and c.valu and not c.trans: n = max(n, 1)
        if p.dot and (p.vw & (c.vr | c.vw)):
            same = c.dot and c.op == p.op
            if same:
                ab = set()
                for o in c.ops[1:3]: ab |= regs(RE_V, o)
                if p.vw & ab: n = max(n, 3)
            else:
                n = max(n, 3)
        if p.sw & c.sr:
            if c.vmem: n = max(n, 5)
            elif c.rdlane: n = max(n, 4)
            elif c.valu: n = max(n, 2)
        if p.wvcc and c.valu and c.rvcc: n = max(n, 2)
        if p.wexec:
            if c.valu and c.dpp: n = max(n, 5)
            if c.rdlane or c.perml or c.mfma: n = max(n, 4)
    if p.mfma:
        big = 12 if p.passes == 8 else 8
        if c.mfma:
            if p.vw & c.srcab: n = max(n, big)
            if p.vw & c.srcc and not (p.vw == c.srcc and p.passes == c.passes): n = max(n, 10 if p.passes == 8 else 6)
            if (p.vw & c.vw) and not (p.vw & c.srcc): n = max(n, big)
        else:
            if p.vw & (c.vr | c.vw | c.lw): n = max(n, big)
            if c.valu and (p.srcc & c.vw): n = max(n, 7 if p.passes == 8 else 3)
    if p.wide_store_data and (p.wide_store_data & (c.vw | c.lw)): n = max(n, 2)
    if p.wm0 and c.ldsdma: n = max(n, 1)
    return n

class Emit:
    def __init__(self):
        self.lines = []
        self.hist = []
        self.nops = 0
    def raw(self, s):
        self.lines.append(s)
    def flush(self, n=None):
        worst = 0; dist = 0
        for p in reversed(self.hist):
            w = 0
            if p.mfma: w = 12 if p.passes == 8 else 8
            elif p.valu: w = 5 if (p.sw or p.wexec) else (3 if p.dot else 2)
            elif p.wide_store_data: w = 2
            elif p.wm0: w = 1
            worst = max(worst, w - dist)
            dist += p.slots
            if dist > 12: break
        if worst > 0:
            self._nop(worst)
        self.hist = []
    def _nop(self, n):
        self.nops += n
        i = Ins(f"s_nop {n-1}")
        self.lines.append(f"    s_nop {n-1}")
        self.hist.append(i)
    def label(self, name):
        self.flush()
        self.lines.append(f"{name}:")
    def __call__(self, text):
        for t in text.strip().split("\n"):
            t = t.strip()
            if not t or t.startswith(";"):
                if t: self.lines.append("    " + t)
                continue
            if t.endswith(":"):
                self.label(t[:-1]); continue
            c = Ins(t)
            if c.op.startswith(("s_cbranch", "s_branch")):
                self.hist.append(Ins("s_nop 0"))
                hist = self.hist
                self.flush()
                self.lines.append("    " + t)
                continue
            dist = 0; worst = 0
            for p in reversed(self.hist):
                worst = max(worst, need(p, c) - dist)
                dist += p.slots
                if dist > 12: break
            if worst > 0: self._nop(worst)
            self.lines.append("    " + t)
            self.hist.append(c)
            if len(self.hist) > 32: self.hist = self.hist[-16:]
    def text(self):
        return "\n".join(self.lines) + "\n"
```

```python
import sys
from emit import Emit
KN = "recurrent_scan__mha_block_cached__mixer_channel_mlp__decode_kernel"
HEADER = open("recurrent_scan__mha_block_cached__mixer_channel_mlp__decode.s.ref").read().split("; Override launch")[0]

L_QP = 0x000
L_O  = 0x800
L_ML = 0xC00
L_C  = 0xC40
L_GP = 0xC80
L_B2 = 0xD00
L_X  = 0xD20
L_WO = 0x1000
LDS_BYTES = L_WO + 4 * 32768
W_U  = 0x0
W_H  = 0x80000
W_ML = 0x88000
W_END = 0x8A000
LOG2E = 0x3fb8aa3b
SCALE = 0x3db504f3
POLL_LIMIT = 0x20000

def gen(R=32, inter=1, kvflags="nt", wflags="", sprio=0, sfirst=0, stamps=False):
    E = Emit()
    A = E
    E.raw(HEADER.rstrip())
    E.raw(f"; @launch grid=(256,1,1) block=(512,1,1) lds={LDS_BYTES}")
    E.raw('.amdgcn_target "amdgcn-amd-amdhsa--gfx950"\n.text')
    E.raw(f".globl {KN}\n.p2align 8\n.type {KN},@function\n{KN}:")

    def srd(r, lo, size):
        A(f"s_mov_b32 s{r}, s{lo}\ns_mov_b32 s{r+1}, s{lo+1}\ns_mov_b32 s{r+2}, {size:#x}\ns_mov_b32 s{r+3}, 0x20000")
    def allred(v, t, op="add_f32"):
        for k in (8, 4, 2, 1):
            A(f"v_{op}_dpp v{v}, v{v}, v{v} row_ror:{k} row_mask:0xf bank_mask:0xf")
        for sw in ("16", "32"):
            A(f"v_mov_b32 v{t}, v{v}\nv_permlane{sw}_swap_b32 v{v}, v{t}\nv_{op} v{v}, v{v}, v{t}")
    def rbf(v):
        A(f"v_cvt_pk_bf16_f32 v{v}, v{v}, v{v}\nv_and_b32 v{v}, 0xffff0000, v{v}")
    def unpack8(dst, src):
        for i in range(4):
            A(f"v_lshlrev_b32 v{dst+2*i}, 16, v{src+i}\nv_and_b32 v{dst+2*i+1}, 0xffff0000, v{src+i}")
    def ln_stats(f, mb, rd, t):
        A(f"v_add_f32 v{mb}, v{f}, v{f+1}")
        for j in range(2, 8): A(f"v_add_f32 v{mb}, v{mb}, v{f+j}")
        allred(mb, t)
        A(f"v_mul_f32 v{mb}, 0x3b000000, v{mb}")
        A(f"v_sub_f32 v{t+1}, v{f}, v{mb}\nv_mul_f32 v{rd}, v{t+1}, v{t+1}")
        for j in range(1, 8):
            A(f"v_sub_f32 v{t+1}, v{f+j}, v{mb}\nv_fmac_f32 v{rd}, v{t+1}, v{t+1}")
        allred(rd, t)
        A(f"v_mul_f32 v{rd}, 0x3b000000, v{rd}")
        rbf(mb); rbf(rd)
        A(f"v_add_f32 v{rd}, 0x3727c5ac, v{rd}")
        rbf(rd)
        A(f"v_sqrt_f32 v{rd}, v{rd}")
        rbf(rd)
        A(f"v_rcp_f32 v{rd}, v{rd}")
    def ln_apply(e, mb, rd):
        A(f"v_sub_f32 v{e}, v{e}, v{mb}"); rbf(e)
        A(f"v_mul_f32 v{e}, v{e}, v{rd}"); rbf(e)
    def reduce8(r):
        for a in range(4): A(f"v_permlane32_swap_b32 v{r+a}, v{r+a+4}")
        for a in range(4): A(f"v_add_f32 v{r+a}, v{r+a}, v{r+a+4}")
        for a in range(2): A(f"v_permlane16_swap_b32 v{r+a}, v{r+a+2}")
        for a in range(2): A(f"v_add_f32 v{r+a}, v{r+a}, v{r+a+2}")
        A(f"v_add_f32_dpp v{r}, v{r}, v{r} row_ror:8 row_mask:0xf bank_mask:0x3")
        A(f"v_add_f32_dpp v{r}, v{r+1}, v{r+1} row_ror:8 row_mask:0xf bank_mask:0xc")
        A(f"v_add_f32_dpp v{r}, v{r}, v{r} row_half_mirror row_mask:0xf bank_mask:0xf")
        A(f"v_add_f32_dpp v{r}, v{r}, v{r} quad_perm:[1,0,3,2] row_mask:0xf bank_mask:0xf")
        A(f"v_add_f32_dpp v{r}, v{r}, v{r} quad_perm:[2,3,0,1] row_mask:0xf bank_mask:0xf")
    def masks(mk, t):
        A(f"""v_and_b32 v{t}, 1, v1
        v_lshlrev_b32 v{t}, 4, v{t}
        s_mov_b32 s39, 0xffff
        v_lshlrev_b32_e64 v{t}, v{t}, s39
        v_and_b32 v{t+1}, 15, v1
        v_lshrrev_b32 v{t+1}, 1, v{t+1}""")
        for k in range(4):
            A(f"v_cmp_eq_u32 vcc, {k}, v{t+1}\nv_cndmask_b32 v{mk+k}, 0, v{t}, vcc")
    nst = [0]
    def stamp(i):
        if stamps: A(f"s_memrealtime s[{80+2*i}:{81+2*i}]")
    def write_stamps(base, n):
        if not stamps: return
        A("s_waitcnt lgkmcnt(0)")
        A("s_mov_b32 s76, s32\ns_mov_b32 s77, s33\ns_mov_b32 s78, 0x20000000\ns_mov_b32 s79, 0x20000")
        A(f"s_lshl_b32 s39, s2, 7\ns_add_u32 s39, s39, {0x10000000 + base*8}")
        A("s_mov_b64 exec, 1\nv_mov_b32 v20, 0")
        for i in range(n):
            A(f"v_mov_b32 v22, s{80+2*i}\nv_mov_b32 v23, s{81+2*i}\nbuffer_store_dwordx2 v[22:23], v20, s[76:79], s39 offen offset:{i*8}\ns_nop 1")

    A("""s_cmp_ge_u32 s2, 256
    s_cbranch_scc1 L_end""")
    stamp(0)
    A("""s_load_dwordx16 s[8:23], s[0:1], 0
    s_load_dwordx8 s[24:31], s[0:1], 64
    s_load_dwordx2 s[32:33], s[0:1], 96
    v_lshrrev_b32 v2, 6, v0
    v_and_b32 v1, 63, v0
    s_and_b32 s34, s2, 7
    v_readfirstlane_b32 s3, v2
    s_lshr_b32 s35, s2, 3
    s_and_b32 s36, s35, 3
    s_lshl_b32 s39, s34, 2
    s_add_u32 s36, s36, s39          ; h
    s_lshr_b32 s37, s35, 3           ; b
    s_lshr_b32 s38, s35, 2
    s_and_b32 s38, s38, 1            ; sp
    s_cmp_lt_u32 s3, 4
    s_cbranch_scc1 L_H""")

    RB = 128 if R == 32 else 64
    RB = 256 - 4 * R
    T = 8
    Q = 24
    MK = 28
    S = 32
    AO = 40
    ACC = 44
    TMP = 48
    NG = R // 16
    stride = 4096 if inter == 1 else 1024
    if sprio: A(f"s_setprio {sprio}")
    A(f"""s_sub_u32 s56, s3, 4
    s_lshl_b32 s57, s37, 5
    s_add_u32 s57, s57, s36
    s_lshl_b32 s57, s57, 20
    s_lshl_b32 s58, s38, 19
    s_add_u32 s57, s57, s58
    s_lshl_b32 s58, s56, {10 if inter == 1 else 17}
    s_add_u32 s57, s57, s58
    s_mov_b32 s59, s57
    v_lshlrev_b32 v2, 4, v1
    s_waitcnt lgkmcnt(0)""")
    srd(40, 10, 0x8000000)
    def issue(slot):
        A(f"buffer_load_dwordx4 v[{RB+4*slot}:{RB+4*slot+3}], v2, s[40:43], s59 offen {kvflags}")
        A(f"s_add_u32 s59, s59, {stride}")
    for i in range(R):
        issue(i)
        if sprio and i + 1 == sfirst: A("s_setprio 0")
    stamp(1)
    masks(MK, TMP)
    A(f"""s_mov_b32 s60, 0xaaaaaaaa
    s_mov_b32 s61, 0xaaaaaaaa
    s_mov_b32 s62, 0xcccccccc
    s_mov_b32 s63, 0xcccccccc
    v_and_b32 v3, 15, v1
    v_lshlrev_b32 v3, 5, v3
    s_barrier""")
    stamp(2)
    for hw in range(4):
        A(f"ds_read_b128 v[{TMP+8*hw}:{TMP+8*hw+3}], v3 offset:{L_QP+hw*512}")
        A(f"ds_read_b128 v[{TMP+8*hw+4}:{TMP+8*hw+7}], v3 offset:{L_QP+hw*512+16}")
    A("s_waitcnt lgkmcnt(0)")
    for j in range(8):
        A(f"v_add_f32 v{TMP+j}, v{TMP+j}, v{TMP+8+j}\nv_add_f32 v{TMP+16+j}, v{TMP+16+j}, v{TMP+24+j}")
    for j in range(8):
        A(f"v_add_f32 v{TMP+j}, v{TMP+j}, v{TMP+16+j}")
    for j in range(4):
        A(f"v_cvt_pk_bf16_f32 v{Q+j}, v{TMP+2*j}, v{TMP+2*j+1}")
    NIT = 128 // R
    A(f"s_mov_b32 s64, 0")
    A("L_K:")
    A(f"""s_cmp_eq_u32 s64, {NIT-1}
    s_cselect_b32 s40, s12, s40
    s_cselect_b32 s41, s13, s41
    s_cselect_b32 s59, s57, s59""")
    for j in range(8 - NG):
        A(f"v_mov_b32 v{S+j}, v{S+j+NG}")
    for g in range(NG):
        pend = None
        for c in range(16):
            slot = g * 16 + c
            r = RB + 4 * slot
            A(f"s_waitcnt vmcnt({R-1})")
            A(f"v_dot2_f32_bf16 v{T+c}, v{r}, v{Q}, 0")
            for k in range(1, 4):
                A(f"v_dot2_f32_bf16 v{T+c}, v{r+k}, v{Q+k}, v{T+c}")
            issue(slot)
            if pend: A(pend)
            if c < 8: pend = f"v_add_f32_dpp v{T+c}, v{T+c}, v{T+c} row_ror:8 row_mask:0xf bank_mask:0x3"
            else:     pend = f"v_add_f32_dpp v{T+c-8}, v{T+c}, v{T+c} row_ror:8 row_mask:0xf bank_mask:0xc"
        A(pend)
        for i in range(4): A(f"v_add_f32_dpp v{T+i}, v{T+i}, v{T+i} row_half_mirror row_mask:0xf bank_mask:0x5")
        for i in range(4): A(f"v_add_f32_dpp v{T+i}, v{T+i+4}, v{T+i+4} row_half_mirror row_mask:0xf bank_mask:0xa")
        for i in range(4): A(f"v_add_f32_dpp v{T+i}, v{T+i}, v{T+i} quad_perm:[2,3,0,1] row_mask:0xf bank_mask:0xf")
        for i in range(2): A(f"v_cndmask_b32 v{T+i}, v{T+i}, v{T+i+2}, s[62:63]")
        for i in range(2): A(f"v_add_f32_dpp v{T+i}, v{T+i}, v{T+i} quad_perm:[1,0,3,2] row_mask:0xf bank_mask:0xf")
        A(f"v_cndmask_b32 v{S+8-NG+g}, v{T}, v{T+1}, s[60:61]")
    A(f"""s_add_u32 s64, s64, 1
    s_cmp_lt_u32 s64, {NIT}
    s_cbranch_scc1 L_K""")
    stamp(3)
    A(f"s_mov_b32 s65, {SCALE:#x}\ns_mov_b32 s66, {LOG2E:#x}")
    for j in range(0, 8, 2):
        A(f"v_cvt_pk_bf16_f32 v{TMP}, v{S+j}, v{S+j+1}")
        A(f"v_lshlrev_b32 v{S+j}, 16, v{TMP}\nv_and_b32 v{S+j+1}, 0xffff0000, v{TMP}")
        A(f"v_mul_f32 v{S+j}, s65, v{S+j}\nv_mul_f32 v{S+j+1}, s65, v{S+j+1}")
        A(f"v_cvt_pk_bf16_f32 v{TMP}, v{S+j}, v{S+j+1}")
        A(f"v_lshlrev_b32 v{S+j}, 16, v{TMP}\nv_and_b32 v{S+j+1}, 0xffff0000, v{TMP}")
    M = TMP + 2; Lr = TMP + 3
    A(f"""v_max3_f32 v{M}, v{S}, v{S+1}, v{S+2}
    v_max3_f32 v{M}, v{M}, v{S+3}, v{S+4}
    v_max3_f32 v{M}, v{M}, v{S+5}, v{S+6}
    v_max_f32 v{M}, v{M}, v{S+7}""")
    allred(M, TMP, "max_f32")
    A(f"v_mul_f32 v{M}, s66, v{M}")
    for j in range(8): A(f"v_fma_f32 v{S+j}, v{S+j}, s66, -v{M}")
    for j in range(8): A(f"v_exp_f32 v{S+j}, v{S+j}")
    A(f"v_add_f32 v{Lr}, v{S}, v{S+1}")
    for j in range(2, 8): A(f"v_add_f32 v{Lr}, v{Lr}, v{S+j}")
    for j in range(8): A(f"v_cvt_pk_bf16_f32 v{S+j}, v{S+j}, v{S+j}")
    allred(Lr, TMP)
    A(f"""v_min_u32 v{M}, -2, v{M}
    v_min_u32 v{Lr}, -2, v{Lr}
    s_lshl_b32 s39, s56, 3
    v_mov_b32 v{TMP}, s39
    ds_write_b64 v{TMP}, v[{M}:{Lr}] offset:{L_ML}""")
    for j in range(4): A(f"v_mov_b32 v{ACC+j}, 0")
    A("s_mov_b32 s64, 0")
    A("L_V:")
    A(f"""s_cmp_eq_u32 s64, {NIT-1}
    s_cselect_b32 s42, 0, s42""")
    for g in range(NG):
        for c in range(16):
            slot = g * 16 + c
            r = RB + 4 * slot
            for k in range(4):
                A(f"v_and_b32_dpp v{AO+k}, v{S+g}, v{MK+k} row_newbcast:{c} row_mask:0xf bank_mask:0xf")
            A(f"s_waitcnt vmcnt({R-1})")
            A(f"v_mfma_f32_16x16x32_bf16 v[{ACC}:{ACC+3}], v[{AO}:{AO+3}], v[{r}:{r+3}], v[{ACC}:{ACC+3}]")
            issue(slot)
    for j in range(8 - NG):
        A(f"v_mov_b32 v{S+j}, v{S+j+NG}")
    A(f"""s_add_u32 s64, s64, 1
    s_cmp_lt_u32 s64, {NIT}
    s_cbranch_scc1 L_V""")
    stamp(4)
    A(f"""v_and_b32 v3, 15, v1
    v_lshlrev_b32 v3, 4, v3
    v_lshrrev_b32 v4, 4, v1
    v_lshl_add_u32 v3, v4, 3, v3
    s_lshl_b32 s39, s56, 8
    v_add_u32 v3, s39, v3
    v_cvt_pk_bf16_f32 v{TMP}, v{ACC}, v{ACC+1}
    v_cvt_pk_bf16_f32 v{TMP+1}, v{ACC+2}, v{ACC+3}
    s_mov_b32 exec_hi, 0
    ds_write_b64 v3, v[{TMP}:{TMP+1}] offset:{L_O}
    s_mov_b64 exec, -1
    s_waitcnt lgkmcnt(0)
    s_barrier
    s_cmp_lg_u32 s56, 0
    s_cbranch_scc1 L_end""")
    stamp(5)
    U = 8
    srd(44, 32, W_END)
    A(f"""s_and_b32 s67, s35, 7
    s_lshl_b32 s39, s34, 3
    s_add_u32 s67, s67, s39          ; cg'
    s_lshr_b32 s68, s35, 3           ; b'
    s_lshl_b32 s69, s68, 6
    s_add_u32 s69, s69, s67          ; b'*64+cg'
    s_lshl_b32 s70, s69, 11
    v_lshlrev_b32 v2, 5, v1
    buffer_load_dwordx4 v[{U}:{U+3}], v2, s[44:47], s70 offen sc1
    buffer_load_dwordx4 v[{U+4}:{U+7}], v2, s[44:47], s70 offen offset:16 sc1
    v_lshrrev_b32 v3, 3, v1
    v_lshlrev_b32 v3, 2, v3
    ds_read_b32 v20, v3 offset:{L_GP}
    ds_read_b32 v21, v3 offset:{L_GP+32}
    ds_read_b32 v22, v3 offset:{L_GP+64}
    ds_read_b32 v23, v3 offset:{L_GP+96}
    ds_read_b32 v24, v3 offset:{L_B2}
    ds_read_b32 v25, v3 offset:{L_X}
    s_waitcnt lgkmcnt(0)
    v_add_f32 v20, v20, v21
    v_add_f32 v22, v22, v23
    v_add_f32 v20, v20, v22""")
    rbf(20)
    A("v_add_f32 v20, v20, v24"); rbf(20)
    A(f"""v_mul_f32 v21, {LOG2E ^ 0x80000000:#x}, v20
    v_exp_f32 v21, v21
    v_add_f32 v21, 1.0, v21
    v_rcp_f32 v21, v21
    v_mul_f32 v20, v20, v21""")
    rbf(20)
    srd(48, 28, 4096)
    A(f"""s_lshl_b32 s71, s69, 4
    v_lshrrev_b32 v3, 1, v3
    s_mov_b32 s72, {POLL_LIMIT}""")
    A("L_FP:")
    A(f"""s_waitcnt vmcnt(0)
    v_max3_u32 v16, v{U}, v{U+1}, v{U+2}
    v_max3_u32 v17, v{U+3}, v{U+4}, v{U+5}
    v_max3_u32 v16, v16, v{U+6}, v{U+7}
    v_max_u32 v16, v16, v17
    v_cmp_eq_u32 vcc, -1, v16
    s_cbranch_vccz L_FD
    s_mov_b64 exec, vcc
    buffer_load_dwordx4 v[{U}:{U+3}], v2, s[44:47], s70 offen sc1
    buffer_load_dwordx4 v[{U+4}:{U+7}], v2, s[44:47], s70 offen offset:16 sc1
    s_mov_b64 exec, -1
    s_sub_u32 s72, s72, 1
    s_cbranch_scc0 L_FP
    s_waitcnt vmcnt(0)""")
    A("L_FD:")
    stamp(6)
    reduce8(U)
    rbf(U)
    A(f"v_mul_f32 v{U}, v{U}, v20"); rbf(U)
    A(f"""v_add_f32 v{U}, v{U}, v25
    v_cvt_pk_bf16_f32 v{U}, v{U}, v{U}
    s_mov_b32 s74, 0x01010101
    s_mov_b32 s75, 0x01010101
    s_mov_b64 exec, s[74:75]
    buffer_store_short v{U}, v3, s[48:51], s71 offen""")
    stamp(7)
    write_stamps(0, 8)
    A("s_endpgm")

    W = 128
    XR = 8
    XE = 12
    F = 16
    MB = 24; RD = 25; TT = 26
    HMK = 32
    HA = 36
    HACC = 40
    SENT = 44
    UOFF = 45
    A("L_H:")
    A(f"""v_lshlrev_b32 v2, 4, v1             ; lane*16
    v_and_b32 v3, 15, v1
    v_lshrrev_b32 v4, 4, v1
    v_lshl_add_u32 v5, v3, 2, v4          ; 4c+g
    v_lshlrev_b32 v5, 1, v5
    s_lshl_b32 s56, s37, 10               ; b*1024
    s_lshl_b32 s57, s3, 8
    s_add_u32 s57, s57, s56
    v_lshlrev_b32 v6, 13, v4              ; g*8192
    v_lshl_add_u32 v6, v3, 4, v6
    s_lshl_b32 s58, s3, 20
    s_lshl_b32 s39, s36, 8
    s_add_u32 s58, s58, s39               ; + h*256
    v_lshrrev_b32 v7, 3, v1
    v_lshlrev_b32 v{UOFF}, 11, v7
    v_and_b32 v{TT}, 7, v1
    v_lshl_add_u32 v{UOFF}, v{TT}, 2, v{UOFF}
    v_mov_b32 v{SENT}, -1
    s_lshl_b32 s59, s37, 17               ; b*131072
    s_lshl_b32 s39, s3, 15
    s_add_u32 s59, s59, s39               ; + hw*16*2048
    s_lshl_b32 s39, s36, 6
    s_add_u32 s59, s59, s39
    s_lshl_b32 s39, s38, 5
    s_add_u32 s59, s59, s39               ; + p*32
    s_add_u32 s60, s59, 0x4000
    s_mul_i32 s61, s34, 28
    s_add_u32 s61, s61, s35               ; fb
    s_mul_i32 s62, s3, {1792*4}
    s_lshl_b32 s39, s61, 5
    s_add_u32 s62, s62, s39
    s_add_u32 s62, s62, {W_H}
    v_lshlrev_b32 v7, 2, v7               ; (l>>3)*4
    s_lshl_b32 s63, s37, 5
    s_add_u32 s63, s63, s36
    s_lshl_b32 s63, s63, 6
    s_add_u32 s63, s63, {W_ML}
    s_mov_b32 s74, 0x01010101
    s_mov_b32 s75, 0x01010101
    s_waitcnt lgkmcnt(0)""")
    srd(40, 8, 4096)
    srd(44, 32, W_END)
    srd(48, 14, 0x400000)
    A(f"""buffer_load_dwordx4 v[{XR}:{XR+3}], v2, s[40:43], s56 offen
    buffer_load_ushort v{XE}, v5, s[40:43], s57 offen
    buffer_load_ushort v{XE+1}, v5, s[40:43], s57 offen offset:128""")
    for i in range(32):
        A(f"buffer_load_dwordx4 v[{W+4*i}:{W+4*i+3}], v6, s[48:51], s58 offen {wflags}")
        A("s_add_u32 s58, s58, 0x8000")
    A(f"""buffer_store_dword v{SENT}, v{UOFF}, s[44:47], s59 offen sc1
    buffer_store_dword v{SENT}, v{UOFF}, s[44:47], s60 offen sc1
    s_cmp_lt_u32 s35, 28
    s_cselect_b64 s[64:65], s[74:75], 0
    s_mov_b64 exec, s[64:65]
    s_cbranch_execz L_c1
    buffer_store_dword v{SENT}, v7, s[44:47], s62 offen sc1""")
    A("L_c1:")
    A(f"""s_mov_b64 exec, -1
    s_cmp_lg_u32 s3, 1
    s_cbranch_scc1 L_c2
    s_lshl_b32 s39, s38, 5
    s_add_u32 s66, s63, s39
    v_lshlrev_b32 v{TT}, 2, v1
    s_mov_b64 exec, 0xff
    buffer_store_dword v{SENT}, v{TT}, s[44:47], s66 offen sc1
    ds_write_b32 v{TT}, v{SENT} offset:{L_ML}
    s_mov_b64 exec, -1""")
    A("L_c2:")
    masks(HMK, TT)
    A("s_waitcnt vmcnt(34)")
    unpack8(F, XR)
    ln_stats(F, MB, RD, TT)
    for t in range(2):
        A(f"v_lshlrev_b32 v{XE+t}, 16, v{XE+t}")
        A(f"v_sub_f32 v{XE+t}, v{XE+t}, v{MB}"); rbf(XE+t)
        A(f"v_mul_f32 v{XE+t}, v{XE+t}, v{RD}")
        A(f"v_cvt_pk_bf16_f32 v{XE+t}, v{XE+t}, v{XE+t}")
    for i in range(32):
        for k in range(4):
            A(f"v_and_b32_dpp v{HA+k}, v{XE+i//16}, v{HMK+k} row_newbcast:{i%16} row_mask:0xf bank_mask:0xf")
        A(f"s_waitcnt vmcnt({33-i})")
        A(f"v_mfma_f32_16x16x32_bf16 v[{HACC}:{HACC+3}], v[{HA}:{HA+3}], v[{W+4*i}:{W+4*i+3}], {'0' if i == 0 else f'v[{HACC}:{HACC+3}]'}")
    A(f"""v_lshlrev_b32 v{TT}, 5, v3
    v_lshl_add_u32 v{TT}, v4, 4, v{TT}
    s_lshl_b32 s39, s3, 9
    v_add_u32 v{TT}, s39, v{TT}
    s_mov_b32 exec_hi, 0
    ds_write_b128 v{TT}, v[{HACC}:{HACC+3}] offset:{L_QP}
    s_mov_b64 exec, -1
    s_waitcnt vmcnt(0) lgkmcnt(0)
    s_barrier""")
    stamp(1)
    srd(52, 30, 256)
    A(f"""s_cmp_lg_u32 s3, 0
    s_cbranch_scc1 L_a1
    s_mov_b64 exec, 1
    v_mov_b32 v{TT}, 1
    buffer_atomic_add v{TT}, off, s[52:55], 0
    s_mov_b64 exec, -1""")
    A("L_a1:")
    srd(48, 16, 0x400000)
    A(f"""v_lshlrev_b32 v6, 10, v4
    v_lshl_add_u32 v6, v3, 4, v6
    s_lshl_b32 s58, s36, 17
    s_lshl_b32 s39, s3, 8
    s_add_u32 s58, s58, s39
    s_lshl_b32 s67, s3, 15
    s_add_u32 s67, s67, {L_WO}
    s_mov_b32 m0, s67""")
    for i in range(32):
        A(f"buffer_load_dwordx4 v6, s[48:51], s58 offen {wflags} lds")
        if i < 31: A("s_add_u32 s58, s58, 0x1000\ns_add_u32 m0, m0, 0x400")
    W1 = 48
    ACCH = 80
    UP = 88
    A(f"""s_cmp_ge_u32 s35, 28
    s_cbranch_scc1 L_p1done""")
    srd(48, 20, 512*1792*2)
    srd(68, 22, 1792*2)
    A(f"""s_lshl_b32 s56, s3, 10
    buffer_load_dwordx4 v[{XR}:{XR+3}], v2, s[40:43], s56 offen
    s_mov_b32 s39, 28672
    v_mul_lo_u32 v6, v1, s39
    s_lshl_b32 s58, s61, 4
    v_lshrrev_b32 v{TT}, 1, v7
    buffer_load_ushort v{XE}, v{TT}, s[68:71], s58 offen""")
    for j in range(8):
        A(f"buffer_load_dwordx4 v[{W1+4*j}:{W1+4*j+3}], v6, s[48:51], s58 offen {wflags}")
        if j < 7: A("s_add_u32 s58, s58, 3584")
    A("s_waitcnt vmcnt(9)")
    unpack8(F, XR)
    ln_stats(F, MB, RD, TT)
    for j in range(8): ln_apply(F+j, MB, RD)
    ln_stats(F, MB, RD, TT)
    for j in range(8): ln_apply(F+j, MB, RD)
    for j in range(8):
        A(f"s_waitcnt vmcnt({7-j})")
        unpack8(UP, W1+4*j)
        for c in range(8):
            A(f"v_{'mul' if j == 0 else 'fmac'}_f32 v{ACCH+c}, v{F+j}, v{UP+c}")
    reduce8(ACCH)
    rbf(ACCH)
    A(f"v_lshlrev_b32 v{XE}, 16, v{XE}\nv_add_f32 v{ACCH}, v{ACCH}, v{XE}")
    rbf(ACCH)
    import struct
    def f2u(x): return struct.unpack("<I", struct.pack("<f", x))[0]
    c1 = -2.0 * 1.4426950408889634 * 0.7978845608028654
    A(f"""v_mul_f32 v{UP}, v{ACCH}, v{ACCH}
    v_mul_f32 v{UP}, {f2u(0.044715):#x}, v{UP}
    v_add_f32 v{UP}, 1.0, v{UP}
    v_mul_f32 v{UP}, v{UP}, v{ACCH}
    v_mul_f32 v{UP}, {f2u(c1):#x}, v{UP}
    v_exp_f32 v{UP}, v{UP}
    v_add_f32 v{UP}, 1.0, v{UP}
    v_rcp_f32 v{UP}, v{UP}
    v_mul_f32 v{ACCH}, v{ACCH}, v{UP}""")
    rbf(ACCH)
    A(f"""s_mov_b64 exec, s[74:75]
    buffer_store_dword v{ACCH}, v7, s[44:47], s62 offen sc1
    s_mov_b64 exec, -1""")
    A("L_p1done:")
    A(f"""s_waitcnt vmcnt(0)
    v_lshlrev_b32 v6, 11, v4
    v_bfe_u32 v{TT}, v1, 2, 2
    v_lshl_add_u32 v6, v{TT}, 8, v6
    v_and_b32 v{TT}, 3, v1
    v_lshl_add_u32 v6, v{TT}, 3, v6
    v_add_u32 v6, s67, v6""")
    for cb in range(8):
        for ks in range(4):
            r = W + 4 * (cb * 4 + ks)
            off = ks * 32 * 256 + cb * 32
            A(f"ds_read_b64_tr_b16 v[{r}:{r+1}], v6 offset:{off}")
            A(f"ds_read_b64_tr_b16 v[{r+2}:{r+3}], v6 offset:{off+1024}")
    stamp(2)
    A(f"s_mov_b32 s72, {POLL_LIMIT}")
    A("L_CP:")
    A(f"""buffer_load_dword v{TT}, off, s[52:55], 0 sc1
    s_waitcnt vmcnt(0)
    v_cmp_gt_u32 vcc, 256, v{TT}
    s_cbranch_vccz L_CD
    s_sleep 4
    s_sub_u32 s72, s72, 1
    s_cbranch_scc0 L_CP""")
    A("L_CD:")
    HV = 96
    srd(48, 24, 1792*1024)
    A(f"""s_and_b32 s67, s35, 7
    s_lshl_b32 s39, s34, 3
    s_add_u32 s67, s67, s39          ; cg'
    s_lshr_b32 s68, s35, 3           ; b'
    s_mul_i32 s58, s3, {448*1024}
    s_lshl_b32 s39, s67, 4
    s_add_u32 s58, s58, s39
    v_lshlrev_b32 v6, 10, v1
    s_mul_i32 s56, s68, {1792*4}
    s_mul_i32 s39, s3, {448*4}
    s_add_u32 s56, s56, s39
    s_add_u32 s56, s56, {W_H}
    v_lshlrev_b32 v5, 2, v1""")
    for j in range(7):
        A(f"buffer_load_dwordx4 v[{W1+4*j}:{W1+4*j+3}], v6, s[48:51], s58 offen {wflags}")
        if j < 6: A("s_add_u32 s58, s58, 0x10000")
    A(f"s_mov_b32 s72, {POLL_LIMIT}")
    A("L_HP:")
    for j in range(7):
        A(f"buffer_load_dword v{HV+j}, v5, s[44:47], s56 offen offset:{j*256} sc1")
    A(f"""s_waitcnt vmcnt(0)
    v_max3_u32 v{TT}, v{HV}, v{HV+1}, v{HV+2}
    v_max3_u32 v{TT}, v{TT}, v{HV+3}, v{HV+4}
    v_max3_u32 v{TT}, v{TT}, v{HV+5}, v{HV+6}
    v_cmp_eq_u32 vcc, -1, v{TT}
    s_cbranch_vccz L_HD
    s_sleep 8
    s_sub_u32 s72, s72, 1
    s_cbranch_scc0 L_HP""")
    A("L_HD:")
    for j in range(7):
        unpack8(UP, W1+4*j)
        for c in range(8):
            A(f"v_{'mul' if j == 0 else 'fmac'}_f32 v{ACCH+c}, v{HV+j}, v{UP+c}")
    reduce8(ACCH)
    A(f"""s_lshl_b32 s39, s3, 5
    v_add_u32 v{TT}, s39, v7
    ds_write_b32 v{TT}, v{ACCH} offset:{L_GP}""")
    stamp(3)
    A(f"""s_cmp_lg_u32 s3, 0
    s_cbranch_scc1 L_n0""")
    srd(68, 26, 1024)
    A(f"""s_and_b32 s67, s35, 7
    s_lshl_b32 s39, s34, 3
    s_add_u32 s67, s67, s39
    s_lshl_b32 s58, s67, 4
    s_lshr_b32 s39, s35, 3
    s_lshl_b32 s39, s39, 10
    s_add_u32 s56, s58, s39
    v_lshrrev_b32 v{TT}, 1, v7
    buffer_load_ushort v{XE}, v{TT}, s[68:71], s58 offen
    buffer_load_ushort v{XE+1}, v{TT}, s[40:43], s56 offen
    s_waitcnt vmcnt(0)
    v_lshlrev_b32 v{XE}, 16, v{XE}
    v_lshlrev_b32 v{XE+1}, 16, v{XE+1}
    ds_write_b32 v7, v{XE} offset:{L_B2}
    ds_write_b32 v7, v{XE+1} offset:{L_X}""")
    A("L_n0:")
    A(f"""s_cmp_lg_u32 s3, 1
    s_cbranch_scc1 L_n1
    v_lshlrev_b32 v6, 3, v1
    s_mov_b64 exec, 0xf
    s_mov_b32 s72, {POLL_LIMIT}""")
    A("L_MP:")
    A(f"""ds_read_b64 v[{XE}:{XE+1}], v6 offset:{L_ML}
    s_waitcnt lgkmcnt(0)
    v_max_u32 v{TT}, v{XE}, v{XE+1}
    v_cmp_eq_u32 vcc, -1, v{TT}
    s_cbranch_vccz L_MD
    s_sleep 8
    s_sub_u32 s72, s72, 1
    s_cbranch_scc0 L_MP""")
    A("L_MD:")
    A(f"""buffer_store_dwordx2 v[{XE}:{XE+1}], v6, s[44:47], s66 offen sc1
    s_mov_b64 exec, 0xff
    s_mov_b32 s72, {POLL_LIMIT}""")
    A("L_GP2:")
    A(f"""buffer_load_dwordx2 v[{XR}:{XR+1}], v6, s[44:47], s63 offen sc1
    s_waitcnt vmcnt(0)
    v_max_u32 v{TT}, v{XR}, v{XR+1}
    v_cmp_eq_u32 vcc, -1, v{TT}
    s_cbranch_vccz L_GD2
    s_sleep 8
    s_sub_u32 s72, s72, 1
    s_cbranch_scc0 L_GP2""")
    A("L_GD2:")
    A(f"""v_max_f32_dpp v{TT}, v{XR}, v{XR} quad_perm:[1,0,3,2] row_mask:0xf bank_mask:0xf
    v_max_f32_dpp v{TT}, v{TT}, v{TT} quad_perm:[2,3,0,1] row_mask:0xf bank_mask:0xf
    v_max_f32_dpp v{TT}, v{TT}, v{TT} row_half_mirror row_mask:0xf bank_mask:0xf
    v_sub_f32 v{XR}, v{XR}, v{TT}
    v_exp_f32 v{XR}, v{XR}
    v_mul_f32 v{TT}, v{XR}, v{XR+1}
    v_add_f32_dpp v{TT}, v{TT}, v{TT} quad_perm:[1,0,3,2] row_mask:0xf bank_mask:0xf
    v_add_f32_dpp v{TT}, v{TT}, v{TT} quad_perm:[2,3,0,1] row_mask:0xf bank_mask:0xf
    v_add_f32_dpp v{TT}, v{TT}, v{TT} row_half_mirror row_mask:0xf bank_mask:0xf
    v_rcp_f32 v{TT}, v{TT}
    v_mul_f32 v{XR}, v{XR}, v{TT}
    v_and_b32 v6, 3, v1
    v_lshlrev_b32 v6, 2, v6
    s_lshl_b32 s39, s38, 2
    s_lshl_b32 s64, 0xf, s39
    s_mov_b32 s65, 0
    s_mov_b64 exec, s[64:65]
    ds_write_b32 v6, v{XR} offset:{L_C}
    s_mov_b64 exec, -1""")
    A("L_n1:")
    OA = 48
    CC = 64
    DD = 68
    UU = 100
    A(f"""v_and_b32 v6, 3, v1
    v_lshlrev_b32 v6, 8, v6
    v_lshl_add_u32 v6, v4, 4, v6
    v_mov_b32 v5, 0
    s_waitcnt lgkmcnt(0)""")
    stamp(4)
    A("s_barrier")
    stamp(5)
    for ks in range(4):
        A(f"ds_read_b128 v[{OA+4*ks}:{OA+4*ks+3}], v6 offset:{L_O+ks*64}")
    A(f"ds_read_b128 v[{CC}:{CC+3}], v5 offset:{L_C}")
    for ks in range(4):
        A(f"s_waitcnt lgkmcnt({4-ks})")
        for cb in range(8):
            r = W + 4 * (cb * 4 + ks)
            d = DD + 4 * cb
            A(f"v_mfma_f32_16x16x32_bf16 v[{d}:{d+3}], v[{OA+4*ks}:{OA+4*ks+3}], v[{r}:{r+3}], {'0' if ks == 0 else f'v[{d}:{d+3}]'}")
    A("s_waitcnt lgkmcnt(0)")
    for r in range(4):
        for cb in range(8):
            A(f"v_{'mul' if r == 0 else 'fmac'}_f32_dpp v{UU+cb//4+2*(cb%4)}, v{DD+4*cb+r}, v{CC+r} quad_perm:[0,1,2,3] row_mask:{1<<(cb%4):#x} bank_mask:0xf")
    for j in range(2):
        for gq in range(1, 4):
            A(f"v_mov_b32_dpp v{UU+j}, v{UU+j+2*gq} quad_perm:[0,1,2,3] row_mask:{1<<gq:#x} bank_mask:0xf")
    A(f"""v_min_u32 v{UU}, -2, v{UU}
    v_min_u32 v{UU+1}, -2, v{UU+1}
    buffer_store_dword v{UU}, v{UOFF}, s[44:47], s59 offen sc1
    buffer_store_dword v{UU+1}, v{UOFF}, s[44:47], s60 offen sc1""")
    stamp(6)
    if stamps:
        A("s_cmp_lg_u32 s3, 1\ns_cbranch_scc1 L_end")
        stamp(7)
        write_stamps(8, 8)
    A("L_end:")
    A("s_endpgm")
    E.raw(f""".section .rodata,"a"
.p2align 6
.amdhsa_kernel {KN}
  .amdhsa_next_free_vgpr 256
  .amdhsa_next_free_sgpr 102
  .amdhsa_accum_offset 256
  .amdhsa_group_segment_fixed_size 0
  .amdhsa_kernarg_size 104
  .amdhsa_user_sgpr_count 2
  .amdhsa_user_sgpr_kernarg_segment_ptr 1
  .amdhsa_system_sgpr_workgroup_id_x 1
  .amdhsa_float_denorm_mode_32 3
.end_amdhsa_kernel""")
    return E.text()

if __name__ == "__main__":
    kw = {}
    out = sys.argv[1]
    for a in sys.argv[2:]:
        k, v = a.split("=")
        kw[k] = int(v) if v.lstrip("-").isdigit() else v.replace("+", " ")
    open(out, "w").write(gen(**kw))
```

```python
import sys, re
KN = "recurrent_scan__mha_block_cached__mixer_channel_mlp__decode_kernel"
HEADER = open("recurrent_scan__mha_block_cached__mixer_channel_mlp__decode.s.ref").read().split("; Override launch")[0]
def load(path, name):
    s = open(path).read()
    m = re.search(r"; @launch (grid=\S+ block=\S+ lds=\d+)", s)
    geo = m.group(1)
    body = s[s.index(".text"):]
    text, rod = body.split('.section .rodata,"a"')
    text = text.replace(KN, name); rod = rod.replace(KN, name)
    text = re.sub(r"\bL_(\w+)", lambda m: f"L_{m.group(1)}_{name}", text)
    text = text.replace(".text\n", "", 1)
    return geo, text, rod
def probe(j, op, amp, base=0):
    name = "probe_kernel"
    red = {"max": "v_max_i32", "min": "v_min_i32", "mean": "v_add_u32"}[op]
    L = [f".globl {name}", ".p2align 8", f".type {name},@function", f"{name}:"]
    A = L.append
    A("s_cmp_ge_u32 s2, 1"); A("s_cbranch_scc1 L_pend")
    A("s_memrealtime s[20:21]")
    A("s_load_dwordx2 s[8:9], s[0:1], 96")
    A("v_lshlrev_b32 v1, 7, v0")
    A("s_waitcnt lgkmcnt(0)")
    A("s_mov_b32 s12, s8"); A("s_mov_b32 s13, s9"); A("s_mov_b32 s14, 0x20000000"); A("s_mov_b32 s15, 0x20000")
    A("s_mov_b32 s16, 0x10000000")
    for i in range(4):
        A(f"buffer_load_dword v{2+i}, v1, s[12:15], s16 offen offset:{base*8}")
        A(f"buffer_load_dword v{6+i}, v1, s[12:15], s16 offen offset:{j*8}")
        A("s_add_u32 s16, s16, 0x2000")
    A("s_waitcnt vmcnt(0)")
    A("v_readfirstlane_b32 s17, v2"); A("s_nop 4")
    for i in range(8): A(f"v_subrev_u32 v{2+i}, s17, v{2+i}")
    for i in range(1, 4):
        A(f"v_min_i32 v2, v2, v{2+i}"); A(f"{red} v6, v6, v{6+i}")
    A("s_nop 4")
    A("v_readlane_b32 s22, v2, 0"); A("v_readlane_b32 s23, v6, 0")
    sred = {"max": "s_max_i32", "min": "s_min_i32", "mean": "s_add_i32"}[op]
    for l in range(1, 64):
        A(f"v_readlane_b32 s24, v2, {l}"); A(f"v_readlane_b32 s25, v6, {l}"); A("s_nop 1")
        A("s_min_i32 s22, s22, s24"); A(f"{sred} s23, s23, s25")
    if op == "mean": A("s_ashr_i32 s23, s23, 8")
    A("s_sub_i32 s23, s23, s22")
    A("s_max_i32 s23, s23, 0"); A("s_min_i32 s23, s23, 20000")
    A(f"s_mul_i32 s23, s23, {amp}")
    A("L_spin:")
    A("s_memrealtime s[26:27]"); A("s_waitcnt lgkmcnt(0)")
    A("s_sub_u32 s26, s26, s20"); A("s_cmp_lt_u32 s26, s23"); A("s_cbranch_scc1 L_spin")
    A("L_pend:"); A("s_endpgm")
    rod = f""".p2align 6
.amdhsa_kernel {name}
  .amdhsa_next_free_vgpr 16
  .amdhsa_next_free_sgpr 40
  .amdhsa_accum_offset 16
  .amdhsa_group_segment_fixed_size 0
  .amdhsa_kernarg_size 104
  .amdhsa_user_sgpr_count 2
  .amdhsa_user_sgpr_kernarg_segment_ptr 1
  .amdhsa_system_sgpr_workgroup_id_x 1
.end_amdhsa_kernel
"""
    return "grid=(1,1,1) block=(64,1,1) lds=0", "\n".join(L) + "\n", rod
def mk(out, x, full, j, op, amp):
    ks = [("x_kernel",) + load(x, "x_kernel")]
    if full != "-": ks.append(("full_kernel",) + load(full, "full_kernel"))
    if amp >= 0: ks.append(("probe_kernel",) + probe(j, op, amp))
    s = HEADER.rstrip() + "\n"
    for n, geo, _, _ in ks: s += f"; @launch kernel={n} {geo}\n"
    s += '.amdgcn_target "amdgcn-amd-amdhsa--gfx950"\n.text\n'
    for _, _, t, _ in ks: s += t + "\n"
    s += '.section .rodata,"a"\n'
    for _, _, _, r in ks: s += r + "\n"
    open(out, "w").write(s)
if __name__ == "__main__":
    mk(sys.argv[1], sys.argv[2], sys.argv[3], int(sys.argv[4]), sys.argv[5], int(sys.argv[6]))
```

```python
import sys, re
KN = "recurrent_scan__mha_block_cached__mixer_channel_mlp__decode_kernel"
HEADER = open("recurrent_scan__mha_block_cached__mixer_channel_mlp__decode.s.ref").read().split("; Override launch")[0]
def load(path, name):
    s = open(path).read()
    m = re.search(r"; @launch (grid=\S+ block=\S+ lds=\d+)", s)
    geo = m.group(1)
    body = s[s.index(".text"):]
    text, rod = body.split('.section .rodata,"a"')
    text = text.replace(KN, name); rod = rod.replace(KN, name)
    text = re.sub(r"\bL_(\w+)", lambda m: f"L_{m.group(1)}_{name}", text)
    text = text.replace(".text\n", "", 1)
    return geo, text, rod
def probe(j, op, amp, base=0, boff=0):
    name = "probe_kernel"
    red = {"max": "v_max_i32", "min": "v_min_i32", "mean": "v_add_u32"}[op]
    L = [f".globl {name}", ".p2align 8", f".type {name},@function", f"{name}:"]
    A = L.append
    A("s_cmp_ge_u32 s2, 1"); A("s_cbranch_scc1 L_pend")
    A("s_memrealtime s[20:21]")
    A("s_load_dwordx2 s[8:9], s[0:1], 96")
    A("v_lshlrev_b32 v1, 7, v0")
    A("s_waitcnt lgkmcnt(0)")
    A("s_mov_b32 s12, s8"); A("s_mov_b32 s13, s9"); A("s_mov_b32 s14, 0x20000000"); A("s_mov_b32 s15, 0x20000")
    A("s_mov_b32 s16, 0x10000000")
    for i in range(4):
        A(f"s_add_u32 s18, s16, {boff}")
        A(f"buffer_load_dword v{2+i}, v1, s[12:15], s18 offen offset:{base*8}")
        A(f"buffer_load_dword v{6+i}, v1, s[12:15], s16 offen offset:{j*8}")
        A("s_add_u32 s16, s16, 0x2000")
    A("s_waitcnt vmcnt(0)")
    A("v_readfirstlane_b32 s17, v2"); A("s_nop 4")
    for i in range(8): A(f"v_subrev_u32 v{2+i}, s17, v{2+i}")
    for i in range(1, 4):
        A(f"v_min_i32 v2, v2, v{2+i}"); A(f"{red} v6, v6, v{6+i}")
    A("s_nop 4")
    A("v_readlane_b32 s22, v2, 0"); A("v_readlane_b32 s23, v6, 0")
    sred = {"max": "s_max_i32", "min": "s_min_i32", "mean": "s_add_i32"}[op]
    for l in range(1, 64):
        A(f"v_readlane_b32 s24, v2, {l}"); A(f"v_readlane_b32 s25, v6, {l}"); A("s_nop 1")
        A("s_min_i32 s22, s22, s24"); A(f"{sred} s23, s23, s25")
    if op == "mean": A("s_ashr_i32 s23, s23, 8")
    A("s_sub_i32 s23, s23, s22")
    A("s_max_i32 s23, s23, 0"); A("s_min_i32 s23, s23, 20000")
    A(f"s_mul_i32 s23, s23, {amp}")
    A("L_spin:")
    A("s_memrealtime s[26:27]"); A("s_waitcnt lgkmcnt(0)")
    A("s_sub_u32 s26, s26, s20"); A("s_cmp_lt_u32 s26, s23"); A("s_cbranch_scc1 L_spin")
    A("L_pend:"); A("s_endpgm")
    rod = f""".p2align 6
.amdhsa_kernel {name}
  .amdhsa_next_free_vgpr 16
  .amdhsa_next_free_sgpr 40
  .amdhsa_accum_offset 16
  .amdhsa_group_segment_fixed_size 0
  .amdhsa_kernarg_size 104
  .amdhsa_user_sgpr_count 2
  .amdhsa_user_sgpr_kernarg_segment_ptr 1
  .amdhsa_system_sgpr_workgroup_id_x 1
.end_amdhsa_kernel
"""
    return "grid=(1,1,1) block=(64,1,1) lds=0", "\n".join(L) + "\n", rod
def mk(out, x, full, j, op, amp, boff=0):
    ks = [("x_kernel",) + load(x, "x_kernel")]
    if full != "-": ks.append(("full_kernel",) + load(full, "full_kernel"))
    if amp >= 0: ks.append(("probe_kernel",) + probe(j, op, amp, 0, boff))
    s = HEADER.rstrip() + "\n"
    for n, geo, _, _ in ks: s += f"; @launch kernel={n} {geo}\n"
    s += '.amdgcn_target "amdgcn-amd-amdhsa--gfx950"\n.text\n'
    for _, _, t, _ in ks: s += t + "\n"
    s += '.section .rodata,"a"\n'
    for _, _, _, r in ks: s += r + "\n"
    open(out, "w").write(s)
if __name__ == "__main__":
    mk(sys.argv[1], sys.argv[2], sys.argv[3], int(sys.argv[4]), sys.argv[5], int(sys.argv[6]), int(sys.argv[7], 0) if len(sys.argv) > 7 else 0)
```

```python
import sys, struct
from emit import Emit
KN = "recurrent_scan__mha_block_cached__mixer_channel_mlp__decode_kernel"
HEADER = open("recurrent_scan__mha_block_cached__mixer_channel_mlp__decode.s.ref").read().split("; Override launch")[0]

L_QP = 0x000
L_O  = 0x800
L_ML = 0xC00
L_C  = 0xC40
L_G  = 0xC80
L_H  = 0xE00
L_WO = 0x1000
LDS_BYTES = L_WO + 4 * 32768
W_EP = 0x0
W_ML = 0x4000
W_Q  = 0x10000
W_M1 = 0x90000
W_G  = 0xD0000
W_U  = 0x110000
W_END = 0x190000
LOG2E = 0x3fb8aa3b
SCALE = 0x3db504f3
POLL_LIMIT = 0x20000
def f2u(x): return struct.unpack("<I", struct.pack("<f", x))[0]

def gen(k=16, kp=16, P=32, kw=4, inter=1, kvflags="nt", wflags="", woflags="", stamps=0, hst=2, abl="", sprio=0, hprio=0, qsleep=16, wsb=0, fsleep=2, qdly=0):
    E = Emit()
    A = E
    E.raw(HEADER.rstrip())
    E.raw(f"; @launch grid=(256,1,1) block=(512,1,1) lds={LDS_BYTES}")
    E.raw('.amdgcn_target "amdgcn-amd-amdhsa--gfx950"\n.text')
    E.raw(f".globl {KN}\n.p2align 8\n.type {KN},@function\n{KN}:")

    def srd(r, lo, size):
        A(f"s_mov_b32 s{r}, s{lo}\ns_mov_b32 s{r+1}, s{lo+1}\ns_mov_b32 s{r+2}, {size:#x}\ns_mov_b32 s{r+3}, 0x20000")
    def srdws():
        A(f"s_add_u32 s44, s32, {wsb<<20:#x}\ns_addc_u32 s45, s33, 0\ns_mov_b32 s46, {W_END:#x}\ns_mov_b32 s47, 0x20000")
    def swapadd(v, t, sw, op="add_f32"):
        A(f"v_mov_b32 v{t}, v{v}\nv_permlane{sw}_swap_b32 v{v}, v{t}\nv_{op} v{v}, v{v}, v{t}")
    def allred(v, t, op="add_f32"):
        for kk in (8, 4, 2, 1):
            A(f"v_{op}_dpp v{v}, v{v}, v{v} row_ror:{kk} row_mask:0xf bank_mask:0xf")
        swapadd(v, t, 16, op); swapadd(v, t, 32, op)
    def red32(v, t):
        for p in ("quad_perm:[1,0,3,2]", "quad_perm:[2,3,0,1]", "row_half_mirror"):
            A(f"v_add_f32_dpp v{v}, v{v}, v{v} {p} row_mask:0xf bank_mask:0xf")
        swapadd(v, t, 16); swapadd(v, t, 32)
    def red16x(v, t):
        for p in ("row_ror:4", "row_ror:8"):
            A(f"v_add_f32_dpp v{v}, v{v}, v{v} {p} row_mask:0xf bank_mask:0xf")
        swapadd(v, t, 16); swapadd(v, t, 32)
    def rbf(v):
        A(f"v_cvt_pk_bf16_f32 v{v}, v{v}, v{v}\nv_and_b32 v{v}, 0xffff0000, v{v}")
    def rbf2(a, b):
        A(f"v_cvt_pk_bf16_f32 v{b}, v{a}, v{b}\nv_lshlrev_b32 v{a}, 16, v{b}\nv_and_b32 v{b}, 0xffff0000, v{b}")
    def unpack(dst, src, n):
        for i in range(n):
            A(f"v_lshlrev_b32 v{dst+2*i}, 16, v{src+i}\nv_and_b32 v{dst+2*i+1}, 0xffff0000, v{src+i}")
    def ln_stats(f, mb, rd, t):
        A(f"v_add_f32 v{mb}, v{f}, v{f+1}\nv_add_f32 v{t+1}, v{f+2}, v{f+3}")
        for j in range(4, 16, 2): A(f"v_add_f32 v{mb}, v{mb}, v{f+j}\nv_add_f32 v{t+1}, v{t+1}, v{f+j+1}")
        A(f"v_add_f32 v{mb}, v{mb}, v{t+1}")
        red32(mb, t)
        A(f"v_mul_f32 v{mb}, 0x3b000000, v{mb}")
        A(f"v_sub_f32 v{t+1}, v{f}, v{mb}\nv_sub_f32 v{t+2}, v{f+1}, v{mb}\nv_mul_f32 v{rd}, v{t+1}, v{t+1}\nv_mul_f32 v{t}, v{t+2}, v{t+2}")
        for j in range(2, 16, 2):
            A(f"v_sub_f32 v{t+1}, v{f+j}, v{mb}\nv_sub_f32 v{t+2}, v{f+j+1}, v{mb}\nv_fmac_f32 v{rd}, v{t+1}, v{t+1}\nv_fmac_f32 v{t}, v{t+2}, v{t+2}")
        A(f"v_add_f32 v{rd}, v{rd}, v{t}")
        red32(rd, t)
        A(f"v_mul_f32 v{rd}, 0x3b000000, v{rd}")
        rbf2(mb, rd)
        A(f"v_add_f32 v{rd}, 0x3727c5ac, v{rd}")
        rbf(rd)
        A(f"v_sqrt_f32 v{rd}, v{rd}")
        rbf(rd)
        A(f"v_rcp_f32 v{rd}, v{rd}")
    def ln_apply(f, n, mb, rd, dup=False):
        for j in range(n): A(f"v_sub_f32 v{f+j}, v{f+j}, v{mb}")
        for j in range(0, n, 2): rbf2(f+j, f+j+1)
        for j in range(n): A(f"v_mul_f32 v{f+j}, v{f+j}, v{rd}")
        if dup:
            for j in range(n): A(f"v_cvt_pk_bf16_f32 v{f+j}, v{f+j}, v{f+j}")
        else:
            for j in range(0, n, 2): rbf2(f+j, f+j+1)
    def masks(mk, t):
        A(f"""v_and_b32 v{t}, 1, v1
        v_lshlrev_b32 v{t}, 4, v{t}
        s_mov_b32 s39, 0xffff
        v_lshlrev_b32_e64 v{t}, v{t}, s39
        v_bfe_u32 v{t+1}, v1, 1, 2""")
        for kk in range(4):
            A(f"v_cmp_eq_u32 vcc, {kk}, v{t+1}\nv_cndmask_b32 v{mk+kk}, 0, v{t}, vcc")
    def stamp(i):
        if stamps: A(f"s_memrealtime s[{80+2*i}:{81+2*i}]")
    def write_stamps(base, n):
        if not stamps: return
        A("s_waitcnt lgkmcnt(0)")
        A("s_mov_b32 s76, s32\ns_mov_b32 s77, s33\ns_mov_b32 s78, 0x20000000\ns_mov_b32 s79, 0x20000")
        A(f"s_lshl_b32 s39, s2, 7\ns_add_u32 s39, s39, {0x10000000 + base*8}")
        A("s_mov_b64 exec, 1\nv_mov_b32 v20, 0")
        for i in range(n):
            A(f"v_mov_b32 v22, s{80+2*i}\nv_mov_b32 v23, s{81+2*i}\nbuffer_store_dwordx2 v[22:23], v20, s[76:79], s39 offen offset:{i*8}\ns_nop 1")
    def tags():
        A("s_add_u32 s4, s6, 1\ns_and_b32 s5, s4, 0xff")
    def check(d, n, a0, a1, grp):
        A(f"v_xor_b32 v{a0}, s5, v{d}\nv_xor_b32 v{a1}, s5, v{d+1}")
        for i in range(2, n):
            a = a0 if i % 2 == 0 else a1
            A(f"v_bitop3_b32 v{a}, v{d+i}, v{a}, s5 bitop3:0xde")
        A(f"v_or_b32 v{a0}, v{a0}, v{a1}\nv_and_b32 v{a0}, 0xff, v{a0}")
        for p in ("quad_perm:[1,0,3,2]", "quad_perm:[2,3,0,1]", "row_half_mirror")[:grp]:
            A(f"v_or_b32_dpp v{a0}, v{a0}, v{a0} {p} row_mask:0xf bank_mask:0xf")
        A(f"v_cmp_ne_u32 vcc, 0, v{a0}")
    lab = [0]
    def poll(loads, d, n, a0, a1, sleep, base_exec="-1", first_issued=False, mode=0, grp=3):
        if mode:
            if mode == 1:
                for l in loads: A(l)
            A("s_waitcnt vmcnt(0)")
            return
        lab[0] += 1
        L = f"L_pl{lab[0]}"
        A(f"s_mov_b32 s72, {POLL_LIMIT}")
        if not first_issued:
            for l in loads: A(l)
        A(f"{L}:")
        A("s_waitcnt vmcnt(0)")
        check(d, n, a0, a1, grp)
        A(f"s_cbranch_vccz {L}d")
        if sleep: A(f"s_sleep {sleep}")
        A("s_mov_b64 exec, vcc")
        for l in loads: A(l)
        A(f"s_mov_b64 exec, {base_exec}\ns_sub_u32 s72, s72, 1\ns_cbranch_scc0 {L}\ns_waitcnt vmcnt(0)")
        A(f"{L}d:")
    def strip(d, n):
        for i in range(n): A(f"v_and_b32 v{d+i}, 0xffffff00, v{d+i}")
    def tagv(dst, src, ff):
        A(f"v_add_u32 v{dst}, 0x80, v{src}\nv_bfi_b32 v{dst}, v{ff}, s5, v{dst}")
    def red8x(v, t):
        A(f"v_add_f32_dpp v{v}, v{v}, v{v} row_ror:8 row_mask:0xf bank_mask:0xf")
        swapadd(v, t, 16); swapadd(v, t, 32)

    A("""s_cmp_ge_u32 s2, 256
    s_cbranch_scc1 L_end""")
    stamp(0)
    A("""s_load_dwordx16 s[8:23], s[0:1], 0
    s_load_dwordx8 s[24:31], s[0:1], 64
    s_load_dwordx2 s[32:33], s[0:1], 96
    v_lshrrev_b32 v2, 6, v0
    v_and_b32 v1, 63, v0
    s_and_b32 s34, s2, 7
    v_readfirstlane_b32 s3, v2
    s_lshr_b32 s35, s2, 3
    s_bfe_u32 s36, s35, 0x20001
    s_lshl_b32 s39, s34, 2
    s_add_u32 s36, s36, s39          ; h
    s_lshr_b32 s37, s35, 3           ; b
    s_and_b32 s38, s35, 1            ; sp
    s_cmp_lt_u32 s3, 4
    s_cbranch_scc1 L_H""")

    T = 8
    Q = 24
    MK = 28
    S = 32
    AO = 40
    ACC = 44
    TMP = 48
    RB = 64
    BB = 128
    NB = P // 16
    stride = 4096 if inter == 1 else 1024
    if sprio: A(f"s_setprio {sprio}")
    A(f"""s_sub_u32 s56, s3, 4
    s_lshl_b32 s57, s37, 5
    s_add_u32 s57, s57, s36
    s_lshl_b32 s57, s57, 20
    s_lshl_b32 s58, s38, 19
    s_add_u32 s57, s57, s58
    s_lshl_b32 s58, s56, {10 if inter == 1 else 17}
    s_add_u32 s57, s57, s58
    s_mov_b32 s59, s57
    v_lshlrev_b32 v2, 4, v1
    s_waitcnt lgkmcnt(0)""")
    srd(40, 10, 0x8000000)
    def issue(r):
        A(f"buffer_load_dwordx4 v[{r}:{r+3}], v2, s[40:43], s59 offen {kvflags}")
        A(f"s_add_u32 s59, s59, {stride}")
    for i in range(P + k):
        if i >= kp: A(f"s_waitcnt vmcnt({kp-1})")
        issue(BB + 4*i if i < P else RB + 4*(i-P))
        if i == 3:
            A(f"s_load_dword s6, s[32:33], {W_EP}")
            masks(MK, TMP)
            A(f"""s_mov_b32 s60, 0xaaaaaaaa
            s_mov_b32 s61, 0xaaaaaaaa
            s_mov_b32 s62, 0xcccccccc
            s_mov_b32 s63, 0xcccccccc
            v_and_b32 v3, 15, v1
            v_lshlrev_b32 v3, 5, v3""")
    stamp(1)
    A("s_waitcnt lgkmcnt(0)\ns_barrier")
    stamp(2)
    for hw in range(4):
        d = (TMP, TMP+8, T, T+8)[hw]
        A(f"ds_read_b128 v[{d}:{d+3}], v3 offset:{L_QP+hw*512}")
        A(f"ds_read_b128 v[{d+4}:{d+7}], v3 offset:{L_QP+hw*512+16}")
    A("s_waitcnt lgkmcnt(0)")
    for j in range(8):
        A(f"v_add_f32 v{TMP+j}, v{TMP+j}, v{TMP+8+j}\nv_add_f32 v{T+j}, v{T+j}, v{T+8+j}")
    for j in range(8):
        A(f"v_add_f32 v{TMP+j}, v{TMP+j}, v{T+j}")
    for j in range(4):
        A(f"v_cvt_pk_bf16_f32 v{Q+j}, v{TMP+2*j}, v{TMP+2*j+1}")
    def kgroup(base, dst, ring):
        pend = None
        for c in range(16):
            r = base + 4 * c
            if ring:
                if c == 16 - k:
                    A(f"""s_cmp_eq_u32 s64, {8-NB-1}
                    s_cselect_b32 s40, s12, s40
                    s_cselect_b32 s41, s13, s41
                    s_cselect_b32 s59, s57, s59""")
                A(f"s_waitcnt vmcnt({k-1})")
                if k < 16: issue(RB + 4*((c+k) % 16))
            A(f"v_dot2_f32_bf16 v{T+c}, v{r}, v{Q}, 0")
            for kk in range(1, 4):
                A(f"v_dot2_f32_bf16 v{T+c}, v{r+kk}, v{Q+kk}, v{T+c}")
            if ring and k == 16: issue(r)
            if pend: A(pend)
            if c < 8: pend = f"v_add_f32_dpp v{T+c}, v{T+c}, v{T+c} row_ror:8 row_mask:0xf bank_mask:0x3"
            else:     pend = f"v_add_f32_dpp v{T+c-8}, v{T+c}, v{T+c} row_ror:8 row_mask:0xf bank_mask:0xc"
        A(pend)
        for i in range(4): A(f"v_add_f32_dpp v{T+i}, v{T+i}, v{T+i} row_half_mirror row_mask:0xf bank_mask:0x5")
        for i in range(4): A(f"v_add_f32_dpp v{T+i}, v{T+i+4}, v{T+i+4} row_half_mirror row_mask:0xf bank_mask:0xa")
        for i in range(4): A(f"v_add_f32_dpp v{T+i}, v{T+i}, v{T+i} quad_perm:[2,3,0,1] row_mask:0xf bank_mask:0xf")
        for i in range(2): A(f"v_cndmask_b32 v{T+i}, v{T+i}, v{T+i+2}, s[62:63]")
        for i in range(2): A(f"v_add_f32_dpp v{T+i}, v{T+i}, v{T+i} quad_perm:[1,0,3,2] row_mask:0xf bank_mask:0xf")
        A(f"v_cndmask_b32 v{dst}, v{T}, v{T+1}, s[60:61]")
    A(f"s_mov_b32 s64, 0")
    A("L_K:")
    for j in range(NB, 7):
        A(f"v_mov_b32 v{S+j}, v{S+j+1}")
    kgroup(RB, S+7, True)
    for g in range(NB):
        A(f"s_cmp_lg_u32 s64, {g}\ns_cbranch_scc1 L_KB{g}")
        kgroup(BB + 64*g, S+g, False)
        A(f"L_KB{g}:")
    A(f"""s_add_u32 s64, s64, 1
    s_cmp_lt_u32 s64, {8-NB}
    s_cbranch_scc1 L_K""")
    stamp(3)
    A(f"s_mov_b32 s65, {SCALE:#x}\ns_mov_b32 s66, {LOG2E:#x}")
    for j in range(0, 8, 2): rbf2(S+j, S+j+1)
    for j in range(8): A(f"v_mul_f32 v{S+j}, s65, v{S+j}")
    for j in range(0, 8, 2): rbf2(S+j, S+j+1)
    M = TMP + 2; Lr = TMP + 3; M2 = TMP + 4
    A(f"""v_max3_f32 v{M}, v{S}, v{S+1}, v{S+2}
    v_max3_f32 v{M}, v{M}, v{S+3}, v{S+4}
    v_max3_f32 v{M}, v{M}, v{S+5}, v{S+6}
    v_max_f32 v{M}, v{M}, v{S+7}""")
    allred(M, TMP, "max_f32")
    A(f"v_mul_f32 v{M2}, s66, v{M}")
    for j in range(8): A(f"v_fma_f32 v{S+j}, v{S+j}, s66, -v{M2}")
    for j in range(8): A(f"v_exp_f32 v{S+j}, v{S+j}")
    A(f"v_add_f32 v{Lr}, v{S}, v{S+1}")
    for j in range(2, 8): A(f"v_add_f32 v{Lr}, v{Lr}, v{S+j}")
    for j in range(8): A(f"v_cvt_pk_bf16_f32 v{S+j}, v{S+j}, v{S+j}")
    allred(Lr, TMP)
    A(f"""v_min_u32 v{Lr}, -2, v{Lr}
    s_lshl_b32 s39, s56, 3
    v_mov_b32 v{TMP}, s39
    ds_write_b64 v{TMP}, v[{M}:{Lr}] offset:{L_ML}""")
    for j in range(4): A(f"v_mov_b32 v{ACC+j}, 0")
    A("s_mov_b32 s64, 0")
    A("L_V:")
    for c in range(16):
        r = RB + 4 * c
        if c == 16 - k:
            A(f"s_cmp_eq_u32 s64, 7\ns_cselect_b32 s42, 0, s42")
        for kk in range(4):
            A(f"v_and_b32_dpp v{AO+kk}, v{S}, v{MK+kk} row_newbcast:{c} row_mask:0xf bank_mask:0xf")
        A(f"s_waitcnt vmcnt({k-1})")
        if k < 16: issue(RB + 4*((c+k) % 16))
        A(f"v_mfma_f32_16x16x32_bf16 v[{ACC}:{ACC+3}], v[{AO}:{AO+3}], v[{r}:{r+3}], v[{ACC}:{ACC+3}]")
        if k == 16: issue(r)
    for j in range(7):
        A(f"v_mov_b32 v{S+j}, v{S+j+1}")
    A(f"""s_add_u32 s64, s64, 1
    s_cmp_lt_u32 s64, 8
    s_cbranch_scc1 L_V""")
    stamp(4)
    A(f"""v_and_b32 v3, 15, v1
    v_lshlrev_b32 v3, 4, v3
    v_lshrrev_b32 v4, 4, v1
    v_lshl_add_u32 v3, v4, 3, v3
    s_lshl_b32 s39, s56, 8
    v_add_u32 v3, s39, v3
    v_cvt_pk_bf16_f32 v{TMP}, v{ACC}, v{ACC+1}
    v_cvt_pk_bf16_f32 v{TMP+1}, v{ACC+2}, v{ACC+3}
    s_mov_b32 exec_hi, 0
    ds_write_b64 v3, v[{TMP}:{TMP+1}] offset:{L_O}
    s_mov_b64 exec, -1
    s_waitcnt lgkmcnt(0)
    s_barrier
    s_cmp_lg_u32 s56, 0
    s_cbranch_scc1 L_end""")
    stamp(5); stamp(6)
    A(f"""s_and_b32 s39, s35, 6
    s_cmp_lg_u32 s39, 0
    s_cbranch_scc1 L_fend""")
    U = 8
    srdws()
    tags()
    A(f"""s_lshl_b32 s67, s34, 1
    s_add_u32 s67, s67, s38          ; cq
    s_lshl_b32 s70, s37, 17
    s_lshl_b32 s39, s67, 7
    s_add_u32 s70, s70, s39
    s_add_u32 s70, s70, {W_U}
    v_lshrrev_b32 v3, 3, v1
    v_lshlrev_b32 v3, 11, v3
    v_and_b32 v4, 7, v1
    v_lshl_add_u32 v3, v4, 4, v3""")
    for t in range(1, 8): A(f"s_add_u32 s{56+t}, s70, {t*16384}")
    uloads = [f"buffer_load_dwordx4 v[{U+4*t}:{U+4*t+3}], v3, s[44:47], s{70 if t == 0 else 56+t} offen sc1" for t in range(8)]
    for l in uloads: A(l)
    A(f"""v_lshlrev_b32 v5, 5, v4
    ds_read_b128 v[44:47], v5 offset:{L_G}
    ds_read_b128 v[48:51], v5 offset:{L_G+16}
    v_lshlrev_b32 v4, 3, v4
    s_lshl_b32 s71, s37, 10
    s_lshl_b32 s39, s67, 6
    s_add_u32 s71, s71, s39""")
    srd(48, 28, 4096)
    poll(uloads, U, 32, 40, 41, fsleep, first_issued=True)
    stamp(6)
    strip(U, 32)
    for st in (16, 8, 4):
        for i in range(st): A(f"v_add_f32 v{U+i}, v{U+i}, v{U+st+i}")
    for i in range(4): A(f"v_add_f32_dpp v{U+i}, v{U+i}, v{U+i} row_ror:8 row_mask:0xf bank_mask:0xf")
    for sw in (16, 32):
        for i in range(4): A(f"v_mov_b32 v{U+4+i}, v{U+i}")
        for i in range(4): A(f"v_permlane{sw}_swap_b32 v{U+i}, v{U+4+i}")
        for i in range(4): A(f"v_add_f32 v{U+i}, v{U+i}, v{U+4+i}")
    A("s_waitcnt lgkmcnt(0)")
    rbf2(U, U+1); rbf2(U+2, U+3)
    for i in range(4): A(f"v_mul_f32 v{U+i}, v{U+i}, v{44+i}")
    rbf2(U, U+1); rbf2(U+2, U+3)
    for i in range(4): A(f"v_add_f32 v{U+i}, v{U+i}, v{48+i}")
    A(f"""v_cvt_pk_bf16_f32 v{U}, v{U}, v{U+1}
    v_cvt_pk_bf16_f32 v{U+1}, v{U+2}, v{U+3}
    s_mov_b64 exec, 0xff
    buffer_store_dwordx2 v[{U}:{U+1}], v4, s[48:51], s71 offen""")
    A("L_fend:")
    stamp(7)
    write_stamps(0, 8)
    A("s_endpgm")

    W = 128
    XR = 8
    XA = 16
    MB = 24; RD = 25; TT = 26
    FF = 29
    POFF = 30
    HMK = 32
    HA = 36
    HACC = 40
    PUB = 44
    F = 56
    AV = 72
    G = 88
    A("L_H:")
    if hprio: A(f"s_setprio {hprio}")
    A(f"""v_lshlrev_b32 v2, 4, v1             ; lane*16
    v_and_b32 v3, 15, v1                  ; c / m
    v_lshrrev_b32 v4, 4, v1               ; g
    s_and_b32 s56, s3, 1                  ; half
    v_mov_b32 v{FF}, 0xff
    v_lshrrev_b32 v5, 3, v3
    v_lshlrev_b32 v5, 10, v5              ; (m>>3)*1024
    s_cmp_ge_u32 s3, 2
    s_cbranch_scc1 L_H23""")
    def gemv(wait):
        for i in range(16):
            for kk in range(4):
                A(f"v_and_b32 v{HA+kk}, v{AV+i}, v{HMK+kk}")
            if wait: A(f"s_waitcnt vmcnt({15-i})")
            A(f"v_mfma_f32_16x16x32_bf16 v[{HACC}:{HACC+3}], v[{HA}:{HA+3}], v[{W+4*i}:{W+4*i+3}], {'0' if i == 0 else f'v[{HACC}:{HACC+3}]'}")
    def publish4(voff, soff):
        for r in range(4): tagv(PUB+r, HACC+r, FF)
        A(f"buffer_store_dwordx4 v[{PUB}:{PUB+3}], v{voff}, s[44:47], s{soff} offen sc1")
    def xloads():
        A(f"""buffer_load_dwordx4 v[{XR}:{XR+3}], v6, s[40:43], s58 offen
        buffer_load_dwordx4 v[{XR+4}:{XR+7}], v6, s[40:43], s58 offen offset:16
        buffer_load_dwordx4 v[{XA}:{XA+3}], v5, s[40:43], s59 offen
        buffer_load_dwordx4 v[{XA+4}:{XA+7}], v5, s[40:43], s59 offen offset:16""")
    def tloads(rowstride):
        for i in range(16):
            A(f"buffer_load_dwordx4 v[{W+4*i}:{W+4*i+3}], v7, s[48:51], s60 offen {wflags}")
            if i < 15: A(f"s_add_u32 s60, s60, {rowstride}")
    A(f"""s_lshl_b32 s57, s37, 1
    s_add_u32 s57, s57, s38               ; j
    v_and_b32 v6, 7, v1
    v_lshl_add_u32 v6, v4, 3, v6
    v_lshl_add_u32 v6, v6, 5, v5
    s_lshl_b32 s58, s56, 11               ; half*2048
    v_lshl_add_u32 v5, v4, 5, v5
    s_lshl_b32 s59, s57, 7
    s_add_u32 s59, s59, s58               ; + 64j*2
    v_lshlrev_b32 v7, 17, v4
    v_lshl_add_u32 v7, v3, 4, v7
    s_lshl_b32 s60, s57, 19
    s_lshl_b32 s39, s36, 8
    s_add_u32 s60, s60, s39
    s_waitcnt lgkmcnt(0)""")
    srd(40, 8, 4096)
    srd(48, 14, 0 if "q" in abl else 0x400000)
    xloads()
    tloads(0x2000)
    A(f"s_load_dword s6, s[32:33], {W_EP}")
    srdws()
    masks(HMK, TT)
    A(f"""v_and_b32 v{TT}, 1, v4
    v_lshlrev_b32 v{POFF}, 5, v3
    v_lshl_add_u32 v{POFF}, v{TT}, 4, v{POFF}     ; c*32 + (g&1)*16
    v_lshrrev_b32 v{POFF+1}, 1, v4                ; g>>1
    v_lshl_add_u32 v7, v{POFF+1}, 17, v{POFF}
    s_lshl_b32 s60, s56, 6
    s_add_u32 s60, s60, s36
    s_lshl_b32 s60, s60, 3
    s_add_u32 s60, s60, s57
    s_lshl_b32 s60, s60, 9
    s_add_u32 s60, s60, {W_Q}
    s_waitcnt vmcnt(18)""")
    unpack(F, XR, 8)
    ln_stats(F, MB, RD, TT)
    A("s_waitcnt vmcnt(16)")
    unpack(AV, XA, 8)
    ln_apply(AV, 16, MB, RD, dup=True)
    A("s_waitcnt lgkmcnt(0)")
    tags()
    gemv(True)
    publish4(7, 60)
    stamp(1)
    A("s_branch L_HA")
    A("L_H23:")
    A(f"""s_lshl_b32 s60, s37, 5
    s_add_u32 s60, s60, s36
    s_lshl_b32 s60, s60, 12
    s_lshl_b32 s39, s56, 11
    s_add_u32 s60, s60, s39
    s_add_u32 s60, s60, {W_Q}
    v_mov_b32 v{TT}, -1
    v_lshlrev_b32 v7, 2, v1
    s_mov_b64 exec, 0xff
    ds_write_b32 v7, v{TT} offset:{L_ML}
    s_mov_b64 exec, -1
    s_waitcnt lgkmcnt(0)
    s_load_dword s6, s[32:33], {W_EP}""")
    srd(40, 8, 4096)
    srdws()
    A("s_waitcnt lgkmcnt(0)")
    tags()
    if qdly: A(f"s_sleep {qdly}")
    qloads = [f"buffer_load_dwordx4 v[{G+4*t}:{G+4*t+3}], v2, s[44:47], s60 offen offset:{t*1024} sc1" for t in range(2)]
    if "Q" not in abl:
        poll(qloads, G, 8, TT, TT+1, qsleep)
    strip(G, 8)
    for i in range(4): A(f"v_add_f32 v{G+i}, v{G+i}, v{G+4+i}")
    A(f"""s_lshl_b32 s39, s56, 10
    v_add_u32 v7, s39, v2
    ds_write_b128 v7, v[{G}:{G+3}] offset:{L_QP}
    s_waitcnt lgkmcnt(0)""")
    stamp(1)
    A("L_HA:")
    A("s_barrier")
    stamp(2)
    if "x" in abl: A("s_branch L_n1")
    srd(48, 16, 0 if "o" in abl else 0x400000)
    A(f"""v_lshlrev_b32 v7, 10, v4
    v_lshl_add_u32 v7, v3, 4, v7
    s_lshl_b32 s60, s36, 17
    s_lshl_b32 s39, s3, 8
    s_add_u32 s60, s60, s39
    s_lshl_b32 s67, s3, 15
    s_add_u32 s67, s67, {L_WO}
    s_mov_b32 m0, s67
    s_mov_b32 s64, 32""")
    if "w" in abl: A("s_branch L_wo2")
    A("L_wo:")
    A(f"""s_waitcnt vmcnt({kw-1})
    buffer_load_dwordx4 v7, s[48:51], s60 offen {woflags} lds
    s_add_u32 s60, s60, 0x1000
    s_add_u32 m0, m0, 0x400
    s_sub_u32 s64, s64, 1
    s_cmp_lg_u32 s64, 0
    s_cbranch_scc1 L_wo""")
    A("L_wo2:")
    stamp(3)
    A(f"""s_cmp_ge_u32 s3, 2
    s_cbranch_scc1 L_tr
    s_cmp_ge_u32 s2, 224
    s_cbranch_scc1 L_tr""")
    if "A" in abl: A("s_branch L_tr")
    A(f"""s_cmp_ge_u32 s2, 112
    s_cbranch_scc1 L_m2""")
    srd(48, 20, 0 if "1" in abl else 512*1792*2)
    A(f"""s_and_b32 s61, s2, 7                  ; ks
    s_lshr_b32 s62, s2, 3                 ; cb1
    s_lshl_b32 s59, s61, 7
    s_add_u32 s59, s59, s58
    s_mov_b32 s39, {16*3584}
    v_mul_lo_u32 v7, v4, s39
    v_lshl_add_u32 v7, v3, 4, v7
    s_mul_i32 s60, s61, {64*3584}
    s_lshl_b32 s39, s62, 8
    s_add_u32 s60, s60, s39
    buffer_load_dwordx4 v[{XA}:{XA+3}], v5, s[40:43], s59 offen
    buffer_load_dwordx4 v[{XA+4}:{XA+7}], v5, s[40:43], s59 offen offset:16""")
    tloads(3584)
    A(f"""v_lshl_add_u32 v7, v{POFF+1}, 9, v{POFF}
    s_lshl_b32 s60, s2, 11
    s_lshl_b32 s39, s56, 10
    s_add_u32 s60, s60, s39
    s_add_u32 s60, s60, {W_M1}""")
    ln_apply(F, 16, MB, RD)
    A("s_waitcnt vmcnt(16)")
    unpack(AV, XA, 8)
    ln_apply(AV, 16, MB, RD)
    ln_stats(F, MB, RD, TT)
    ln_apply(AV, 16, MB, RD, dup=True)
    gemv(True)
    publish4(7, 60)
    A("s_branch L_tr")
    A("L_m2:")
    srd(48, 24, 0 if "2" in abl else 1792*1024)
    srd(68, 22, 1792*2)
    A(f"""s_sub_u32 s39, s2, 112
    s_and_b32 s61, s39, 3                 ; cb2
    s_lshr_b32 s62, s39, 2                ; kb2
    v_lshlrev_b32 v7, 14, v4
    v_lshl_add_u32 v7, v3, 4, v7
    s_lshl_b32 s60, s62, 16
    s_lshl_b32 s39, s61, 8
    s_add_u32 s60, s60, s39
    s_lshl_b32 s59, s62, 7
    v_lshlrev_b32 v5, 3, v3
    buffer_load_dwordx2 v[{XR}:{XR+1}], v5, s[68:71], s59 offen""")
    tloads(1024)
    A(f"""s_lshr_b32 s59, s62, 1
    s_lshl_b32 s59, s59, 14
    s_lshl_b32 s39, s56, 10
    s_add_u32 s59, s59, s39
    s_and_b32 s39, s62, 1
    s_lshl_b32 s39, s39, 8
    s_add_u32 s59, s59, s39
    s_add_u32 s59, s59, {W_M1}
    s_add_u32 s63, s59, 0x1000
    s_add_u32 s64, s59, 0x2000
    s_add_u32 s65, s59, 0x3000
    v_and_b32 v{TT+2}, 1, v4
    v_lshlrev_b32 v6, 4, v3
    v_lshl_add_u32 v6, v{TT+2}, 9, v6
    v_lshl_add_u32 v6, v{POFF+1}, 11, v6""")
    mloads = [f"buffer_load_dwordx4 v[{G+4*t}:{G+4*t+3}], v6, s[44:47], s{(59,63,64,65)[t]} offen sc1" for t in range(4)]
    poll(mloads, G, 16, TT, TT+1, 32)
    strip(G, 16)
    for st in (8, 4):
        for i in range(st): A(f"v_add_f32 v{G+i}, v{G+i}, v{G+st+i}")
    for i in range(4): swapadd(G+i, G+4+i, 32)
    rbf2(G, G+1); rbf2(G+2, G+3)
    unpack(G+4, XR, 2)
    for i in range(4): A(f"v_add_f32 v{G+i}, v{G+i}, v{G+4+i}")
    rbf2(G, G+1); rbf2(G+2, G+3)
    c1 = -2.0 * 1.4426950408889634 * 0.7978845608028654
    for r in range(4):
        x = G + r; t = G + 4 + r
        A(f"""v_mul_f32 v{t}, v{x}, v{x}
        v_mul_f32 v{t}, {f2u(0.044715):#x}, v{t}
        v_add_f32 v{t}, 1.0, v{t}
        v_mul_f32 v{t}, v{t}, v{x}
        v_mul_f32 v{t}, {f2u(c1):#x}, v{t}
        v_exp_f32 v{t}, v{t}
        v_add_f32 v{t}, 1.0, v{t}
        v_rcp_f32 v{t}, v{t}
        v_mul_f32 v{x}, v{x}, v{t}""")
    A(f"""v_cvt_pk_bf16_f32 v{G}, v{G}, v{G+1}
    v_cvt_pk_bf16_f32 v{G+1}, v{G+2}, v{G+3}
    s_lshl_b32 s39, s56, 8
    v_lshl_add_u32 v5, v{TT+2}, 7, v5
    v_add_u32 v5, s39, v5
    ds_write_b64 v5, v[{G}:{G+1}] offset:{L_H}
    v_lshrrev_b32 v5, 3, v3
    v_lshlrev_b32 v5, 7, v5
    v_lshl_add_u32 v5, v4, 5, v5
    v_add_u32 v5, s39, v5
    s_waitcnt lgkmcnt(0)
    ds_read_b128 v[{XA}:{XA+3}], v5 offset:{L_H}
    ds_read_b128 v[{XA+4}:{XA+7}], v5 offset:{L_H+16}
    s_mov_b32 s64, 0x01000100
    s_mov_b32 s65, 0x03020302
    v_lshl_add_u32 v7, v{POFF+1}, 16, v{POFF}
    s_lshl_b32 s60, s56, 17
    s_lshl_b32 s39, s62, 11
    s_add_u32 s60, s60, s39
    s_lshl_b32 s39, s61, 9
    s_add_u32 s60, s60, s39
    s_add_u32 s60, s60, {W_G}
    s_waitcnt lgkmcnt(0)""")
    for i in range(16): A(f"v_perm_b32 v{AV+i}, v{XA+i//2}, v{XA+i//2}, s{64+i%2}")
    gemv(False)
    publish4(7, 60)
    A("L_tr:")
    stamp(4)
    A(f"""v_lshlrev_b32 v7, 11, v4
    v_bfe_u32 v{TT}, v1, 2, 2
    v_lshl_add_u32 v7, v{TT}, 8, v7
    v_and_b32 v{TT}, 3, v1
    v_lshl_add_u32 v7, v{TT}, 3, v7
    v_add_u32 v7, s67, v7
    s_waitcnt vmcnt(0)""")
    for cb in range(8):
        for ks in range(4):
            r = W + 4 * (cb * 4 + ks)
            off = ks * 32 * 256 + cb * 32
            A(f"ds_read_b64_tr_b16 v[{r}:{r+1}], v7 offset:{off}")
            A(f"ds_read_b64_tr_b16 v[{r+2}:{r+3}], v7 offset:{off+1024}")
    A(f"""s_cmp_lt_u32 s3, 2
    s_cbranch_scc1 L_n1
    s_cmp_eq_u32 s3, 2
    s_cbranch_scc1 L_h2""")
    if "e" in abl: A("s_branch L_n1")
    srd(52, 30, 256)
    A(f"""s_mov_b64 exec, 1
    v_mov_b32 v{TT}, 1
    buffer_atomic_add v{TT}, off, s[52:55], 0 sc0
    v_mov_b32 v{PUB}, s4
    s_waitcnt vmcnt(0)
    v_cmp_eq_u32 vcc, 255, v{TT}
    s_mov_b64 exec, vcc
    s_cbranch_execz L_e0
    s_mov_b32 s52, s32
    s_mov_b32 s53, s33
    buffer_store_dword v{PUB}, off, s[52:55], 0 offset:{W_EP} sc1""")
    A("L_e0:")
    A("s_mov_b64 exec, -1\ns_branch L_n1")
    A("L_h2:")
    if "m" in abl: A("s_branch L_ml2")
    A(f"""v_lshlrev_b32 v6, 3, v1
    s_lshl_b32 s63, s37, 5
    s_add_u32 s63, s63, s36
    s_lshl_b32 s63, s63, 6
    s_add_u32 s63, s63, {W_ML}
    s_lshl_b32 s39, s38, 5
    s_add_u32 s66, s63, s39
    s_mov_b64 exec, 0xf
    s_mov_b32 s72, {POLL_LIMIT}""")
    A("L_MP:")
    A(f"""ds_read_b64 v[{XR}:{XR+1}], v6 offset:{L_ML}
    s_waitcnt lgkmcnt(0)
    v_cmp_eq_u32 vcc, -1, v{XR+1}
    s_cbranch_vccz L_MD
    s_sleep 8
    s_sub_u32 s72, s72, 1
    s_cbranch_scc0 L_MP""")
    A("L_MD:")
    A(f"""v_bfi_b32 v{PUB}, v{FF}, s5, v{XR}
    v_bfi_b32 v{PUB+1}, v{FF}, s5, v{XR+1}
    buffer_store_dwordx2 v[{PUB}:{PUB+1}], v6, s[44:47], s66 offen sc1
    s_mov_b64 exec, 0xff""")
    poll([f"buffer_load_dwordx2 v[{XR}:{XR+1}], v6, s[44:47], s63 offen sc1"], XR, 2, TT, TT+1, 16, base_exec="0xff")
    strip(XR, 2)
    A(f"""v_max_f32_dpp v{TT}, v{XR}, v{XR} quad_perm:[1,0,3,2] row_mask:0xf bank_mask:0xf
    v_max_f32_dpp v{TT}, v{TT}, v{TT} quad_perm:[2,3,0,1] row_mask:0xf bank_mask:0xf
    v_max_f32_dpp v{TT}, v{TT}, v{TT} row_half_mirror row_mask:0xf bank_mask:0xf
    v_sub_f32 v{XR}, v{XR}, v{TT}
    v_mul_f32 v{XR}, {LOG2E:#x}, v{XR}
    v_exp_f32 v{XR}, v{XR}
    v_mul_f32 v{TT}, v{XR}, v{XR+1}
    v_add_f32_dpp v{TT}, v{TT}, v{TT} quad_perm:[1,0,3,2] row_mask:0xf bank_mask:0xf
    v_add_f32_dpp v{TT}, v{TT}, v{TT} quad_perm:[2,3,0,1] row_mask:0xf bank_mask:0xf
    v_add_f32_dpp v{TT}, v{TT}, v{TT} row_half_mirror row_mask:0xf bank_mask:0xf
    v_rcp_f32 v{TT}, v{TT}
    v_mul_f32 v{XR}, v{XR}, v{TT}
    v_and_b32 v6, 3, v1
    v_lshlrev_b32 v6, 2, v6
    s_lshl_b32 s39, s38, 2
    s_lshl_b32 s64, 0xf, s39
    s_mov_b32 s65, 0
    s_mov_b64 exec, s[64:65]
    ds_write_b32 v6, v{XR} offset:{L_C}
    s_mov_b64 exec, -1""")
    A("L_ml2:")
    stamp(5)
    if "g" in abl or "A" in abl: A("s_branch L_n1")
    A(f"""s_and_b32 s39, s35, 6
    s_cmp_lg_u32 s39, 0
    s_cbranch_scc1 L_n1""")
    srd(68, 26, 1024)
    A(f"""s_lshl_b32 s67, s34, 1
    s_add_u32 s67, s67, s38          ; cq
    s_lshl_b32 s58, s67, 6
    s_lshl_b32 s39, s37, 10
    s_add_u32 s59, s58, s39
    s_lshl_b32 s60, s37, 16
    s_lshl_b32 s39, s67, 7
    s_add_u32 s60, s60, s39
    s_add_u32 s60, s60, {W_G}
    s_add_u32 s61, s60, 0x4000
    s_add_u32 s62, s60, 0x8000
    s_add_u32 s63, s60, 0xc000
    v_and_b32 v6, 7, v1
    v_lshlrev_b32 v5, 3, v6
    buffer_load_dwordx2 v[{XA}:{XA+1}], v5, s[68:71], s58 offen
    buffer_load_dwordx2 v[{XA+2}:{XA+3}], v5, s[40:43], s59 offen
    v_lshrrev_b32 v7, 3, v1
    v_lshlrev_b32 v7, 11, v7
    v_lshl_add_u32 v7, v6, 4, v7
    v_and_b32 v5, 0x1fff, v7""")
    gloads = [f"buffer_load_dwordx4 v[{G+4*t}:{G+4*t+3}], v{7 if t < 3 else 5}, s[44:47], s{60+t} offen sc1" for t in range(4)]
    poll(gloads, G, 16, TT, TT+1, 32)
    strip(G, 16)
    A("s_mov_b32 exec_hi, 0")
    for i in range(4): A(f"v_add_f32 v{G+i}, v{G+i}, v{G+12+i}")
    A("s_mov_b64 exec, -1")
    for t in (1, 2):
        for i in range(4): A(f"v_add_f32 v{G+i}, v{G+i}, v{G+4*t+i}")
    for i in range(4): red8x(G+i, G+4+i)
    rbf2(G, G+1); rbf2(G+2, G+3)
    unpack(G+4, XA, 2)
    for i in range(4): A(f"v_add_f32 v{G+i}, v{G+i}, v{G+4+i}")
    rbf2(G, G+1); rbf2(G+2, G+3)
    for r in range(4):
        A(f"""v_mul_f32 v{TT}, {LOG2E ^ 0x80000000:#x}, v{G+r}
        v_exp_f32 v{TT}, v{TT}
        v_add_f32 v{TT}, 1.0, v{TT}
        v_rcp_f32 v{TT}, v{TT}
        v_mul_f32 v{G+r}, v{G+r}, v{TT}""")
    rbf2(G, G+1); rbf2(G+2, G+3)
    unpack(G+4, XA+2, 2)
    A(f"""v_lshlrev_b32 v6, 5, v6
    ds_write_b128 v6, v[{G}:{G+3}] offset:{L_G}
    ds_write_b128 v6, v[{G+4}:{G+7}] offset:{L_G+16}""")
    A("L_n1:")
    OA = 56
    CC = 72
    DD = 76
    UU = 108
    A(f"""v_and_b32 v6, 3, v1
    v_lshlrev_b32 v6, 8, v6
    v_lshl_add_u32 v6, v4, 4, v6
    v_mov_b32 v5, 0
    v_lshlrev_b32 v7, 2, v1
    s_lshl_b32 s59, s37, 17
    s_lshl_b32 s39, s36, 12
    s_add_u32 s59, s59, s39
    s_lshl_b32 s39, s38, 11
    s_add_u32 s59, s59, s39
    s_lshl_b32 s39, s3, 9
    s_add_u32 s59, s59, s39
    s_add_u32 s59, s59, {W_U}
    s_waitcnt lgkmcnt(0)""")
    stamp(6)
    A("s_barrier")
    for ks in range(4):
        A(f"ds_read_b128 v[{OA+4*ks}:{OA+4*ks+3}], v6 offset:{L_O+ks*64}")
    A(f"ds_read_b128 v[{CC}:{CC+3}], v5 offset:{L_C}")
    for ks in range(4):
        A(f"s_waitcnt lgkmcnt({4-ks})")
        for cb in range(8):
            r = W + 4 * (cb * 4 + ks)
            d = DD + 4 * cb
            A(f"v_mfma_f32_16x16x32_bf16 v[{d}:{d+3}], v[{OA+4*ks}:{OA+4*ks+3}], v[{r}:{r+3}], {'0' if ks == 0 else f'v[{d}:{d+3}]'}")
    A("s_waitcnt lgkmcnt(0)")
    for r in range(4):
        for cb in range(8):
            A(f"v_{'mul' if r == 0 else 'fmac'}_f32_dpp v{UU+cb//4+2*(cb%4)}, v{DD+4*cb+r}, v{CC+r} quad_perm:[0,1,2,3] row_mask:{1<<(cb%4):#x} bank_mask:0xf")
    for j in range(2):
        for gq in range(1, 4):
            A(f"v_mov_b32_dpp v{UU+j}, v{UU+j+2*gq} quad_perm:[0,1,2,3] row_mask:{1<<gq:#x} bank_mask:0xf")
    tagv(PUB, UU, FF); tagv(PUB+1, UU+1, FF)
    A(f"""buffer_store_dword v{PUB}, v7, s[44:47], s59 offen sc1
    buffer_store_dword v{PUB+1}, v7, s[44:47], s59 offen offset:256 sc1""")
    if stamps:
        stamp(7)
        A(f"s_cmp_lg_u32 s3, {hst}\ns_cbranch_scc1 L_end")
        write_stamps(8, 8)
    A("L_end:")
    A("s_endpgm")
    E.raw(f""".section .rodata,"a"
.p2align 6
.amdhsa_kernel {KN}
  .amdhsa_next_free_vgpr 256
  .amdhsa_next_free_sgpr 102
  .amdhsa_accum_offset 256
  .amdhsa_group_segment_fixed_size 0
  .amdhsa_kernarg_size 104
  .amdhsa_user_sgpr_count 2
  .amdhsa_user_sgpr_kernarg_segment_ptr 1
  .amdhsa_system_sgpr_workgroup_id_x 1
  .amdhsa_float_denorm_mode_32 3
.end_amdhsa_kernel""")
    return E.text()

if __name__ == "__main__":
    kw_ = {}
    out = sys.argv[1]
    for a in sys.argv[2:]:
        kk, v = a.split("=")
        kw_[kk] = int(v) if (v.lstrip("-").isdigit() and kk != "abl") else v.replace("+", " ")
    open(out, "w").write(gen(**kw_))
```

```python
import sys, struct
from emit import Emit
KN = "recurrent_scan__mha_block_cached__mixer_channel_mlp__decode_kernel"
HEADER = open("recurrent_scan__mha_block_cached__mixer_channel_mlp__decode.s.ref").read().split("; Override launch")[0]

L_QP = 0x000
L_O  = 0x800
L_ML = 0xC00
L_C  = 0xC40
L_G  = 0xC80
L_X  = 0x1000
L_T  = 0x1400
L_WO = 0x5400
LDS_BYTES = L_WO + 4 * 32768
W_EP = 0x0
W_H  = 0x10000
W_G  = 0x90000
W_ML = 0x120000
W_U  = 0x1B0000
W_END = 0x230000
MLS = 4224
LOG2E = 0x3fb8aa3b
SCALE = 0x3db504f3
POLL_LIMIT = 0x20000
def f2u(x): return struct.unpack("<I", struct.pack("<f", x))[0]

def gen(k=6, kp=6, NS=48, npro=48, dt=2, kq=5, kw=2, km=2, kvflags="nt", wflags="nt", woflags="nt", mflags="nt", stamps=0, hst=2, abl="",
        sprio=3, hprio=0, fsleep=2, BS=4352, gsleep=32, gap=40, esleep=64):
    E = Emit()
    A = E
    E.raw(HEADER.rstrip())
    E.raw(f"; @launch grid=(256,1,1) block=(512,1,1) lds={LDS_BYTES}")
    E.raw('.amdgcn_target "amdgcn-amd-amdhsa--gfx950"\n.text')
    E.raw(f".globl {KN}\n.p2align 8\n.type {KN},@function\n{KN}:")

    def srd(r, lo, size):
        A(f"s_mov_b32 s{r}, s{lo}\ns_mov_b32 s{r+1}, s{lo+1}\ns_mov_b32 s{r+2}, {size:#x}\ns_mov_b32 s{r+3}, 0x20000")
    def srdws(): srd(44, 32, W_END)
    def swapadd(v, t, sw, op="add_f32", A=A):
        A(f"v_mov_b32 v{t}, v{v}\nv_permlane{sw}_swap_b32 v{v}, v{t}\nv_{op} v{v}, v{v}, v{t}")
    def allred(v, t, op="add_f32", A=A):
        for kk in (8, 4, 2, 1):
            A(f"v_{op}_dpp v{v}, v{v}, v{v} row_ror:{kk} row_mask:0xf bank_mask:0xf")
        swapadd(v, t, 16, op, A); swapadd(v, t, 32, op, A)
    def red16x(v, t):
        for p in ("row_ror:4", "row_ror:8"):
            A(f"v_add_f32_dpp v{v}, v{v}, v{v} {p} row_mask:0xf bank_mask:0xf")
        swapadd(v, t, 16); swapadd(v, t, 32)
    def rbf(v):
        A(f"v_cvt_pk_bf16_f32 v{v}, v{v}, v{v}\nv_and_b32 v{v}, 0xffff0000, v{v}")
    def rbf2(a, b, A=A):
        A(f"v_cvt_pk_bf16_f32 v{b}, v{a}, v{b}\nv_lshlrev_b32 v{a}, 16, v{b}\nv_and_b32 v{b}, 0xffff0000, v{b}")
    def unpack(dst, src, n):
        for i in range(n):
            A(f"v_lshlrev_b32 v{dst+2*i}, 16, v{src+i}\nv_and_b32 v{dst+2*i+1}, 0xffff0000, v{src+i}")
    def ln_stats(f, n, mb, rd, t, red):
        A(f"v_add_f32 v{mb}, v{f}, v{f+1}\nv_add_f32 v{t+1}, v{f+2}, v{f+3}")
        for j in range(4, n, 2): A(f"v_add_f32 v{mb}, v{mb}, v{f+j}\nv_add_f32 v{t+1}, v{t+1}, v{f+j+1}")
        A(f"v_add_f32 v{mb}, v{mb}, v{t+1}")
        red(mb, t)
        A(f"v_mul_f32 v{mb}, 0x3b000000, v{mb}")
        A(f"v_sub_f32 v{t+1}, v{f}, v{mb}\nv_sub_f32 v{t+2}, v{f+1}, v{mb}\nv_mul_f32 v{rd}, v{t+1}, v{t+1}\nv_mul_f32 v{t}, v{t+2}, v{t+2}")
        for j in range(2, n, 2):
            A(f"v_sub_f32 v{t+1}, v{f+j}, v{mb}\nv_sub_f32 v{t+2}, v{f+j+1}, v{mb}\nv_fmac_f32 v{rd}, v{t+1}, v{t+1}\nv_fmac_f32 v{t}, v{t+2}, v{t+2}")
        A(f"v_add_f32 v{rd}, v{rd}, v{t}")
        red(rd, t)
        A(f"v_mul_f32 v{rd}, 0x3b000000, v{rd}")
        rbf2(mb, rd)
        A(f"v_add_f32 v{rd}, 0x3727c5ac, v{rd}")
        rbf(rd)
        A(f"v_sqrt_f32 v{rd}, v{rd}")
        rbf(rd)
        A(f"v_rcp_f32 v{rd}, v{rd}")
    def ln_apply(f, n, mb, rd, pack=None):
        for j in range(n): A(f"v_sub_f32 v{f+j}, v{f+j}, v{mb}")
        for j in range(0, n, 2): rbf2(f+j, f+j+1)
        for j in range(n): A(f"v_mul_f32 v{f+j}, v{f+j}, v{rd}")
        if pack is not None:
            for j in range(0, n, 2): A(f"v_cvt_pk_bf16_f32 v{pack+j//2}, v{f+j}, v{f+j+1}")
        else:
            for j in range(0, n, 2): rbf2(f+j, f+j+1)
    def masks(mk, t):
        A(f"""v_and_b32 v{t}, 1, v1
        v_lshlrev_b32 v{t}, 4, v{t}
        s_mov_b32 s39, 0xffff
        v_lshlrev_b32_e64 v{t}, v{t}, s39
        v_bfe_u32 v{t+1}, v1, 1, 2""")
        for kk in range(4):
            A(f"v_cmp_eq_u32 vcc, {kk}, v{t+1}\nv_cndmask_b32 v{mk+kk}, 0, v{t}, vcc")
    def stamp(i):
        if stamps: A(f"s_memrealtime s[{80+2*i}:{81+2*i}]")
    def write_stamps(base, n):
        if not stamps: return
        A("s_waitcnt lgkmcnt(0)")
        A("s_mov_b32 s76, s32\ns_mov_b32 s77, s33\ns_mov_b32 s78, 0x20000000\ns_mov_b32 s79, 0x20000")
        A(f"s_lshl_b32 s39, s2, 7\ns_add_u32 s39, s39, {0x10000000 + base*8}")
        A("s_mov_b64 exec, 1\nv_mov_b32 v20, 0")
        for i in range(n):
            A(f"v_mov_b32 v22, s{80+2*i}\nv_mov_b32 v23, s{81+2*i}\nbuffer_store_dwordx2 v[22:23], v20, s[76:79], s39 offen offset:{i*8}\ns_nop 1")
    def tags():
        A("s_add_u32 s4, s6, 1\ns_and_b32 s5, s4, 0xff")
    def check(d, n, a0, a1, grp):
        A(f"v_xor_b32 v{a0}, s5, v{d}\nv_xor_b32 v{a1}, s5, v{d+1}")
        for i in range(2, n):
            a = a0 if i % 2 == 0 else a1
            A(f"v_bitop3_b32 v{a}, v{d+i}, v{a}, s5 bitop3:0xde")
        A(f"v_or_b32 v{a0}, v{a0}, v{a1}\nv_and_b32 v{a0}, 0xff, v{a0}")
        for p in ("quad_perm:[1,0,3,2]", "quad_perm:[2,3,0,1]", "row_half_mirror")[:grp]:
            A(f"v_or_b32_dpp v{a0}, v{a0}, v{a0} {p} row_mask:0xf bank_mask:0xf")
        A(f"v_cmp_ne_u32 vcc, 0, v{a0}")
    lab = [0]
    def poll(loads, d, n, a0, a1, sleep, base_exec="-1", first_issued=False, mode=0, grp=3):
        if mode:
            if mode == 1:
                for l in loads: A(l)
            A("s_waitcnt vmcnt(0)")
            return
        lab[0] += 1
        L = f"L_pl{lab[0]}"
        A(f"s_mov_b32 s72, {POLL_LIMIT}")
        if not first_issued:
            for l in loads: A(l)
        A(f"{L}:")
        A("s_waitcnt vmcnt(0)")
        check(d, n, a0, a1, grp)
        A(f"s_cbranch_vccz {L}d")
        if sleep: A(f"s_sleep {sleep}")
        A("s_mov_b64 exec, vcc")
        for l in loads: A(l)
        A(f"s_mov_b64 exec, {base_exec}\ns_sub_u32 s72, s72, 1\ns_cbranch_scc0 {L}\ns_waitcnt vmcnt(0)")
        A(f"{L}d:")
    def strip(d, n):
        for i in range(n): A(f"v_and_b32 v{d+i}, 0xffffff00, v{d+i}")
    def tagv(dst, src, ff):
        A(f"v_add_u32 v{dst}, 0x80, v{src}\nv_bfi_b32 v{dst}, v{ff}, s5, v{dst}")

    A("""s_cmp_ge_u32 s2, 256
    s_cbranch_scc1 L_end""")
    stamp(0)
    A("""s_load_dwordx16 s[8:23], s[0:1], 0
    s_load_dwordx8 s[24:31], s[0:1], 64
    s_load_dwordx2 s[32:33], s[0:1], 96
    v_lshrrev_b32 v2, 6, v0
    v_and_b32 v1, 63, v0
    s_and_b32 s34, s2, 7
    v_readfirstlane_b32 s3, v2
    s_lshr_b32 s35, s2, 3
    s_bfe_u32 s36, s35, 0x20001
    s_lshl_b32 s39, s34, 2
    s_add_u32 s36, s36, s39          ; h
    s_lshr_b32 s37, s35, 3           ; b
    s_and_b32 s38, s35, 1            ; sp
    s_cmp_lt_u32 s3, 4
    s_cbranch_scc1 L_H""")

    T = 8
    Q = 24
    MK = 28
    S = 32
    AO = 40
    ACC = 48
    TMP = 52
    RB = 64
    if sprio: A(f"s_setprio {sprio}")
    A(f"""s_sub_u32 s56, s3, 4
    s_lshl_b32 s57, s37, 5
    s_add_u32 s57, s57, s36
    s_lshl_b32 s57, s57, 20
    s_lshl_b32 s58, s38, 19
    s_add_u32 s57, s57, s58
    s_lshl_b32 s58, s56, 10
    s_add_u32 s57, s57, s58
    s_mov_b32 s59, s57
    v_lshlrev_b32 v2, 4, v1
    s_waitcnt lgkmcnt(0)""")
    srd(40, 10, 0x8000000)
    st = dict(ii=0, ci=0, landed=0, cnt=0)
    def slot(i): return RB + 4 * (i % NS)
    def issue(kk=k):
        ii = st["ii"]
        if ii >= 256 or ii - st["ci"] >= NS: return False
        if ii - (kk - 1) > st["landed"]:
            A(f"s_waitcnt vmcnt({kk-1})"); st["landed"] = ii - (kk - 1)
        r = slot(ii)
        A(f"buffer_load_dwordx4 v[{r}:{r+3}], v2, s[{40 if ii < 128 else 48}:{43 if ii < 128 else 51}], s59 offen {kvflags}")
        if ii == 127: A("s_mov_b32 s59, s57")
        elif ii < 255: A("s_add_u32 s59, s59, 4096")
        st["ii"] += 1; st["cnt"] = 0
        return True
    def landed(i):
        if i >= st["landed"]:
            A(f"s_waitcnt vmcnt({st['ii'] - i - 1})"); st["landed"] = i + 1
    def consumed(i):
        st["ci"] = i + 1
        if i < k or st["ii"] - st["ci"] <= k + dt or i % 2 == 1: issue()
    def AH(text):
        for t in text.strip().split("\n"):
            A(t); st["cnt"] += 1
            if st["cnt"] >= gap: issue()
    for i in range(npro):
        issue(kp)
        if i == 3:
            A(f"s_load_dword s6, s[32:33], {W_EP}")
            srd(48, 12, 0x8000000)
            masks(MK, TMP)
            A(f"""s_mov_b32 s60, 0xaaaaaaaa
            s_mov_b32 s61, 0xaaaaaaaa
            s_mov_b32 s62, 0xcccccccc
            s_mov_b32 s63, 0xcccccccc
            s_mov_b32 s65, {SCALE:#x}
            s_mov_b32 s66, {LOG2E:#x}
            v_and_b32 v3, 15, v1
            v_lshlrev_b32 v3, 5, v3""")
    stamp(1)
    A("s_waitcnt lgkmcnt(0)\ns_barrier")
    stamp(2)
    QT = (T, T+8, S, S+8)
    for hw in range(4):
        d = QT[hw]
        A(f"ds_read_b128 v[{d}:{d+3}], v3 offset:{L_QP+hw*512}")
        A(f"ds_read_b128 v[{d+4}:{d+7}], v3 offset:{L_QP+hw*512+16}")
    A("s_waitcnt lgkmcnt(0)")
    for j in range(8):
        A(f"v_add_f32 v{T+j}, v{T+j}, v{T+8+j}\nv_add_f32 v{S+j}, v{S+j}, v{S+8+j}")
    for j in range(8):
        A(f"v_add_f32 v{T+j}, v{T+j}, v{S+j}")
    for j in range(4):
        A(f"v_cvt_pk_bf16_f32 v{Q+j}, v{T+2*j}, v{T+2*j+1}")
    for g in range(8):
        pend = None
        for c in range(16):
            i = 16 * g + c
            r = slot(i)
            landed(i)
            A(f"v_dot2_f32_bf16 v{T+c}, v{r}, v{Q}, 0")
            for kk in range(1, 4):
                A(f"v_dot2_f32_bf16 v{T+c}, v{r+kk}, v{Q+kk}, v{T+c}")
            if pend: A(pend)
            consumed(i)
            if c < 8: pend = f"v_add_f32_dpp v{T+c}, v{T+c}, v{T+c} row_ror:8 row_mask:0xf bank_mask:0x3"
            else:     pend = f"v_add_f32_dpp v{T+c-8}, v{T+c}, v{T+c} row_ror:8 row_mask:0xf bank_mask:0xc"
        A(pend)
        for i in range(4): A(f"v_add_f32_dpp v{T+i}, v{T+i}, v{T+i} row_half_mirror row_mask:0xf bank_mask:0x5")
        for i in range(4): A(f"v_add_f32_dpp v{T+i}, v{T+i+4}, v{T+i+4} row_half_mirror row_mask:0xf bank_mask:0xa")
        for i in range(4): A(f"v_add_f32_dpp v{T+i}, v{T+i}, v{T+i} quad_perm:[2,3,0,1] row_mask:0xf bank_mask:0xf")
        for i in range(2): A(f"v_cndmask_b32 v{T+i}, v{T+i}, v{T+i+2}, s[62:63]")
        for i in range(2): A(f"v_add_f32_dpp v{T+i}, v{T+i}, v{T+i} quad_perm:[1,0,3,2] row_mask:0xf bank_mask:0xf")
        A(f"v_cndmask_b32 v{S+g}, v{T}, v{T+1}, s[60:61]")
    stamp(3)
    st["cnt"] = 20
    for j in range(0, 8, 2): rbf2(S+j, S+j+1, AH)
    for j in range(8): AH(f"v_mul_f32 v{S+j}, s65, v{S+j}")
    for j in range(0, 8, 2): rbf2(S+j, S+j+1, AH)
    M = TMP + 2; Lr = TMP + 3; M2 = TMP + 4
    AH(f"""v_max3_f32 v{M}, v{S}, v{S+1}, v{S+2}
    v_max3_f32 v{M}, v{M}, v{S+3}, v{S+4}
    v_max3_f32 v{M}, v{M}, v{S+5}, v{S+6}
    v_max_f32 v{M}, v{M}, v{S+7}""")
    allred(M, TMP, "max_f32", AH)
    AH(f"v_mul_f32 v{M2}, s66, v{M}")
    for j in range(8): AH(f"v_fma_f32 v{S+j}, v{S+j}, s66, -v{M2}")
    for j in range(8): AH(f"v_exp_f32 v{S+j}, v{S+j}")
    AH(f"v_add_f32 v{Lr}, v{S}, v{S+1}")
    for j in range(2, 8): AH(f"v_add_f32 v{Lr}, v{Lr}, v{S+j}")
    for j in range(8): AH(f"v_cvt_pk_bf16_f32 v{S+j}, v{S+j}, v{S+j}")
    allred(Lr, TMP, "add_f32", AH)
    AH(f"""v_min_u32 v{Lr}, -2, v{Lr}
    s_lshl_b32 s39, s56, 3
    v_mov_b32 v{TMP}, s39
    ds_write_b64 v{TMP}, v[{M}:{Lr}] offset:{L_ML}""")
    AH(f"""v_and_b32 v3, 15, v1
    v_lshlrev_b32 v3, 4, v3
    v_lshrrev_b32 v4, 4, v1
    v_lshl_add_u32 v3, v4, 3, v3
    s_lshl_b32 s39, s56, 8
    v_add_u32 v3, s39, v3""")
    def aprep(i):
        g, c = divmod(i, 16)
        for kk in range(4):
            A(f"v_and_b32_dpp v{AO+4*(i%2)+kk}, v{S+g}, v{MK+kk} row_newbcast:{c} row_mask:0xf bank_mask:0xf")
    aprep(0)
    for i in range(128):
        r = slot(128 + i); a = AO + 4 * (i % 2)
        landed(128 + i)
        A(f"v_mfma_f32_16x16x32_bf16 v[{ACC}:{ACC+3}], v[{a}:{a+3}], v[{r}:{r+3}], {'0' if i == 0 else f'v[{ACC}:{ACC+3}]'}")
        if i < 127: aprep(i + 1)
        consumed(128 + i)
    stamp(4)
    A(f"""v_cvt_pk_bf16_f32 v{TMP}, v{ACC}, v{ACC+1}
    v_cvt_pk_bf16_f32 v{TMP+1}, v{ACC+2}, v{ACC+3}
    s_mov_b32 exec_hi, 0
    ds_write_b64 v3, v[{TMP}:{TMP+1}] offset:{L_O}
    s_mov_b64 exec, -1
    s_waitcnt lgkmcnt(0)
    s_barrier
    s_cmp_lg_u32 s56, 0
    s_cbranch_scc1 L_end""")
    stamp(5); stamp(6)
    A(f"""s_and_b32 s39, s35, 6
    s_cmp_lg_u32 s39, 0
    s_cbranch_scc1 L_fend""")
    U = 8
    srdws()
    tags()
    A(f"""s_lshl_b32 s67, s34, 1
    s_add_u32 s67, s67, s38          ; cq
    s_lshl_b32 s70, s37, 17
    s_lshl_b32 s39, s67, 7
    s_add_u32 s70, s70, s39
    s_add_u32 s70, s70, {W_U}
    v_lshrrev_b32 v3, 3, v1
    v_lshlrev_b32 v3, 11, v3
    v_and_b32 v4, 7, v1
    v_lshl_add_u32 v3, v4, 4, v3""")
    for t in range(1, 8): A(f"s_add_u32 s{56+t}, s70, {t*16384}")
    uloads = [f"buffer_load_dwordx4 v[{U+4*t}:{U+4*t+3}], v3, s[44:47], s{70 if t == 0 else 56+t} offen sc1" for t in range(8)]
    for l in uloads: A(l)
    A(f"""v_lshlrev_b32 v5, 5, v4
    ds_read_b128 v[44:47], v5 offset:{L_G}
    ds_read_b128 v[48:51], v5 offset:{L_G+16}
    v_lshlrev_b32 v4, 3, v4
    s_lshl_b32 s71, s37, 10
    s_lshl_b32 s39, s67, 6
    s_add_u32 s71, s71, s39""")
    srd(48, 28, 4096)
    poll(uloads, U, 32, 40, 41, fsleep, first_issued=True, mode=2 if "F" in abl else 0)
    stamp(6)
    strip(U, 32)
    for s_ in (16, 8, 4):
        for i in range(s_): A(f"v_add_f32 v{U+i}, v{U+i}, v{U+s_+i}")
    for i in range(4): A(f"v_add_f32_dpp v{U+i}, v{U+i}, v{U+i} row_ror:8 row_mask:0xf bank_mask:0xf")
    for sw in (16, 32):
        for i in range(4): A(f"v_mov_b32 v{U+4+i}, v{U+i}")
        for i in range(4): A(f"v_permlane{sw}_swap_b32 v{U+i}, v{U+4+i}")
        for i in range(4): A(f"v_add_f32 v{U+i}, v{U+i}, v{U+4+i}")
    A("s_waitcnt lgkmcnt(0)")
    rbf2(U, U+1); rbf2(U+2, U+3)
    for i in range(4): A(f"v_mul_f32 v{U+i}, v{U+i}, v{44+i}")
    rbf2(U, U+1); rbf2(U+2, U+3)
    for i in range(4): A(f"v_add_f32 v{U+i}, v{U+i}, v{48+i}")
    A(f"""v_cvt_pk_bf16_f32 v{U}, v{U}, v{U+1}
    v_cvt_pk_bf16_f32 v{U+1}, v{U+2}, v{U+3}
    s_mov_b64 exec, 0xff
    buffer_store_dwordx2 v[{U}:{U+1}], v4, s[48:51], s71 offen""")
    A("L_fend:")
    stamp(7)
    write_stamps(0, 8)
    A("s_endpgm")

    W = 128
    XR = 8
    MB = 24; RD = 25; TT = 26
    FF = 29
    BI = 30
    HMK = 32
    SEL = 36
    HA = 44
    HACC = 52
    PUB = 68
    F = 72
    AP = 104
    A("L_H:")
    if hprio: A(f"s_setprio {hprio}")
    A(f"""v_lshlrev_b32 v2, 4, v1             ; lane*16
    v_and_b32 v3, 15, v1                  ; n / m
    v_lshrrev_b32 v4, 4, v1               ; g
    v_lshlrev_b32 v7, 18, v4
    v_lshl_add_u32 v7, v3, 4, v7
    s_lshl_b32 s58, s37, 10
    s_lshl_b32 s60, s3, 20
    s_lshl_b32 s39, s36, 8
    s_add_u32 s60, s60, s39
    s_waitcnt lgkmcnt(0)""")
    srd(40, 8, 4096)
    srd(48, 14, 0 if "q" in abl else 0x400000)
    A(f"buffer_load_dwordx4 v[{XR}:{XR+3}], v2, s[40:43], s58 offen")
    def qissue(i):
        A(f"buffer_load_dwordx4 v[{W+4*i}:{W+4*i+3}], v7, s[48:51], s60 offen {wflags}")
        if i < 31: A(f"s_add_u32 s60, s60, 0x2000")
    for i in range(kq): qissue(i)
    A(f"s_load_dword s6, s[32:33], {W_EP}")
    srdws()
    masks(HMK, TT)
    A(f"""v_mov_b32 v{FF}, 0xff
    v_mov_b32 v{TT}, 0x0c0c0c0c
    s_mov_b32 s64, 0x01000100
    s_mov_b32 s65, 0x03020302""")
    for par in range(2):
        for kk in range(4): A(f"v_bfi_b32 v{SEL+4*par+kk}, v{HMK+kk}, s{64+par}, v{TT}")
    A(f"""v_mov_b32 v{TT}, -1
    v_lshlrev_b32 v6, 2, v1
    s_mov_b64 exec, 0xff
    ds_write_b32 v6, v{TT} offset:{L_ML}
    s_mov_b64 exec, -1
    s_lshl_b32 s39, s3, 8
    v_lshlrev_b32 v5, 6, v4
    v_add_u32 v5, s39, v5
    s_lshl_b32 s39, s3, 9
    v_lshlrev_b32 v6, 5, v3
    v_lshl_add_u32 v6, v4, 4, v6
    v_add_u32 v6, s39, v6
    s_waitcnt vmcnt({kq})""")
    unpack(F, XR, 4)
    ln_stats(F, 8, MB, RD, TT, allred)
    ln_apply(F, 8, MB, RD, pack=XR)
    A(f"ds_write_b128 v2, v[{XR}:{XR+3}] offset:{L_X}\ns_waitcnt lgkmcnt(0)")
    for t in range(4): A(f"ds_read_b128 v[{XR+4*t}:{XR+4*t+3}], v5 offset:{L_X+16*t}")
    tags()
    A("s_waitcnt lgkmcnt(0)")
    for i in range(32):
        a = HA + 4 * (i % 2)
        for kk in range(4): A(f"v_perm_b32 v{a+kk}, v{XR+i//2}, v{XR+i//2}, v{SEL+4*(i%2)+kk}")
        A(f"s_waitcnt vmcnt({min(32, i+kq) - i - 1})")
        if i + kq < 32: qissue(i + kq)
        A(f"v_mfma_f32_16x16x32_bf16 v[{HACC}:{HACC+3}], v[{a}:{a+3}], v[{W+4*i}:{W+4*i+3}], {'0' if i == 0 else f'v[{HACC}:{HACC+3}]'}")
    A(f"""s_mov_b32 exec_hi, 0
    ds_write_b128 v6, v[{HACC}:{HACC+3}] offset:{L_QP}
    s_mov_b64 exec, -1
    s_waitcnt lgkmcnt(0)""")
    stamp(1)
    A("s_barrier")
    stamp(2)
    def tissue():
        A(f"buffer_load_dwordx4 v7, s[48:51], s60 offen {mflags} lds\ns_add_u32 s60, s60, s61\ns_add_u32 m0, m0, 0x400")
    def tloop(n, nm):
        A(f"s_mov_b32 s64, {n}")
        A(f"L_{nm}:")
        A(f"s_waitcnt vmcnt({km-1})")
        tissue()
        A(f"s_sub_u32 s64, s64, 1\ns_cmp_lg_u32 s64, 0\ns_cbranch_scc1 L_{nm}")
    def ngemv(nks):
        A(f"v_lshlrev_b32 v7, 3, v3\nv_lshl_add_u32 v7, v4, 8, v7")
        for ks in range(nks):
            r = W + 4 * ks
            A(f"ds_read_b64_tr_b16 v[{r}:{r+1}], v7 offset:{L_T+ks*1024}")
            A(f"ds_read_b64_tr_b16 v[{r+2}:{r+3}], v7 offset:{L_T+ks*1024+128}")
        A("s_waitcnt lgkmcnt(0)")
        for ks in range(nks):
            r = W + 4 * ks; d = HACC + 4 * (ks % 4); a = AP + 4 * (ks // 4)
            A(f"v_mfma_f32_16x16x32_bf16 v[{d}:{d+3}], v[{a}:{a+3}], v[{r}:{r+3}], {'0' if ks < 4 else f'v[{d}:{d+3}]'}")
        for q in range(1, 4):
            for r in range(4):
                A(f"v_mov_b32_dpp v{HACC+r}, v{HACC+4*q+r} quad_perm:[0,1,2,3] row_mask:{1<<q:#x} bank_mask:0xf")
        A(f"""v_permlane32_swap_b32 v{HACC}, v{HACC+2}
        v_permlane32_swap_b32 v{HACC+1}, v{HACC+3}
        v_add_f32 v{HACC}, v{HACC}, v{HACC+2}
        v_add_f32 v{HACC+1}, v{HACC+1}, v{HACC+3}
        v_permlane16_swap_b32 v{HACC}, v{HACC+1}
        v_add_f32 v{HACC}, v{HACC}, v{HACC+1}""")
    A(f"""s_cmp_lg_u32 s3, 0
    s_cbranch_scc1 L_wo""")
    if "A" in abl: A("s_branch L_wo")
    A(f"""s_mov_b32 m0, {L_T}
    s_and_b32 s62, s35, 3                 ; sub
    s_lshr_b32 s63, s35, 2
    v_lshrrev_b32 v5, 1, v1
    v_and_b32 v6, 1, v1
    s_cmp_ge_u32 s35, 16
    s_cbranch_scc1 L_m2a
    s_lshl_b32 s63, s63, 3
    s_add_u32 s63, s63, s34
    s_cmp_ge_u32 s63, 28
    s_cbranch_scc1 L_wo
    s_lshl_b32 s63, s63, 2
    s_add_u32 s63, s63, s62
    s_lshl_b32 s60, s63, 5
    s_mov_b32 s61, {32*3584}
    s_mov_b32 s39, 3584
    v_mul_lo_u32 v7, v5, s39
    v_lshl_add_u32 v7, v6, 4, v7
    v_and_b32 v5, 3, v1
    v_lshlrev_b32 v5, 10, v5
    v_bfe_u32 v6, v1, 2, 2
    v_lshl_add_u32 v5, v6, 6, v5
    v_lshl_add_u32 v5, v4, 4, v5
    v_lshlrev_b32 v6, 1, v3""")
    srd(48, 20, 0 if "1" in abl else 512*1792*2)
    srd(68, 22, 1792*2)
    for t in range(4): A(f"buffer_load_dwordx4 v[{XR+4*t}:{XR+4*t+3}], v5, s[40:43], 0 offen offset:{t*256}")
    A(f"buffer_load_ushort v{BI}, v6, s[68:71], s60 offen")
    for i in range(km): tissue()
    A(f"s_waitcnt vmcnt({km})")
    unpack(F, XR, 16)
    ln_stats(F, 32, MB, RD, TT, red16x)
    ln_apply(F, 32, MB, RD)
    A(f"s_waitcnt vmcnt(0)")
    for i in range(km): tissue()
    ln_stats(F, 32, MB, RD, TT, red16x)
    ln_apply(F, 32, MB, RD, pack=AP)
    tloop(16 - 2*km, "t1")
    A(f"""s_mul_i32 s63, s63, {BS}
    s_add_u32 s63, s63, {W_H}
    v_lshlrev_b32 v{BI}, 16, v{BI}
    v_lshlrev_b32 v6, 2, v1
    s_waitcnt vmcnt(0)""")
    ngemv(16)
    rbf(HACC)
    A(f"v_add_f32 v{HACC}, v{HACC}, v{BI}")
    rbf(HACC)
    c1 = -2.0 * 1.4426950408889634 * 0.7978845608028654
    x = HACC; t = TT
    A(f"""v_mul_f32 v{t}, v{x}, v{x}
    v_mul_f32 v{t}, {f2u(0.044715):#x}, v{t}
    v_add_f32 v{t}, 1.0, v{t}
    v_mul_f32 v{t}, v{t}, v{x}
    v_mul_f32 v{t}, {f2u(c1):#x}, v{t}
    v_exp_f32 v{t}, v{t}
    v_add_f32 v{t}, 1.0, v{t}
    v_rcp_f32 v{t}, v{t}
    v_mul_f32 v{x}, v{x}, v{t}""")
    rbf(HACC)
    A(f"v_or_b32 v{PUB}, s5, v{HACC}")
    if "S" not in abl: A(f"buffer_store_dword v{PUB}, v6, s[44:47], s63 offen sc1")
    A("s_branch L_wo")
    A("L_m2a:")
    srd(48, 24, 0 if "2" in abl else 1792*1024)
    A(f"""s_and_b32 s63, s63, 3                 ; ks2
    s_lshl_b32 s39, s34, 2
    s_add_u32 s62, s62, s39               ; cb2
    s_mul_i32 s60, s63, {448*1024}
    s_lshl_b32 s39, s62, 5
    s_add_u32 s60, s60, s39
    s_mov_b32 s61, 0x8000
    v_lshlrev_b32 v7, 10, v5
    v_lshl_add_u32 v7, v6, 4, v7""")
    tloop(14, "t2")
    A("L_wo:")
    srd(48, 16, 0 if "o" in abl else 0x400000)
    A(f"""v_lshlrev_b32 v7, 10, v4
    v_lshl_add_u32 v7, v3, 4, v7
    s_lshl_b32 s60, s36, 17
    s_lshl_b32 s39, s3, 8
    s_add_u32 s60, s60, s39
    s_lshl_b32 s67, s3, 15
    s_add_u32 s67, s67, {L_WO}
    s_mov_b32 m0, s67
    s_mov_b32 s64, 32""")
    if "w" in abl: A("s_branch L_wo2")
    A("L_wo1:")
    A(f"""s_waitcnt vmcnt({kw-1})
    buffer_load_dwordx4 v7, s[48:51], s60 offen {woflags} lds
    s_add_u32 s60, s60, 0x1000
    s_add_u32 m0, m0, 0x400
    s_sub_u32 s64, s64, 1
    s_cmp_lg_u32 s64, 0
    s_cbranch_scc1 L_wo1""")
    A("L_wo2:")
    stamp(3)
    A(f"""s_cmp_lg_u32 s3, 0
    s_cbranch_scc1 L_tr
    s_cmp_lt_u32 s35, 16
    s_cbranch_scc1 L_tr""")
    if "A" in abl: A("s_branch L_tr")
    A(f"""s_mul_i32 s56, s63, {28*BS}
    s_add_u32 s56, s56, {W_H}
    s_add_u32 s57, s56, {8*BS}
    s_add_u32 s58, s56, {16*BS}
    s_add_u32 s59, s56, {24*BS}
    s_mov_b32 s39, {BS}
    v_and_b32 v7, 3, v1
    v_lshlrev_b32 v7, 6, v7
    v_and_b32 v{TT}, 1, v4
    v_lshl_add_u32 v7, v{TT}, 5, v7      ; b*64 + (g&1)*32
    v_lshrrev_b32 v{TT}, 1, v4
    v_bfe_u32 v5, v1, 2, 2
    v_bfe_u32 v6, v1, 2, 1
    v_lshl_add_u32 v5, v5, 1, v{TT}
    v_lshl_add_u32 v6, v6, 1, v{TT}
    v_mad_u32_u24 v5, v5, s39, v7
    v_mad_u32_u24 v6, v6, s39, v7""")
    hloads = [f"buffer_load_dwordx4 v[{F+4*t}:{F+4*t+3}], v{5 if t < 6 else 6}, s[44:47], s{56+t//2} offen offset:{16*(t%2)} sc1" for t in range(8)]
    poll(hloads, F, 32, TT, TT+1, 32, mode=2 if "L" in abl else 1 if "S" in abl else 0, grp=0)
    A(f"""s_mov_b32 s64, 0x07060302
    s_lshl_b32 s63, s63, 5
    s_add_u32 s63, s63, s62
    s_mul_i32 s63, s63, {BS}
    s_add_u32 s63, s63, {W_G}
    v_lshlrev_b32 v6, 2, v1""")
    for p in range(16): A(f"v_perm_b32 v{AP+p}, v{F+2*p+1}, v{F+2*p}, s64")
    ngemv(14)
    tagv(PUB, HACC, FF)
    if "S" not in abl: A(f"buffer_store_dword v{PUB}, v6, s[44:47], s63 offen sc1")
    A("L_tr:")
    stamp(4)
    A(f"""v_lshlrev_b32 v7, 11, v4
    v_bfe_u32 v{TT}, v1, 2, 2
    v_lshl_add_u32 v7, v{TT}, 8, v7
    v_and_b32 v{TT}, 3, v1
    v_lshl_add_u32 v7, v{TT}, 3, v7
    v_add_u32 v7, s67, v7
    s_waitcnt vmcnt(0)""")
    for cb in range(8):
        for ks in range(4):
            r = W + 4 * (cb * 4 + ks)
            off = ks * 32 * 256 + cb * 32
            A(f"ds_read_b64_tr_b16 v[{r}:{r+1}], v7 offset:{off}")
            A(f"ds_read_b64_tr_b16 v[{r+2}:{r+3}], v7 offset:{off+1024}")
    A(f"""s_cmp_lt_u32 s3, 2
    s_cbranch_scc1 L_n1
    s_cmp_eq_u32 s3, 2
    s_cbranch_scc1 L_h2
    s_cmp_lg_u32 s2, 255
    s_cbranch_scc1 L_n1""")
    def mlwait(nm):
        A(f"""v_lshlrev_b32 v6, 3, v1
        s_mov_b64 exec, 0xf
        s_mov_b32 s72, {POLL_LIMIT}""")
        A(f"L_{nm}:")
        A(f"""ds_read_b64 v[{XR}:{XR+1}], v6 offset:{L_ML}
        s_waitcnt lgkmcnt(0)
        v_cmp_eq_u32 vcc, -1, v{XR+1}
        s_cbranch_vccz L_{nm}d
        s_sleep 8
        s_sub_u32 s72, s72, 1
        s_cbranch_scc0 L_{nm}""")
        A(f"L_{nm}d:")
    if "e" in abl or "m" in abl: A("s_branch L_n1")
    mlwait("ew")
    A(f"""s_mov_b64 exec, -1
    s_mov_b32 s39, {MLS}
    v_lshrrev_b32 v5, 1, v1
    v_and_b32 v6, 1, v1
    v_lshlrev_b32 v6, 5, v6
    v_mad_u32_u24 v5, v5, s39, v6""")
    for t in range(4): A(f"s_mov_b32 s{56+t}, {W_ML + t*32*MLS}")
    eloads = [f"buffer_load_dwordx4 v[{F+4*t}:{F+4*t+3}], v5, s[44:47], s{56+t} offen sc1" for t in range(4)]
    poll(eloads, F, 16, TT, TT+1, esleep, grp=0)
    A(f"""v_mov_b32 v{PUB}, s4
    s_mov_b64 exec, 1
    buffer_store_dword v{PUB}, off, s[44:47], 0 offset:{W_EP} sc1
    s_mov_b64 exec, -1
    s_branch L_n1""")
    A("L_h2:")
    if "m" in abl: A("s_branch L_ml2")
    A(f"""s_lshl_b32 s63, s37, 5
    s_add_u32 s63, s63, s36
    s_mul_i32 s63, s63, {MLS}
    s_add_u32 s63, s63, {W_ML}
    s_lshl_b32 s39, s38, 5
    s_add_u32 s66, s63, s39""")
    mlwait("mw")
    A(f"""v_bfi_b32 v{PUB}, v{FF}, s5, v{XR}
    v_bfi_b32 v{PUB+1}, v{FF}, s5, v{XR+1}
    buffer_store_dwordx2 v[{PUB}:{PUB+1}], v6, s[44:47], s66 offen sc1
    s_mov_b64 exec, 0xff""")
    poll([f"buffer_load_dwordx2 v[{XR}:{XR+1}], v6, s[44:47], s63 offen sc1"], XR, 2, TT, TT+1, 16, base_exec="0xff")
    strip(XR, 2)
    A(f"""v_max_f32_dpp v{TT}, v{XR}, v{XR} quad_perm:[1,0,3,2] row_mask:0xf bank_mask:0xf
    v_max_f32_dpp v{TT}, v{TT}, v{TT} quad_perm:[2,3,0,1] row_mask:0xf bank_mask:0xf
    v_max_f32_dpp v{TT}, v{TT}, v{TT} row_half_mirror row_mask:0xf bank_mask:0xf
    v_sub_f32 v{XR}, v{XR}, v{TT}
    v_mul_f32 v{XR}, {LOG2E:#x}, v{XR}
    v_exp_f32 v{XR}, v{XR}
    v_mul_f32 v{TT}, v{XR}, v{XR+1}
    v_add_f32_dpp v{TT}, v{TT}, v{TT} quad_perm:[1,0,3,2] row_mask:0xf bank_mask:0xf
    v_add_f32_dpp v{TT}, v{TT}, v{TT} quad_perm:[2,3,0,1] row_mask:0xf bank_mask:0xf
    v_add_f32_dpp v{TT}, v{TT}, v{TT} row_half_mirror row_mask:0xf bank_mask:0xf
    v_rcp_f32 v{TT}, v{TT}
    v_mul_f32 v{XR}, v{XR}, v{TT}
    v_and_b32 v6, 3, v1
    v_lshlrev_b32 v6, 2, v6
    s_lshl_b32 s39, s38, 2
    s_lshl_b32 s64, 0xf, s39
    s_mov_b32 s65, 0
    s_mov_b64 exec, s[64:65]
    ds_write_b32 v6, v{XR} offset:{L_C}
    s_mov_b64 exec, -1""")
    A("L_ml2:")
    stamp(5)
    if "g" in abl or "A" in abl: A("s_branch L_n1")
    A(f"""s_and_b32 s39, s35, 6
    s_cmp_lg_u32 s39, 0
    s_cbranch_scc1 L_n1""")
    srd(68, 26, 1024)
    G = F
    A(f"""s_lshl_b32 s67, s34, 1
    s_add_u32 s67, s67, s38          ; cq
    s_lshl_b32 s58, s67, 6
    s_lshl_b32 s39, s37, 10
    s_add_u32 s59, s58, s39
    s_mul_i32 s60, s67, {2*BS}
    s_lshl_b32 s39, s37, 6
    s_add_u32 s60, s60, s39
    s_add_u32 s60, s60, {W_G}
    v_and_b32 v6, 7, v1
    v_lshlrev_b32 v5, 3, v6
    buffer_load_dwordx2 v[{XR}:{XR+1}], v5, s[68:71], s58 offen
    buffer_load_dwordx2 v[{XR+2}:{XR+3}], v5, s[40:43], s59 offen
    v_bfe_u32 v7, v1, 3, 2
    v_lshlrev_b32 v7, 5, v7
    v_bfe_u32 v5, v1, 2, 1
    v_add_u32 v7, v7, v5
    v_and_b32 v5, 3, v1
    v_lshlrev_b32 v5, 4, v5
    s_mov_b32 s39, {BS}
    v_mad_u32_u24 v7, v7, s39, v5""")
    gloads = [f"buffer_load_dwordx4 v[{G}:{G+3}], v7, s[44:47], s60 offen sc1"]
    poll(gloads, G, 4, TT, TT+1, gsleep, mode=2 if "L" in abl else 1 if "S" in abl else 0, grp=2)
    strip(G, 4)
    for i in range(4): A(f"v_add_f32_dpp v{G+i}, v{G+i}, v{G+i} row_ror:8 row_mask:0xf bank_mask:0xf")
    for i in range(4): swapadd(G+i, G+4+i, 16)
    rbf2(G, G+1); rbf2(G+2, G+3)
    unpack(G+4, XR, 2)
    for i in range(4): A(f"v_add_f32 v{G+i}, v{G+i}, v{G+4+i}")
    rbf2(G, G+1); rbf2(G+2, G+3)
    for r in range(4):
        A(f"""v_mul_f32 v{TT}, {LOG2E ^ 0x80000000:#x}, v{G+r}
        v_exp_f32 v{TT}, v{TT}
        v_add_f32 v{TT}, 1.0, v{TT}
        v_rcp_f32 v{TT}, v{TT}
        v_mul_f32 v{G+r}, v{G+r}, v{TT}""")
    rbf2(G, G+1); rbf2(G+2, G+3)
    unpack(G+4, XR+2, 2)
    A(f"""v_lshlrev_b32 v6, 5, v6
    ds_write_b128 v6, v[{G}:{G+3}] offset:{L_G}
    ds_write_b128 v6, v[{G+4}:{G+7}] offset:{L_G+16}""")
    A("L_n1:")
    OA = 72
    CC = 88
    DD = 92
    UU = 44
    A(f"""v_and_b32 v6, 3, v1
    v_lshlrev_b32 v6, 8, v6
    v_lshl_add_u32 v6, v4, 4, v6
    v_mov_b32 v5, 0
    v_lshlrev_b32 v7, 2, v1
    s_lshl_b32 s59, s37, 17
    s_lshl_b32 s39, s36, 12
    s_add_u32 s59, s59, s39
    s_lshl_b32 s39, s38, 11
    s_add_u32 s59, s59, s39
    s_lshl_b32 s39, s3, 9
    s_add_u32 s59, s59, s39
    s_add_u32 s59, s59, {W_U}
    s_waitcnt lgkmcnt(0)""")
    stamp(6)
    A("s_barrier")
    for ks in range(4):
        A(f"ds_read_b128 v[{OA+4*ks}:{OA+4*ks+3}], v6 offset:{L_O+ks*64}")
    A(f"ds_read_b128 v[{CC}:{CC+3}], v5 offset:{L_C}")
    for ks in range(4):
        A(f"s_waitcnt lgkmcnt({4-ks})")
        for cb in range(8):
            r = W + 4 * (cb * 4 + ks)
            d = DD + 4 * cb
            A(f"v_mfma_f32_16x16x32_bf16 v[{d}:{d+3}], v[{OA+4*ks}:{OA+4*ks+3}], v[{r}:{r+3}], {'0' if ks == 0 else f'v[{d}:{d+3}]'}")
    A("s_waitcnt lgkmcnt(0)")
    for r in range(4):
        for cb in range(8):
            A(f"v_{'mul' if r == 0 else 'fmac'}_f32_dpp v{UU+cb//4+2*(cb%4)}, v{DD+4*cb+r}, v{CC+r} quad_perm:[0,1,2,3] row_mask:{1<<(cb%4):#x} bank_mask:0xf")
    for j in range(2):
        for gq in range(1, 4):
            A(f"v_mov_b32_dpp v{UU+j}, v{UU+j+2*gq} quad_perm:[0,1,2,3] row_mask:{1<<gq:#x} bank_mask:0xf")
    tagv(PUB, UU, FF); tagv(PUB+1, UU+1, FF)
    if "U" not in abl: A(f"""buffer_store_dword v{PUB}, v7, s[44:47], s59 offen sc1
    buffer_store_dword v{PUB+1}, v7, s[44:47], s59 offen offset:256 sc1""")
    if stamps:
        stamp(7)
        A(f"s_cmp_lg_u32 s3, {hst}\ns_cbranch_scc1 L_end")
        write_stamps(8, 8)
    A("L_end:")
    A("s_endpgm")
    E.raw(f""".section .rodata,"a"
.p2align 6
.amdhsa_kernel {KN}
  .amdhsa_next_free_vgpr 256
  .amdhsa_next_free_sgpr 102
  .amdhsa_accum_offset 256
  .amdhsa_group_segment_fixed_size 0
  .amdhsa_kernarg_size 104
  .amdhsa_user_sgpr_count 2
  .amdhsa_user_sgpr_kernarg_segment_ptr 1
  .amdhsa_system_sgpr_workgroup_id_x 1
  .amdhsa_float_denorm_mode_32 3
.end_amdhsa_kernel""")
    return E.text()

if __name__ == "__main__":
    kw_ = {}
    out = sys.argv[1]
    for a in sys.argv[2:]:
        kk, v = a.split("=")
        kw_[kk] = int(v) if (v.lstrip("-").isdigit() and kk != "abl") else v.replace("+", " ")
    open(out, "w").write(gen(**kw_))
```

```python
import sys, struct
from emit import Emit
KN = "recurrent_scan__mha_block_cached__mixer_channel_mlp__decode_kernel"
HEADER = open("recurrent_scan__mha_block_cached__mixer_channel_mlp__decode.s.ref").read().split("; Override launch")[0]

L_QP = 0x000
L_O  = 0x800
L_ML = 0xC00
L_C  = 0xC40
L_G  = 0xC80
L_X  = 0x1000
L_T  = 0x1400
L_WO = 0x5400
LDS_BYTES = L_WO + 4 * 32768
W_EP = 0x0
W_H  = 0x10000
W_G  = 0x90000
W_ML = 0x120000
W_U  = 0x1B0000
W_END = 0x230000
MLS = 4224
LOG2E = 0x3fb8aa3b
SCALE = 0x3db504f3
POLL_LIMIT = 0x20000
def f2u(x): return struct.unpack("<I", struct.pack("<f", x))[0]

def gen(k=6, kp=6, NS=48, npro=48, dt=2, kq=5, kw=2, km=2, kvflags="nt", wflags="nt", woflags="nt", mflags="nt", stamps=0, hst=2, abl="",
        sprio=3, hprio=0, fsleep=2, BS=4352, gsleep=32, gap=40, esleep=64, qx=0, wx=0, mx=0, gs=5, hs=7, is_=0, hx=0, hq=0, hk=0):
    E = Emit()
    A = E
    E.raw(HEADER.rstrip())
    E.raw(f"; @launch grid=(256,1,1) block=(512,1,1) lds={LDS_BYTES}")
    E.raw('.amdgcn_target "amdgcn-amd-amdhsa--gfx950"\n.text')
    E.raw(f".globl {KN}\n.p2align 8\n.type {KN},@function\n{KN}:")

    def srd(r, lo, size):
        A(f"s_mov_b32 s{r}, s{lo}\ns_mov_b32 s{r+1}, s{lo+1}\ns_mov_b32 s{r+2}, {size:#x}\ns_mov_b32 s{r+3}, 0x20000")
    def srdws(): srd(44, 32, W_END)
    def swapadd(v, t, sw, op="add_f32", A=A):
        A(f"v_mov_b32 v{t}, v{v}\nv_permlane{sw}_swap_b32 v{v}, v{t}\nv_{op} v{v}, v{v}, v{t}")
    def allred(v, t, op="add_f32", A=A):
        for kk in (8, 4, 2, 1):
            A(f"v_{op}_dpp v{v}, v{v}, v{v} row_ror:{kk} row_mask:0xf bank_mask:0xf")
        swapadd(v, t, 16, op, A); swapadd(v, t, 32, op, A)
    def red16x(v, t):
        for p in ("row_ror:4", "row_ror:8"):
            A(f"v_add_f32_dpp v{v}, v{v}, v{v} {p} row_mask:0xf bank_mask:0xf")
        swapadd(v, t, 16); swapadd(v, t, 32)
    def rbf(v):
        A(f"v_cvt_pk_bf16_f32 v{v}, v{v}, v{v}\nv_and_b32 v{v}, 0xffff0000, v{v}")
    def rbf2(a, b, A=A):
        A(f"v_cvt_pk_bf16_f32 v{b}, v{a}, v{b}\nv_lshlrev_b32 v{a}, 16, v{b}\nv_and_b32 v{b}, 0xffff0000, v{b}")
    def unpack(dst, src, n):
        for i in range(n):
            A(f"v_lshlrev_b32 v{dst+2*i}, 16, v{src+i}\nv_and_b32 v{dst+2*i+1}, 0xffff0000, v{src+i}")
    def ln_stats(f, n, mb, rd, t, red):
        A(f"v_add_f32 v{mb}, v{f}, v{f+1}\nv_add_f32 v{t+1}, v{f+2}, v{f+3}")
        for j in range(4, n, 2): A(f"v_add_f32 v{mb}, v{mb}, v{f+j}\nv_add_f32 v{t+1}, v{t+1}, v{f+j+1}")
        A(f"v_add_f32 v{mb}, v{mb}, v{t+1}")
        red(mb, t)
        A(f"v_mul_f32 v{mb}, 0x3b000000, v{mb}")
        A(f"v_sub_f32 v{t+1}, v{f}, v{mb}\nv_sub_f32 v{t+2}, v{f+1}, v{mb}\nv_mul_f32 v{rd}, v{t+1}, v{t+1}\nv_mul_f32 v{t}, v{t+2}, v{t+2}")
        for j in range(2, n, 2):
            A(f"v_sub_f32 v{t+1}, v{f+j}, v{mb}\nv_sub_f32 v{t+2}, v{f+j+1}, v{mb}\nv_fmac_f32 v{rd}, v{t+1}, v{t+1}\nv_fmac_f32 v{t}, v{t+2}, v{t+2}")
        A(f"v_add_f32 v{rd}, v{rd}, v{t}")
        red(rd, t)
        A(f"v_mul_f32 v{rd}, 0x3b000000, v{rd}")
        rbf2(mb, rd)
        A(f"v_add_f32 v{rd}, 0x3727c5ac, v{rd}")
        rbf(rd)
        A(f"v_sqrt_f32 v{rd}, v{rd}")
        rbf(rd)
        A(f"v_rcp_f32 v{rd}, v{rd}")
    def ln_apply(f, n, mb, rd, pack=None):
        for j in range(n): A(f"v_sub_f32 v{f+j}, v{f+j}, v{mb}")
        for j in range(0, n, 2): rbf2(f+j, f+j+1)
        for j in range(n): A(f"v_mul_f32 v{f+j}, v{f+j}, v{rd}")
        if pack is not None:
            for j in range(0, n, 2): A(f"v_cvt_pk_bf16_f32 v{pack+j//2}, v{f+j}, v{f+j+1}")
        else:
            for j in range(0, n, 2): rbf2(f+j, f+j+1)
    def masks(mk, t):
        A(f"""v_and_b32 v{t}, 1, v1
        v_lshlrev_b32 v{t}, 4, v{t}
        s_mov_b32 s39, 0xffff
        v_lshlrev_b32_e64 v{t}, v{t}, s39
        v_bfe_u32 v{t+1}, v1, 1, 2""")
        for kk in range(4):
            A(f"v_cmp_eq_u32 vcc, {kk}, v{t+1}\nv_cndmask_b32 v{mk+kk}, 0, v{t}, vcc")
    def stamp(i):
        if stamps: A(f"s_memrealtime s[{80+2*i}:{81+2*i}]")
    def write_stamps(base, n):
        if not stamps: return
        A("s_waitcnt lgkmcnt(0)")
        A("s_mov_b32 s76, s32\ns_mov_b32 s77, s33\ns_mov_b32 s78, 0x20000000\ns_mov_b32 s79, 0x20000")
        A(f"s_lshl_b32 s39, s2, 7\ns_add_u32 s39, s39, {0x10000000 + base*8}")
        A("s_mov_b64 exec, 1\nv_mov_b32 v20, 0")
        for i in range(n):
            A(f"v_mov_b32 v22, s{80+2*i}\nv_mov_b32 v23, s{81+2*i}\nbuffer_store_dwordx2 v[22:23], v20, s[76:79], s39 offen offset:{i*8}\ns_nop 1")
    def tags():
        A("s_add_u32 s4, s6, 1\ns_and_b32 s5, s4, 0xff")
    def check(d, n, a0, a1, grp):
        A(f"v_xor_b32 v{a0}, s5, v{d}\nv_xor_b32 v{a1}, s5, v{d+1}")
        for i in range(2, n):
            a = a0 if i % 2 == 0 else a1
            A(f"v_bitop3_b32 v{a}, v{d+i}, v{a}, s5 bitop3:0xde")
        A(f"v_or_b32 v{a0}, v{a0}, v{a1}\nv_and_b32 v{a0}, 0xff, v{a0}")
        for p in ("quad_perm:[1,0,3,2]", "quad_perm:[2,3,0,1]", "row_half_mirror")[:grp]:
            A(f"v_or_b32_dpp v{a0}, v{a0}, v{a0} {p} row_mask:0xf bank_mask:0xf")
        A(f"v_cmp_ne_u32 vcc, 0, v{a0}")
    lab = [0]
    def poll(loads, d, n, a0, a1, sleep, base_exec="-1", first_issued=False, mode=0, grp=3):
        if mode:
            if mode == 1:
                for l in loads: A(l)
            A("s_waitcnt vmcnt(0)")
            return
        lab[0] += 1
        L = f"L_pl{lab[0]}"
        A(f"s_mov_b32 s72, {POLL_LIMIT}")
        if not first_issued:
            for l in loads: A(l)
        A(f"{L}:")
        A("s_waitcnt vmcnt(0)")
        check(d, n, a0, a1, grp)
        A(f"s_cbranch_vccz {L}d")
        if sleep: A(f"s_sleep {sleep}")
        A("s_mov_b64 exec, vcc")
        for l in loads: A(l)
        A(f"s_mov_b64 exec, {base_exec}\ns_sub_u32 s72, s72, 1\ns_cbranch_scc0 {L}\ns_waitcnt vmcnt(0)")
        A(f"{L}d:")
    def strip(d, n):
        for i in range(n): A(f"v_and_b32 v{d+i}, 0xffffff00, v{d+i}")
    def tagv(dst, src, ff):
        A(f"v_add_u32 v{dst}, 0x80, v{src}\nv_bfi_b32 v{dst}, v{ff}, s5, v{dst}")

    A("""s_cmp_ge_u32 s2, 256
    s_cbranch_scc1 L_end""")
    stamp(0)
    A("""s_load_dwordx16 s[8:23], s[0:1], 0
    s_load_dwordx8 s[24:31], s[0:1], 64
    s_load_dwordx2 s[32:33], s[0:1], 96
    v_lshrrev_b32 v2, 6, v0
    v_and_b32 v1, 63, v0
    s_and_b32 s34, s2, 7
    v_readfirstlane_b32 s3, v2
    s_lshr_b32 s35, s2, 3
    s_bfe_u32 s36, s35, 0x20001
    s_lshl_b32 s39, s34, 2
    s_add_u32 s36, s36, s39          ; h
    s_xor_b32 s36, s36, HXX
    s_lshr_b32 s37, s35, 3           ; b
    s_and_b32 s38, s35, 1            ; sp
    s_cmp_lt_u32 s3, 4
    s_cbranch_scc1 L_H""".replace("s_xor_b32 s36, s36, HXX", f"s_xor_b32 s36, s36, {hx}" if hx else ""))
    if hk: A(f"s_xor_b32 s36, s36, {hk}")

    T = 8
    Q = 24
    MK = 28
    S = 32
    AO = 40
    ACC = 48
    TMP = 52
    RB = 64
    if sprio: A(f"s_setprio {sprio}")
    A(f"""s_sub_u32 s56, s3, 4
    s_lshl_b32 s57, s37, 5
    s_add_u32 s57, s57, s36
    s_lshl_b32 s57, s57, 20
    s_lshl_b32 s58, s38, 19
    s_add_u32 s57, s57, s58
    s_lshl_b32 s58, s56, 10
    s_add_u32 s57, s57, s58
    s_mov_b32 s59, s57
    v_lshlrev_b32 v2, 4, v1
    s_waitcnt lgkmcnt(0)""")
    srd(40, 10, 0x8000000)
    st = dict(ii=0, ci=0, landed=0, cnt=0)
    def slot(i): return RB + 4 * (i % NS)
    def issue(kk=k):
        ii = st["ii"]
        if ii >= 256 or ii - st["ci"] >= NS: return False
        if ii - (kk - 1) > st["landed"]:
            A(f"s_waitcnt vmcnt({kk-1})"); st["landed"] = ii - (kk - 1)
        r = slot(ii)
        A(f"buffer_load_dwordx4 v[{r}:{r+3}], v2, s[{40 if ii < 128 else 48}:{43 if ii < 128 else 51}], s59 offen {kvflags}")
        if ii == 127: A("s_mov_b32 s59, s57")
        elif ii < 255: A("s_add_u32 s59, s59, 4096")
        st["ii"] += 1; st["cnt"] = 0
        return True
    def landed(i):
        if i >= st["landed"]:
            A(f"s_waitcnt vmcnt({st['ii'] - i - 1})"); st["landed"] = i + 1
    def consumed(i):
        st["ci"] = i + 1
        if i < k or st["ii"] - st["ci"] <= k + dt or i % 2 == 1: issue()
    def AH(text):
        for t in text.strip().split("\n"):
            A(t); st["cnt"] += 1
            if st["cnt"] >= gap: issue()
    for i in range(npro):
        issue(kp)
        if i == 3:
            A(f"s_load_dword s6, s[32:33], {W_EP}")
            srd(48, 12, 0x8000000)
            masks(MK, TMP)
            A(f"""s_mov_b32 s60, 0xaaaaaaaa
            s_mov_b32 s61, 0xaaaaaaaa
            s_mov_b32 s62, 0xcccccccc
            s_mov_b32 s63, 0xcccccccc
            s_mov_b32 s65, {SCALE:#x}
            s_mov_b32 s66, {LOG2E:#x}
            v_and_b32 v3, 15, v1
            v_lshlrev_b32 v3, 5, v3""")
    stamp(1)
    A("s_waitcnt lgkmcnt(0)\ns_barrier")
    stamp(2)
    QT = (T, T+8, S, S+8)
    for hw in range(4):
        d = QT[hw]
        A(f"ds_read_b128 v[{d}:{d+3}], v3 offset:{L_QP+hw*512}")
        A(f"ds_read_b128 v[{d+4}:{d+7}], v3 offset:{L_QP+hw*512+16}")
    A("s_waitcnt lgkmcnt(0)")
    for j in range(8):
        A(f"v_add_f32 v{T+j}, v{T+j}, v{T+8+j}\nv_add_f32 v{S+j}, v{S+j}, v{S+8+j}")
    for j in range(8):
        A(f"v_add_f32 v{T+j}, v{T+j}, v{S+j}")
    for j in range(4):
        A(f"v_cvt_pk_bf16_f32 v{Q+j}, v{T+2*j}, v{T+2*j+1}")
    for g in range(8):
        pend = None
        for c in range(16):
            i = 16 * g + c
            r = slot(i)
            landed(i)
            A(f"v_dot2_f32_bf16 v{T+c}, v{r}, v{Q}, 0")
            for kk in range(1, 4):
                A(f"v_dot2_f32_bf16 v{T+c}, v{r+kk}, v{Q+kk}, v{T+c}")
            if pend: A(pend)
            consumed(i)
            if c < 8: pend = f"v_add_f32_dpp v{T+c}, v{T+c}, v{T+c} row_ror:8 row_mask:0xf bank_mask:0x3"
            else:     pend = f"v_add_f32_dpp v{T+c-8}, v{T+c}, v{T+c} row_ror:8 row_mask:0xf bank_mask:0xc"
        A(pend)
        for i in range(4): A(f"v_add_f32_dpp v{T+i}, v{T+i}, v{T+i} row_half_mirror row_mask:0xf bank_mask:0x5")
        for i in range(4): A(f"v_add_f32_dpp v{T+i}, v{T+i+4}, v{T+i+4} row_half_mirror row_mask:0xf bank_mask:0xa")
        for i in range(4): A(f"v_add_f32_dpp v{T+i}, v{T+i}, v{T+i} quad_perm:[2,3,0,1] row_mask:0xf bank_mask:0xf")
        for i in range(2): A(f"v_cndmask_b32 v{T+i}, v{T+i}, v{T+i+2}, s[62:63]")
        for i in range(2): A(f"v_add_f32_dpp v{T+i}, v{T+i}, v{T+i} quad_perm:[1,0,3,2] row_mask:0xf bank_mask:0xf")
        A(f"v_cndmask_b32 v{S+g}, v{T}, v{T+1}, s[60:61]")
    stamp(3)
    st["cnt"] = 20
    for j in range(0, 8, 2): rbf2(S+j, S+j+1, AH)
    for j in range(8): AH(f"v_mul_f32 v{S+j}, s65, v{S+j}")
    for j in range(0, 8, 2): rbf2(S+j, S+j+1, AH)
    M = TMP + 2; Lr = TMP + 3; M2 = TMP + 4
    AH(f"""v_max3_f32 v{M}, v{S}, v{S+1}, v{S+2}
    v_max3_f32 v{M}, v{M}, v{S+3}, v{S+4}
    v_max3_f32 v{M}, v{M}, v{S+5}, v{S+6}
    v_max_f32 v{M}, v{M}, v{S+7}""")
    allred(M, TMP, "max_f32", AH)
    AH(f"v_mul_f32 v{M2}, s66, v{M}")
    for j in range(8): AH(f"v_fma_f32 v{S+j}, v{S+j}, s66, -v{M2}")
    for j in range(8): AH(f"v_exp_f32 v{S+j}, v{S+j}")
    AH(f"v_add_f32 v{Lr}, v{S}, v{S+1}")
    for j in range(2, 8): AH(f"v_add_f32 v{Lr}, v{Lr}, v{S+j}")
    for j in range(8): AH(f"v_cvt_pk_bf16_f32 v{S+j}, v{S+j}, v{S+j}")
    allred(Lr, TMP, "add_f32", AH)
    AH(f"""v_min_u32 v{Lr}, -2, v{Lr}
    s_lshl_b32 s39, s56, 3
    v_mov_b32 v{TMP}, s39
    ds_write_b64 v{TMP}, v[{M}:{Lr}] offset:{L_ML}""")
    AH(f"""v_and_b32 v3, 15, v1
    v_lshlrev_b32 v3, 4, v3
    v_lshrrev_b32 v4, 4, v1
    v_lshl_add_u32 v3, v4, 3, v3
    s_lshl_b32 s39, s56, 8
    v_add_u32 v3, s39, v3""")
    def aprep(i):
        g, c = divmod(i, 16)
        for kk in range(4):
            A(f"v_and_b32_dpp v{AO+4*(i%2)+kk}, v{S+g}, v{MK+kk} row_newbcast:{c} row_mask:0xf bank_mask:0xf")
    aprep(0)
    for i in range(128):
        r = slot(128 + i); a = AO + 4 * (i % 2)
        landed(128 + i)
        A(f"v_mfma_f32_16x16x32_bf16 v[{ACC}:{ACC+3}], v[{a}:{a+3}], v[{r}:{r+3}], {'0' if i == 0 else f'v[{ACC}:{ACC+3}]'}")
        if i < 127: aprep(i + 1)
        consumed(128 + i)
    stamp(4)
    A(f"""v_cvt_pk_bf16_f32 v{TMP}, v{ACC}, v{ACC+1}
    v_cvt_pk_bf16_f32 v{TMP+1}, v{ACC+2}, v{ACC+3}
    s_mov_b32 exec_hi, 0
    ds_write_b64 v3, v[{TMP}:{TMP+1}] offset:{L_O}
    s_mov_b64 exec, -1
    s_waitcnt lgkmcnt(0)
    s_barrier
    s_cmp_lg_u32 s56, 0
    s_cbranch_scc1 L_end""")
    stamp(5); stamp(6)
    A(f"""s_and_b32 s39, s35, 6
    s_cmp_lg_u32 s39, 0
    s_cbranch_scc1 L_fend""")
    U = 8
    srdws()
    tags()
    A(f"""s_lshl_b32 s67, s34, 1
    s_add_u32 s67, s67, s38          ; cq
    s_lshl_b32 s70, s37, 17
    s_lshl_b32 s39, s67, 7
    s_add_u32 s70, s70, s39
    s_add_u32 s70, s70, {W_U}
    v_lshrrev_b32 v3, 3, v1
    v_lshlrev_b32 v3, 11, v3
    v_and_b32 v4, 7, v1
    v_lshl_add_u32 v3, v4, 4, v3""")
    for t in range(1, 8): A(f"s_add_u32 s{56+t}, s70, {t*16384}")
    uloads = [f"buffer_load_dwordx4 v[{U+4*t}:{U+4*t+3}], v3, s[44:47], s{70 if t == 0 else 56+t} offen sc1" for t in range(8)]
    for l in uloads: A(l)
    A(f"""v_lshlrev_b32 v5, 5, v4
    ds_read_b128 v[44:47], v5 offset:{L_G}
    ds_read_b128 v[48:51], v5 offset:{L_G+16}
    v_lshlrev_b32 v4, 3, v4
    s_lshl_b32 s71, s37, 10
    s_lshl_b32 s39, s67, 6
    s_add_u32 s71, s71, s39""")
    srd(48, 28, 4096)
    poll(uloads, U, 32, 40, 41, fsleep, first_issued=True, mode=2 if "F" in abl else 0)
    stamp(6)
    strip(U, 32)
    for s_ in (16, 8, 4):
        for i in range(s_): A(f"v_add_f32 v{U+i}, v{U+i}, v{U+s_+i}")
    for i in range(4): A(f"v_add_f32_dpp v{U+i}, v{U+i}, v{U+i} row_ror:8 row_mask:0xf bank_mask:0xf")
    for sw in (16, 32):
        for i in range(4): A(f"v_mov_b32 v{U+4+i}, v{U+i}")
        for i in range(4): A(f"v_permlane{sw}_swap_b32 v{U+i}, v{U+4+i}")
        for i in range(4): A(f"v_add_f32 v{U+i}, v{U+i}, v{U+4+i}")
    A("s_waitcnt lgkmcnt(0)")
    rbf2(U, U+1); rbf2(U+2, U+3)
    for i in range(4): A(f"v_mul_f32 v{U+i}, v{U+i}, v{44+i}")
    rbf2(U, U+1); rbf2(U+2, U+3)
    for i in range(4): A(f"v_add_f32 v{U+i}, v{U+i}, v{48+i}")
    A(f"""v_cvt_pk_bf16_f32 v{U}, v{U}, v{U+1}
    v_cvt_pk_bf16_f32 v{U+1}, v{U+2}, v{U+3}
    s_mov_b64 exec, 0xff
    buffer_store_dwordx2 v[{U}:{U+1}], v4, s[48:51], s71 offen""")
    A("L_fend:")
    stamp(7)
    write_stamps(0, 8)
    A("s_endpgm")

    W = 128
    XR = 8
    MB = 24; RD = 25; TT = 26
    FF = 29
    BI = 30
    HMK = 32
    SEL = 36
    HA = 44
    HACC = 52
    PUB = 68
    F = 72
    AP = 104
    A("L_H:")
    if hprio: A(f"s_setprio {hprio}")
    if hq: A(f"s_xor_b32 s36, s36, {hq}")
    A(f"""v_lshlrev_b32 v2, 4, v1             ; lane*16
    v_and_b32 v3, 15, v1                  ; n / m
    v_lshrrev_b32 v4, 4, v1               ; g
    v_lshlrev_b32 v7, {13+gs}, v4
    v_lshl_add_u32 v7, v3, 4, v7
    s_lshl_b32 s58, s37, 10
    s_lshl_b32 s60, s3, {13+hs}
    s_lshl_b32 s39, s36, 8
    s_add_u32 s60, s60, s39
    s_lshl_b32 s56, s37, 1
    s_add_u32 s56, s56, s38               ; j = 2b + sp
    s_lshl_b32 s39, s56, {15 if qx else 31}
    s_lshl_b32 s39, s39, {0 if qx else 1}
    s_add_u32 s60, s60, s39
    s_mov_b32 s57, s60
    s_waitcnt lgkmcnt(0)""")
    srd(40, 8, 4096)
    srd(48, 14, 0 if "q" in abl else 0x400000)
    A(f"buffer_load_dwordx4 v[{XR}:{XR+3}], v2, s[40:43], s58 offen")
    def qissue(i):
        if qx and i and i % 4 == 0: A(f"s_xor_b32 s60, s57, {i*0x2000}")
        A(f"buffer_load_dwordx4 v[{W+4*i}:{W+4*i+3}], v7, s[48:51], s60 offen {wflags}")
        if i < 31 and not (qx and i % 4 == 3): A(f"s_add_u32 s60, s60, {0x2000<<is_}" if not (is_ == 9 ) else f"s_add_u32 s60, s60, {0x2000*(4 if i%8!=7 else 128-28)}")
    for i in range(kq): qissue(i)
    A(f"s_load_dword s6, s[32:33], {W_EP}")
    srdws()
    masks(HMK, TT)
    A(f"""v_mov_b32 v{FF}, 0xff
    v_mov_b32 v{TT}, 0x0c0c0c0c
    s_mov_b32 s64, 0x01000100
    s_mov_b32 s65, 0x03020302""")
    for par in range(2):
        for kk in range(4): A(f"v_bfi_b32 v{SEL+4*par+kk}, v{HMK+kk}, s{64+par}, v{TT}")
    A(f"""v_mov_b32 v{TT}, -1
    v_lshlrev_b32 v6, 2, v1
    s_mov_b64 exec, 0xff
    ds_write_b32 v6, v{TT} offset:{L_ML}
    s_mov_b64 exec, -1
    s_lshl_b32 s39, s3, 8
    v_lshlrev_b32 v5, 6, v4
    v_add_u32 v5, s39, v5
    s_lshl_b32 s39, s3, 9
    v_lshlrev_b32 v6, 5, v3
    v_lshl_add_u32 v6, v4, 4, v6
    v_add_u32 v6, s39, v6
    s_waitcnt vmcnt({kq})""")
    unpack(F, XR, 4)
    ln_stats(F, 8, MB, RD, TT, allred)
    ln_apply(F, 8, MB, RD, pack=XR)
    if qx:
        A(f"""s_lshl_b32 s39, s56, 3
        v_xor_b32 v{TT}, s39, v2
        v_xor_b32 v{TT+1}, 8, v{TT}
        ds_write_b64 v{TT}, v[{XR}:{XR+1}] offset:{L_X}
        ds_write_b64 v{TT+1}, v[{XR+2}:{XR+3}] offset:{L_X}
        s_waitcnt lgkmcnt(0)""")
    else:
        A(f"ds_write_b128 v2, v[{XR}:{XR+3}] offset:{L_X}\ns_waitcnt lgkmcnt(0)")
    for t in range(4): A(f"ds_read_b128 v[{XR+4*t}:{XR+4*t+3}], v5 offset:{L_X+16*t}")
    tags()
    A("s_waitcnt lgkmcnt(0)")
    for i in range(32):
        a = HA + 4 * (i % 2)
        for kk in range(4): A(f"v_perm_b32 v{a+kk}, v{XR+i//2}, v{XR+i//2}, v{SEL+4*(i%2)+kk}")
        A(f"s_waitcnt vmcnt({min(32, i+kq) - i - 1})")
        if i + kq < 32: qissue(i + kq)
        A(f"v_mfma_f32_16x16x32_bf16 v[{HACC}:{HACC+3}], v[{a}:{a+3}], v[{W+4*i}:{W+4*i+3}], {'0' if i == 0 else f'v[{HACC}:{HACC+3}]'}")
    A(f"""s_mov_b32 exec_hi, 0
    ds_write_b128 v6, v[{HACC}:{HACC+3}] offset:{L_QP}
    s_mov_b64 exec, -1
    s_waitcnt lgkmcnt(0)""")
    stamp(1)
    A("s_barrier")
    stamp(2)
    def tissue():
        A(f"buffer_load_dwordx4 v7, s[48:51], s60 offen {mflags} lds\ns_add_u32 s60, s60, s61\ns_add_u32 m0, m0, 0x400")
    def tloop(n, nm):
        A(f"s_mov_b32 s64, {n}")
        A(f"L_{nm}:")
        A(f"s_waitcnt vmcnt({km-1})")
        tissue()
        A(f"s_sub_u32 s64, s64, 1\ns_cmp_lg_u32 s64, 0\ns_cbranch_scc1 L_{nm}")
    def ngemv(nks):
        A(f"v_lshlrev_b32 v7, 3, v3\nv_lshl_add_u32 v7, v4, 8, v7")
        for ks in range(nks):
            r = W + 4 * ks
            A(f"ds_read_b64_tr_b16 v[{r}:{r+1}], v7 offset:{L_T+ks*1024}")
            A(f"ds_read_b64_tr_b16 v[{r+2}:{r+3}], v7 offset:{L_T+ks*1024+128}")
        A("s_waitcnt lgkmcnt(0)")
        for ks in range(nks):
            r = W + 4 * ks; d = HACC + 4 * (ks % 4); a = AP + 4 * (ks // 4)
            A(f"v_mfma_f32_16x16x32_bf16 v[{d}:{d+3}], v[{a}:{a+3}], v[{r}:{r+3}], {'0' if ks < 4 else f'v[{d}:{d+3}]'}")
        for q in range(1, 4):
            for r in range(4):
                A(f"v_mov_b32_dpp v{HACC+r}, v{HACC+4*q+r} quad_perm:[0,1,2,3] row_mask:{1<<q:#x} bank_mask:0xf")
        A(f"""v_permlane32_swap_b32 v{HACC}, v{HACC+2}
        v_permlane32_swap_b32 v{HACC+1}, v{HACC+3}
        v_add_f32 v{HACC}, v{HACC}, v{HACC+2}
        v_add_f32 v{HACC+1}, v{HACC+1}, v{HACC+3}
        v_permlane16_swap_b32 v{HACC}, v{HACC+1}
        v_add_f32 v{HACC}, v{HACC}, v{HACC+1}""")
    A(f"""s_cmp_lg_u32 s3, 0
    s_cbranch_scc1 L_wo""")
    if "A" in abl: A("s_branch L_wo")
    A(f"""s_mov_b32 m0, {L_T}
    s_and_b32 s62, s35, 3                 ; sub
    s_lshr_b32 s63, s35, 2
    v_lshrrev_b32 v5, 1, v1
    v_and_b32 v6, 1, v1
    s_cmp_ge_u32 s35, 16
    s_cbranch_scc1 L_m2a
    s_lshl_b32 s63, s63, 3
    s_add_u32 s63, s63, s34
    s_cmp_ge_u32 s63, 28
    s_cbranch_scc1 L_wo
    s_lshl_b32 s63, s63, 2
    s_add_u32 s63, s63, s62
    s_lshl_b32 s60, s63, 5
    s_mov_b32 s61, {32*3584}
    s_mov_b32 s39, 3584
    v_mul_lo_u32 v7, v5, s39
    v_lshl_add_u32 v7, v6, 4, v7
    v_and_b32 v5, 3, v1
    v_lshlrev_b32 v5, 10, v5
    v_bfe_u32 v6, v1, 2, 2
    v_lshl_add_u32 v5, v6, 6, v5
    v_lshl_add_u32 v5, v4, 4, v5
    v_lshlrev_b32 v6, 1, v3""")
    srd(48, 20, 0 if "1" in abl else 512*1792*2)
    srd(68, 22, 1792*2)
    for t in range(4): A(f"buffer_load_dwordx4 v[{XR+4*t}:{XR+4*t+3}], v5, s[40:43], 0 offen offset:{t*256}")
    A(f"buffer_load_ushort v{BI}, v6, s[68:71], s60 offen")
    for i in range(km): tissue()
    A(f"s_waitcnt vmcnt({km})")
    unpack(F, XR, 16)
    ln_stats(F, 32, MB, RD, TT, red16x)
    ln_apply(F, 32, MB, RD)
    A(f"s_waitcnt vmcnt(0)")
    for i in range(km): tissue()
    ln_stats(F, 32, MB, RD, TT, red16x)
    ln_apply(F, 32, MB, RD, pack=AP)
    tloop(16 - 2*km, "t1")
    A(f"""s_mul_i32 s63, s63, {BS}
    s_add_u32 s63, s63, {W_H}
    v_lshlrev_b32 v{BI}, 16, v{BI}
    v_lshlrev_b32 v6, 2, v1
    s_waitcnt vmcnt(0)""")
    ngemv(16)
    rbf(HACC)
    A(f"v_add_f32 v{HACC}, v{HACC}, v{BI}")
    rbf(HACC)
    c1 = -2.0 * 1.4426950408889634 * 0.7978845608028654
    x = HACC; t = TT
    A(f"""v_mul_f32 v{t}, v{x}, v{x}
    v_mul_f32 v{t}, {f2u(0.044715):#x}, v{t}
    v_add_f32 v{t}, 1.0, v{t}
    v_mul_f32 v{t}, v{t}, v{x}
    v_mul_f32 v{t}, {f2u(c1):#x}, v{t}
    v_exp_f32 v{t}, v{t}
    v_add_f32 v{t}, 1.0, v{t}
    v_rcp_f32 v{t}, v{t}
    v_mul_f32 v{x}, v{x}, v{t}""")
    rbf(HACC)
    A(f"v_or_b32 v{PUB}, s5, v{HACC}")
    if "S" not in abl: A(f"buffer_store_dword v{PUB}, v6, s[44:47], s63 offen sc1")
    A("s_branch L_wo")
    A("L_m2a:")
    srd(48, 24, 0 if "2" in abl else 1792*1024)
    A(f"""s_and_b32 s63, s63, 3                 ; ks2
    s_lshl_b32 s39, s34, 2
    s_add_u32 s62, s62, s39               ; cb2
    s_mul_i32 s60, s63, {448*1024}
    s_lshl_b32 s39, s62, 5
    s_add_u32 s60, s60, s39
    s_mov_b32 s61, 0x8000
    v_lshlrev_b32 v7, 10, v5
    v_lshl_add_u32 v7, v6, 4, v7""")
    tloop(14, "t2")
    A("L_wo:")
    srd(48, 16, 0 if "o" in abl else 0x400000)
    A(f"""v_lshlrev_b32 v7, 10, v4
    v_lshl_add_u32 v7, v3, 4, v7
    s_lshl_b32 s60, s36, 17
    s_lshl_b32 s39, s3, 8
    s_add_u32 s60, s60, s39
    s_lshl_b32 s67, s3, 15
    s_add_u32 s67, s67, {L_WO}
    s_mov_b32 m0, s67
    s_lshl_b32 s65, s56, {max(wx-1,0)}
    s_mov_b32 s64, 32""")
    if "w" in abl: A("s_branch L_wo2")
    A("L_wo1:")
    if wx:
        A(f"""s_sub_u32 s64, s64, 1
        s_xor_b32 s39, s64, s65
        s_lshl_b32 s61, s39, 12
        s_add_u32 s61, s61, s60
        s_lshl_b32 s39, s39, 10
        s_add_u32 m0, s39, s67
        s_waitcnt vmcnt({kw-1})
        buffer_load_dwordx4 v7, s[48:51], s61 offen {woflags} lds
        s_cmp_lg_u32 s64, 0
        s_cbranch_scc1 L_wo1""")
    else: A(f"""s_waitcnt vmcnt({kw-1})
    buffer_load_dwordx4 v7, s[48:51], s60 offen {woflags} lds
    s_add_u32 s60, s60, 0x1000
    s_add_u32 m0, m0, 0x400
    s_sub_u32 s64, s64, 1
    s_cmp_lg_u32 s64, 0
    s_cbranch_scc1 L_wo1""")
    A("L_wo2:")
    stamp(3)
    A(f"""s_cmp_lg_u32 s3, 0
    s_cbranch_scc1 L_tr
    s_cmp_lt_u32 s35, 16
    s_cbranch_scc1 L_tr""")
    if "A" in abl: A("s_branch L_tr")
    A(f"""s_mul_i32 s56, s63, {28*BS}
    s_add_u32 s56, s56, {W_H}
    s_add_u32 s57, s56, {8*BS}
    s_add_u32 s58, s56, {16*BS}
    s_add_u32 s59, s56, {24*BS}
    s_mov_b32 s39, {BS}
    v_and_b32 v7, 3, v1
    v_lshlrev_b32 v7, 6, v7
    v_and_b32 v{TT}, 1, v4
    v_lshl_add_u32 v7, v{TT}, 5, v7      ; b*64 + (g&1)*32
    v_lshrrev_b32 v{TT}, 1, v4
    v_bfe_u32 v5, v1, 2, 2
    v_bfe_u32 v6, v1, 2, 1
    v_lshl_add_u32 v5, v5, 1, v{TT}
    v_lshl_add_u32 v6, v6, 1, v{TT}
    v_mad_u32_u24 v5, v5, s39, v7
    v_mad_u32_u24 v6, v6, s39, v7""")
    hloads = [f"buffer_load_dwordx4 v[{F+4*t}:{F+4*t+3}], v{5 if t < 6 else 6}, s[44:47], s{56+t//2} offen offset:{16*(t%2)} sc1" for t in range(8)]
    poll(hloads, F, 32, TT, TT+1, 32, mode=2 if "L" in abl else 1 if "S" in abl else 0, grp=0)
    A(f"""s_mov_b32 s64, 0x07060302
    s_lshl_b32 s63, s63, 5
    s_add_u32 s63, s63, s62
    s_mul_i32 s63, s63, {BS}
    s_add_u32 s63, s63, {W_G}
    v_lshlrev_b32 v6, 2, v1""")
    for p in range(16): A(f"v_perm_b32 v{AP+p}, v{F+2*p+1}, v{F+2*p}, s64")
    ngemv(14)
    tagv(PUB, HACC, FF)
    if "S" not in abl: A(f"buffer_store_dword v{PUB}, v6, s[44:47], s63 offen sc1")
    A("L_tr:")
    stamp(4)
    A(f"""v_lshlrev_b32 v7, 11, v4
    v_bfe_u32 v{TT}, v1, 2, 2
    v_lshl_add_u32 v7, v{TT}, 8, v7
    v_and_b32 v{TT}, 3, v1
    v_lshl_add_u32 v7, v{TT}, 3, v7
    v_add_u32 v7, s67, v7
    s_waitcnt vmcnt(0)""")
    for cb in range(8):
        for ks in range(4):
            r = W + 4 * (cb * 4 + ks)
            off = ks * 32 * 256 + cb * 32
            A(f"ds_read_b64_tr_b16 v[{r}:{r+1}], v7 offset:{off}")
            A(f"ds_read_b64_tr_b16 v[{r+2}:{r+3}], v7 offset:{off+1024}")
    A(f"""s_cmp_lt_u32 s3, 2
    s_cbranch_scc1 L_n1
    s_cmp_eq_u32 s3, 2
    s_cbranch_scc1 L_h2
    s_cmp_lg_u32 s2, 255
    s_cbranch_scc1 L_n1""")
    def mlwait(nm):
        A(f"""v_lshlrev_b32 v6, 3, v1
        s_mov_b64 exec, 0xf
        s_mov_b32 s72, {POLL_LIMIT}""")
        A(f"L_{nm}:")
        A(f"""ds_read_b64 v[{XR}:{XR+1}], v6 offset:{L_ML}
        s_waitcnt lgkmcnt(0)
        v_cmp_eq_u32 vcc, -1, v{XR+1}
        s_cbranch_vccz L_{nm}d
        s_sleep 8
        s_sub_u32 s72, s72, 1
        s_cbranch_scc0 L_{nm}""")
        A(f"L_{nm}d:")
    if "e" in abl or "m" in abl: A("s_branch L_n1")
    mlwait("ew")
    A(f"""s_mov_b64 exec, -1
    s_mov_b32 s39, {MLS}
    v_lshrrev_b32 v5, 1, v1
    v_and_b32 v6, 1, v1
    v_lshlrev_b32 v6, 5, v6
    v_mad_u32_u24 v5, v5, s39, v6""")
    for t in range(4): A(f"s_mov_b32 s{56+t}, {W_ML + t*32*MLS}")
    eloads = [f"buffer_load_dwordx4 v[{F+4*t}:{F+4*t+3}], v5, s[44:47], s{56+t} offen sc1" for t in range(4)]
    poll(eloads, F, 16, TT, TT+1, esleep, grp=0)
    A(f"""v_mov_b32 v{PUB}, s4
    s_mov_b64 exec, 1
    buffer_store_dword v{PUB}, off, s[44:47], 0 offset:{W_EP} sc1
    s_mov_b64 exec, -1
    s_branch L_n1""")
    A("L_h2:")
    if "m" in abl: A("s_branch L_ml2")
    A(f"""s_lshl_b32 s63, s37, 5
    s_add_u32 s63, s63, s36
    s_mul_i32 s63, s63, {MLS}
    s_add_u32 s63, s63, {W_ML}
    s_lshl_b32 s39, s38, 5
    s_add_u32 s66, s63, s39""")
    mlwait("mw")
    A(f"""v_bfi_b32 v{PUB}, v{FF}, s5, v{XR}
    v_bfi_b32 v{PUB+1}, v{FF}, s5, v{XR+1}
    buffer_store_dwordx2 v[{PUB}:{PUB+1}], v6, s[44:47], s66 offen sc1
    s_mov_b64 exec, 0xff""")
    poll([f"buffer_load_dwordx2 v[{XR}:{XR+1}], v6, s[44:47], s63 offen sc1"], XR, 2, TT, TT+1, 16, base_exec="0xff")
    strip(XR, 2)
    A(f"""v_max_f32_dpp v{TT}, v{XR}, v{XR} quad_perm:[1,0,3,2] row_mask:0xf bank_mask:0xf
    v_max_f32_dpp v{TT}, v{TT}, v{TT} quad_perm:[2,3,0,1] row_mask:0xf bank_mask:0xf
    v_max_f32_dpp v{TT}, v{TT}, v{TT} row_half_mirror row_mask:0xf bank_mask:0xf
    v_sub_f32 v{XR}, v{XR}, v{TT}
    v_mul_f32 v{XR}, {LOG2E:#x}, v{XR}
    v_exp_f32 v{XR}, v{XR}
    v_mul_f32 v{TT}, v{XR}, v{XR+1}
    v_add_f32_dpp v{TT}, v{TT}, v{TT} quad_perm:[1,0,3,2] row_mask:0xf bank_mask:0xf
    v_add_f32_dpp v{TT}, v{TT}, v{TT} quad_perm:[2,3,0,1] row_mask:0xf bank_mask:0xf
    v_add_f32_dpp v{TT}, v{TT}, v{TT} row_half_mirror row_mask:0xf bank_mask:0xf
    v_rcp_f32 v{TT}, v{TT}
    v_mul_f32 v{XR}, v{XR}, v{TT}
    v_and_b32 v6, 3, v1
    v_lshlrev_b32 v6, 2, v6
    s_lshl_b32 s39, s38, 2
    s_lshl_b32 s64, 0xf, s39
    s_mov_b32 s65, 0
    s_mov_b64 exec, s[64:65]
    ds_write_b32 v6, v{XR} offset:{L_C}
    s_mov_b64 exec, -1""")
    A("L_ml2:")
    stamp(5)
    if "g" in abl or "A" in abl: A("s_branch L_n1")
    A(f"""s_and_b32 s39, s35, 6
    s_cmp_lg_u32 s39, 0
    s_cbranch_scc1 L_n1""")
    srd(68, 26, 1024)
    G = F
    A(f"""s_lshl_b32 s67, s34, 1
    s_add_u32 s67, s67, s38          ; cq
    s_lshl_b32 s58, s67, 6
    s_lshl_b32 s39, s37, 10
    s_add_u32 s59, s58, s39
    s_mul_i32 s60, s67, {2*BS}
    s_lshl_b32 s39, s37, 6
    s_add_u32 s60, s60, s39
    s_add_u32 s60, s60, {W_G}
    v_and_b32 v6, 7, v1
    v_lshlrev_b32 v5, 3, v6
    buffer_load_dwordx2 v[{XR}:{XR+1}], v5, s[68:71], s58 offen
    buffer_load_dwordx2 v[{XR+2}:{XR+3}], v5, s[40:43], s59 offen
    v_bfe_u32 v7, v1, 3, 2
    v_lshlrev_b32 v7, 5, v7
    v_bfe_u32 v5, v1, 2, 1
    v_add_u32 v7, v7, v5
    v_and_b32 v5, 3, v1
    v_lshlrev_b32 v5, 4, v5
    s_mov_b32 s39, {BS}
    v_mad_u32_u24 v7, v7, s39, v5""")
    gloads = [f"buffer_load_dwordx4 v[{G}:{G+3}], v7, s[44:47], s60 offen sc1"]
    poll(gloads, G, 4, TT, TT+1, gsleep, mode=2 if "L" in abl else 1 if "S" in abl else 0, grp=2)
    strip(G, 4)
    for i in range(4): A(f"v_add_f32_dpp v{G+i}, v{G+i}, v{G+i} row_ror:8 row_mask:0xf bank_mask:0xf")
    for i in range(4): swapadd(G+i, G+4+i, 16)
    rbf2(G, G+1); rbf2(G+2, G+3)
    unpack(G+4, XR, 2)
    for i in range(4): A(f"v_add_f32 v{G+i}, v{G+i}, v{G+4+i}")
    rbf2(G, G+1); rbf2(G+2, G+3)
    for r in range(4):
        A(f"""v_mul_f32 v{TT}, {LOG2E ^ 0x80000000:#x}, v{G+r}
        v_exp_f32 v{TT}, v{TT}
        v_add_f32 v{TT}, 1.0, v{TT}
        v_rcp_f32 v{TT}, v{TT}
        v_mul_f32 v{G+r}, v{G+r}, v{TT}""")
    rbf2(G, G+1); rbf2(G+2, G+3)
    unpack(G+4, XR+2, 2)
    A(f"""v_lshlrev_b32 v6, 5, v6
    ds_write_b128 v6, v[{G}:{G+3}] offset:{L_G}
    ds_write_b128 v6, v[{G+4}:{G+7}] offset:{L_G+16}""")
    A("L_n1:")
    OA = 72
    CC = 88
    DD = 92
    UU = 44
    A(f"""v_and_b32 v6, 3, v1
    v_lshlrev_b32 v6, 8, v6
    v_lshl_add_u32 v6, v4, 4, v6
    v_mov_b32 v5, 0
    v_lshlrev_b32 v7, 2, v1
    s_lshl_b32 s59, s37, 17
    s_lshl_b32 s39, s36, 12
    s_add_u32 s59, s59, s39
    s_lshl_b32 s39, s38, 11
    s_add_u32 s59, s59, s39
    s_lshl_b32 s39, s3, 9
    s_add_u32 s59, s59, s39
    s_add_u32 s59, s59, {W_U}
    s_waitcnt lgkmcnt(0)""")
    stamp(6)
    A("s_barrier")
    for ks in range(4):
        A(f"ds_read_b128 v[{OA+4*ks}:{OA+4*ks+3}], v6 offset:{L_O+ks*64}")
    A(f"ds_read_b128 v[{CC}:{CC+3}], v5 offset:{L_C}")
    for ks in range(4):
        A(f"s_waitcnt lgkmcnt({4-ks})")
        for cb in range(8):
            r = W + 4 * (cb * 4 + ks)
            d = DD + 4 * cb
            A(f"v_mfma_f32_16x16x32_bf16 v[{d}:{d+3}], v[{OA+4*ks}:{OA+4*ks+3}], v[{r}:{r+3}], {'0' if ks == 0 else f'v[{d}:{d+3}]'}")
    A("s_waitcnt lgkmcnt(0)")
    for r in range(4):
        for cb in range(8):
            A(f"v_{'mul' if r == 0 else 'fmac'}_f32_dpp v{UU+cb//4+2*(cb%4)}, v{DD+4*cb+r}, v{CC+r} quad_perm:[0,1,2,3] row_mask:{1<<(cb%4):#x} bank_mask:0xf")
    for j in range(2):
        for gq in range(1, 4):
            A(f"v_mov_b32_dpp v{UU+j}, v{UU+j+2*gq} quad_perm:[0,1,2,3] row_mask:{1<<gq:#x} bank_mask:0xf")
    tagv(PUB, UU, FF); tagv(PUB+1, UU+1, FF)
    if "U" not in abl: A(f"""buffer_store_dword v{PUB}, v7, s[44:47], s59 offen sc1
    buffer_store_dword v{PUB+1}, v7, s[44:47], s59 offen offset:256 sc1""")
    if stamps:
        stamp(7)
        A(f"s_cmp_lg_u32 s3, {hst}\ns_cbranch_scc1 L_end")
        write_stamps(8, 8)
    A("L_end:")
    A("s_endpgm")
    E.raw(f""".section .rodata,"a"
.p2align 6
.amdhsa_kernel {KN}
  .amdhsa_next_free_vgpr 256
  .amdhsa_next_free_sgpr 102
  .amdhsa_accum_offset 256
  .amdhsa_group_segment_fixed_size 0
  .amdhsa_kernarg_size 104
  .amdhsa_user_sgpr_count 2
  .amdhsa_user_sgpr_kernarg_segment_ptr 1
  .amdhsa_system_sgpr_workgroup_id_x 1
  .amdhsa_float_denorm_mode_32 3
.end_amdhsa_kernel""")
    return E.text()

if __name__ == "__main__":
    kw_ = {}
    out = sys.argv[1]
    for a in sys.argv[2:]:
        kk, v = a.split("=")
        kw_[kk] = int(v) if (v.lstrip("-").isdigit() and kk != "abl") else v.replace("+", " ")
    open(out, "w").write(gen(**kw_))
```

```python
import sys, struct
from emit import Emit
KN = "recurrent_scan__mha_block_cached__mixer_channel_mlp__decode_kernel"
HEADER = open("recurrent_scan__mha_block_cached__mixer_channel_mlp__decode.s.ref").read().split("; Override launch")[0]

L_Q  = 0x000
L_WF = 0x100
L_PR = 0x110
L_TG = 0x120
L_GT = 0x140
L_O  = 0x800
L_ML = 0xC00
L_C  = 0xC40
L_G  = 0xC80
L_T  = 0x1000
L_WO = 0x5000
PITCH = 1040
LDS_BYTES = L_WO + 128 * PITCH
W_EP = 0x0
W_C  = 0x1000
LOG2E = 0x3fb8aa3b
SCALE = 0x3db504f3
POLL_LIMIT = 0x20000
def f2u(x): return struct.unpack("<I", struct.pack("<f", x))[0]

def gen(pst=0, k=6, kp=6, NS=48, npro=48, dt=2, kq=16, kqb=4, kw=3, km=8, kvflags="nt", wflags="nt", woflags="nt", mflags="nt", stamps=0, hst=2, abl="",
        sprio=3, hprio=0, fsleep=2, gap=40, hx=0, hk=0, QS=1024, HS=1024, GS=1024, US=2048, pad=0x40000, psleep=32, idle=3, MLS=256, mlw=7, ks="0:5,128:6", u4=1, lf="nt", cre=3, force=0, c2=4, cpos=1, perm=0, ulf="sc1", usf="sc1", osf="", fp=1, fmax=8, fthr=3, fs2=1, wb=0x2000,
        qat=28, woat=40, m2at=56, mlat=166):
    sched = sorted((int(x.split(':')[0]), int(x.split(':')[1])) for x in ks.split(','))
    kp = sched[0][1]
    def up(x): return (x + pad - 1) // pad * pad
    W_H = up(wb); W_G = up(W_H + 112 * HS); W_ML = up(W_G + 112 * GS); W_U = up(W_ML + 128 * MLS); W_Q = up(W_U + 256 * US); W_END = up(W_Q + 256 * QS)
    assert W_END <= 0x20000000
    E = Emit()
    A = E
    E.raw(HEADER.rstrip())
    E.raw(f"; @launch grid=(256,1,1) block=(512,1,1) lds={LDS_BYTES}")
    E.raw('.amdgcn_target "amdgcn-amd-amdhsa--gfx950"\n.text')
    E.raw(f".globl {KN}\n.p2align 8\n.type {KN},@function\n{KN}:")

    def srd(r, lo, size):
        A(f"s_mov_b32 s{r}, s{lo}\ns_mov_b32 s{r+1}, s{lo+1}\ns_mov_b32 s{r+2}, {size:#x}\ns_mov_b32 s{r+3}, 0x20000")
    def srdws(): srd(44, 32, W_END)
    def swapadd(v, t, sw, op="add_f32", A=A):
        A(f"v_mov_b32 v{t}, v{v}\nv_permlane{sw}_swap_b32 v{v}, v{t}\nv_{op} v{v}, v{v}, v{t}")
    def allred(v, t, op="add_f32", A=A):
        for kk in (8, 4, 2, 1):
            A(f"v_{op}_dpp v{v}, v{v}, v{v} row_ror:{kk} row_mask:0xf bank_mask:0xf")
        swapadd(v, t, 16, op, A); swapadd(v, t, 32, op, A)
    def red16x(v, t):
        for p in ("row_ror:4", "row_ror:8"):
            A(f"v_add_f32_dpp v{v}, v{v}, v{v} {p} row_mask:0xf bank_mask:0xf")
        swapadd(v, t, 16); swapadd(v, t, 32)
    def rbf(v):
        A(f"v_cvt_pk_bf16_f32 v{v}, v{v}, v{v}\nv_and_b32 v{v}, 0xffff0000, v{v}")
    def rbf2(a, b, A=A):
        A(f"v_cvt_pk_bf16_f32 v{b}, v{a}, v{b}\nv_lshlrev_b32 v{a}, 16, v{b}\nv_and_b32 v{b}, 0xffff0000, v{b}")
    def unpack(dst, src, n):
        for i in range(n):
            A(f"v_lshlrev_b32 v{dst+2*i}, 16, v{src+i}\nv_and_b32 v{dst+2*i+1}, 0xffff0000, v{src+i}")
    def ln_stats(f, n, mb, rd, t, red):
        A(f"v_add_f32 v{mb}, v{f}, v{f+1}\nv_add_f32 v{t+1}, v{f+2}, v{f+3}")
        for j in range(4, n, 2): A(f"v_add_f32 v{mb}, v{mb}, v{f+j}\nv_add_f32 v{t+1}, v{t+1}, v{f+j+1}")
        A(f"v_add_f32 v{mb}, v{mb}, v{t+1}")
        red(mb, t)
        A(f"v_mul_f32 v{mb}, 0x3b000000, v{mb}")
        A(f"v_sub_f32 v{t+1}, v{f}, v{mb}\nv_sub_f32 v{t+2}, v{f+1}, v{mb}\nv_mul_f32 v{rd}, v{t+1}, v{t+1}\nv_mul_f32 v{t}, v{t+2}, v{t+2}")
        for j in range(2, n, 2):
            A(f"v_sub_f32 v{t+1}, v{f+j}, v{mb}\nv_sub_f32 v{t+2}, v{f+j+1}, v{mb}\nv_fmac_f32 v{rd}, v{t+1}, v{t+1}\nv_fmac_f32 v{t}, v{t+2}, v{t+2}")
        A(f"v_add_f32 v{rd}, v{rd}, v{t}")
        red(rd, t)
        A(f"v_mul_f32 v{rd}, 0x3b000000, v{rd}")
        rbf2(mb, rd)
        A(f"v_add_f32 v{rd}, 0x3727c5ac, v{rd}")
        rbf(rd)
        A(f"v_sqrt_f32 v{rd}, v{rd}")
        rbf(rd)
        A(f"v_rcp_f32 v{rd}, v{rd}")
    def ln_apply(f, n, mb, rd, pack=None):
        for j in range(n): A(f"v_sub_f32 v{f+j}, v{f+j}, v{mb}")
        for j in range(0, n, 2): rbf2(f+j, f+j+1)
        for j in range(n): A(f"v_mul_f32 v{f+j}, v{f+j}, v{rd}")
        if pack is not None:
            for j in range(0, n, 2): A(f"v_cvt_pk_bf16_f32 v{pack+j//2}, v{f+j}, v{f+j+1}")
        else:
            for j in range(0, n, 2): rbf2(f+j, f+j+1)
    def masks(mk, t):
        A(f"""v_and_b32 v{t}, 1, v1
        v_lshlrev_b32 v{t}, 4, v{t}
        s_mov_b32 s39, 0xffff
        v_lshlrev_b32_e64 v{t}, v{t}, s39
        v_bfe_u32 v{t+1}, v1, 1, 2""")
        for kk in range(4):
            A(f"v_cmp_eq_u32 vcc, {kk}, v{t+1}\nv_cndmask_b32 v{mk+kk}, 0, v{t}, vcc")
    def stamp(i):
        if stamps: A(f"s_memrealtime s[{80+2*i}:{81+2*i}]")
    def write_stamps(base, n):
        if not stamps: return
        A("s_waitcnt lgkmcnt(0)")
        A("s_mov_b32 s76, s32\ns_mov_b32 s77, s33\ns_mov_b32 s78, 0x20000000\ns_mov_b32 s79, 0x20000")
        A(f"s_lshl_b32 s39, s2, 7\ns_add_u32 s39, s39, {0x10000000 + base*8}")
        A("s_mov_b64 exec, 1\nv_mov_b32 v20, 0")
        for i in range(n):
            A(f"v_mov_b32 v22, s{80+2*i}\nv_mov_b32 v23, s{81+2*i}\nbuffer_store_dwordx2 v[22:23], v20, s[76:79], s39 offen offset:{i*8}\ns_nop 1")
    def tags():
        A("s_add_u32 s4, s6, 1\ns_and_b32 s5, s4, 0xff")
    def check(d, n, a0, a1, grp):
        A(f"v_xor_b32 v{a0}, s5, v{d}\nv_xor_b32 v{a1}, s5, v{d+1}")
        for i in range(2, n):
            a = a0 if i % 2 == 0 else a1
            A(f"v_bitop3_b32 v{a}, v{d+i}, v{a}, s5 bitop3:0xde")
        A(f"v_or_b32 v{a0}, v{a0}, v{a1}\nv_and_b32 v{a0}, 0xff, v{a0}")
        for p in ("quad_perm:[1,0,3,2]", "quad_perm:[2,3,0,1]", "row_half_mirror")[:grp]:
            A(f"v_or_b32_dpp v{a0}, v{a0}, v{a0} {p} row_mask:0xf bank_mask:0xf")
        A(f"v_cmp_ne_u32 vcc, 0, v{a0}")
    lab = [0]
    def poll(loads, d, n, a0, a1, sleep, base_exec="-1", first_issued=False, mode=0, grp=3, local=False):
        if mode:
            if mode == 1:
                for l in loads: A(l)
            A("s_waitcnt vmcnt(0)")
            return
        lab[0] += 1
        L = f"L_pl{lab[0]}"
        A(f"s_mov_b32 s72, {POLL_LIMIT}")
        if not first_issued:
            for l in loads: A(l.replace("sc1", lf) if local else l)
        A(f"{L}:")
        A("s_waitcnt vmcnt(0)")
        check(d, n, a0, a1, grp)
        A(f"s_cbranch_vccz {L}d")
        if sleep: A(f"s_sleep {sleep}")
        A("s_mov_b64 exec, vcc")
        for l in loads: A(l)
        A(f"s_mov_b64 exec, {base_exec}\ns_sub_u32 s72, s72, 1\ns_cbranch_scc0 {L}\ns_waitcnt vmcnt(0)")
        A(f"{L}d:")
    def tred(ds):
        for d in ds: A(f"v_permlane32_swap_b32 v{d}, v{d+2}\nv_permlane32_swap_b32 v{d+1}, v{d+3}")
        for d in ds: A(f"v_add_f32 v{d}, v{d}, v{d+2}\nv_add_f32 v{d+1}, v{d+1}, v{d+3}")
        for d in ds: A(f"v_permlane16_swap_b32 v{d}, v{d+1}")
        for d in ds: A(f"v_add_f32 v{d}, v{d}, v{d+1}")
    def cval():
        A("s_getreg_b32 s7, hwreg(HW_REG_XCC_ID)\ns_and_b32 s7, s7, 15\ns_lshl_b32 s7, s7, 8\ns_or_b32 s7, s7, s5")
    def cload(d, a):
        return f"buffer_load_dwordx4 v[{d}:{d+3}], v{a}, s[44:47], s73 offen {lf}"
    def caddr(a):
        A(f"v_and_b32 v{a}, 0x1f0, v2\ns_lshl_b32 s73, s34, 9\ns_add_u32 s73, s73, {W_C}")
    def census(nm, d, a):
        A(f"s_mov_b32 s72, {cre}\ns_mov_b32 s74, 1")
        A(f"L_{nm}:")
        A(f"""s_waitcnt vmcnt(0)
        v_xor_b32 v{d}, s7, v{d}
        v_bitop3_b32 v{d}, v{d+1}, v{d}, s7 bitop3:0xde
        v_bitop3_b32 v{d}, v{d+2}, v{d}, s7 bitop3:0xde
        v_bitop3_b32 v{d}, v{d+3}, v{d}, s7 bitop3:0xde
        v_cmp_ne_u32 vcc, 0, v{d}
        s_cbranch_vccz L_{nm}d
        s_sleep 8
        {cload(d, a)}
        s_sub_u32 s72, s72, 1
        s_cbranch_scc0 L_{nm}
        s_waitcnt vmcnt(0)
        s_mov_b32 s74, 0""")
        A(f"L_{nm}d:")
        if stamps: A("s_and_b32 s75, s72, 15")
        if force: A(f"s_mov_b32 s74, {force - 1}")
    def lstore(st_):
        lab[0] += 1
        L = f"L_st{lab[0]}"
        A(f"s_cmp_eq_u32 s74, 0\ns_cbranch_scc1 {L}\n{st_}\ns_branch {L}d")
        A(f"{L}:\n{st_} sc1")
        A(f"{L}d:")
    def strip(d, n):
        for i in range(n): A(f"v_and_b32 v{d+i}, 0xffffff00, v{d+i}")
    def tagv(dst, src, ff):
        A(f"v_add_u32 v{dst}, 0x80, v{src}\nv_bfi_b32 v{dst}, v{ff}, s5, v{dst}")

    A("""s_cmp_ge_u32 s2, 256
    s_cbranch_scc1 L_end""")
    if perm == 1: A("s_lshr_b32 s3, s2, 3\ns_and_b32 s2, s2, 7\ns_lshl_b32 s2, s2, 5\ns_or_b32 s2, s2, s3")
    if perm == 2: A("s_cmp_lt_u32 s2, 2\ns_cselect_b32 s3, 1, 0\ns_xor_b32 s2, s2, s3")
    if perm == 3: A("s_lshr_b32 s3, s2, 7\ns_xor_b32 s2, s2, s3")
    stamp(0)
    A("""s_load_dwordx16 s[8:23], s[0:1], 0
    s_load_dwordx8 s[24:31], s[0:1], 64
    s_load_dwordx2 s[32:33], s[0:1], 96
    v_lshrrev_b32 v2, 6, v0
    v_and_b32 v1, 63, v0
    s_and_b32 s34, s2, 7
    v_readfirstlane_b32 s3, v2
    s_lshr_b32 s35, s2, 3
    s_bfe_u32 s36, s35, 0x20001
    s_lshl_b32 s39, s34, 2
    s_add_u32 s36, s36, s39          ; h
    s_xor_b32 s36, s36, HXX
    s_lshr_b32 s37, s35, 3           ; b
    s_and_b32 s38, s35, 1            ; sp
    s_cmp_lt_u32 s3, 4
    s_cbranch_scc1 L_H""".replace("s_xor_b32 s36, s36, HXX", f"s_xor_b32 s36, s36, {hx}" if hx else ""))
    if hk: A(f"s_xor_b32 s36, s36, {hk}")

    T = 8
    Q = 24
    MK = 28
    S = 32
    AO = 40
    ACC = 48
    TMP = 52
    RB = 64
    if sprio: A(f"s_setprio {sprio}")
    A(f"""s_sub_u32 s56, s3, 4
    s_lshl_b32 s57, s37, 5
    s_add_u32 s57, s57, s36
    s_lshl_b32 s57, s57, 20
    s_lshl_b32 s58, s38, 19
    s_add_u32 s57, s57, s58
    s_lshl_b32 s58, s56, 10
    s_add_u32 s57, s57, s58
    s_mov_b32 s59, s57
    v_lshlrev_b32 v2, 4, v1
    s_waitcnt lgkmcnt(0)""")
    srd(40, 10, 0x8000000)
    st = dict(ii=0, ci=0, landed=0, cnt=0)
    def slot(i): return RB + 4 * (i % NS)
    def kcur(): return [kk for (a, kk) in sched if st["ii"] >= a][-1]
    def issue():
        kk = kcur()
        ii = st["ii"]
        if ii >= 256 or ii - st["ci"] >= NS: return False
        if ii - (kk - 1) > st["landed"]:
            A(f"s_waitcnt vmcnt({kk-1})"); st["landed"] = ii - (kk - 1)
        r = slot(ii)
        A(f"buffer_load_dwordx4 v[{r}:{r+3}], v2, s[{40 if ii < 128 else 48}:{43 if ii < 128 else 51}], s59 offen {kvflags}")
        if ii == 127: A("s_mov_b32 s59, s57")
        elif ii < 255: A("s_add_u32 s59, s59, 4096")
        if ii in (qat, woat, m2at, mlat): A(f"v_mov_b32 v6, {ii}\nds_write_b32 v7, v6 offset:{L_PR}")
        st["ii"] += 1; st["cnt"] = 0
        return True
    def landed(i):
        if i >= st["landed"]:
            A(f"s_waitcnt vmcnt({st['ii'] - i - 1})"); st["landed"] = i + 1
    def consumed(i):
        st["ci"] = i + 1
        if i < kcur() or st["ii"] - st["ci"] <= kcur() + dt or i % 2 == 1: issue()
        if st["ii"] - st["ci"] < kcur() + dt: issue()
    def AH(text):
        for t in text.strip().split("\n"):
            A(t); st["cnt"] += 1
            if st["cnt"] >= gap: issue()
    for i in range(npro):
        issue()
        if pst and i in (11, 23, 35): stamp({11: 5, 23: 6, 35: 7}[i])
        if i == kp - 1:
            A("s_barrier")
            srd(48, 12, 0x8000000)
            masks(MK, TMP)
            A(f"""s_mov_b32 s60, 0xaaaaaaaa
            s_mov_b32 s61, 0xaaaaaaaa
            s_mov_b32 s62, 0xcccccccc
            s_mov_b32 s63, 0xcccccccc
            s_mov_b32 s65, {SCALE:#x}
            s_mov_b32 s66, {LOG2E:#x}
            v_and_b32 v3, 15, v1
            v_lshlrev_b32 v3, 4, v3
            s_lshl_b32 s39, s56, 2
            v_mov_b32 v7, s39
            s_mov_b32 s72, {POLL_LIMIT}""")
    stamp(1)
    A("L_QW:")
    A(f"""ds_read_b128 v[{Q}:{Q+3}], v3 offset:{L_Q}
    s_waitcnt lgkmcnt(0)
    v_max3_u32 v{TMP}, v{Q}, v{Q+1}, v{Q+2}
    v_max_u32 v{TMP}, v{TMP}, v{Q+3}
    v_cmp_eq_u32 vcc, -1, v{TMP}
    s_cbranch_vccz L_QD
    s_sleep 1
    s_sub_u32 s72, s72, 1
    s_cbranch_scc0 L_QW""")
    A("L_QD:")
    A(f"v_mov_b32 v5, 0\nds_read_b32 v5, v5 offset:{L_TG}")
    stamp(2)
    for g in range(8):
        pend = None
        for c in range(16):
            i = 16 * g + c
            r = slot(i)
            landed(i)
            A(f"v_dot2_f32_bf16 v{T+c}, v{r}, v{Q}, 0")
            for kk in range(1, 4):
                A(f"v_dot2_f32_bf16 v{T+c}, v{r+kk}, v{Q+kk}, v{T+c}")
            if pend: A(pend)
            consumed(i)
            if c < 8: pend = f"v_add_f32_dpp v{T+c}, v{T+c}, v{T+c} row_ror:8 row_mask:0xf bank_mask:0x3"
            else:     pend = f"v_add_f32_dpp v{T+c-8}, v{T+c}, v{T+c} row_ror:8 row_mask:0xf bank_mask:0xc"
        A(pend)
        for i in range(4): A(f"v_add_f32_dpp v{T+i}, v{T+i}, v{T+i} row_half_mirror row_mask:0xf bank_mask:0x5")
        for i in range(4): A(f"v_add_f32_dpp v{T+i}, v{T+i+4}, v{T+i+4} row_half_mirror row_mask:0xf bank_mask:0xa")
        for i in range(4): A(f"v_add_f32_dpp v{T+i}, v{T+i}, v{T+i} quad_perm:[2,3,0,1] row_mask:0xf bank_mask:0xf")
        for i in range(2): A(f"v_cndmask_b32 v{T+i}, v{T+i}, v{T+i+2}, s[62:63]")
        for i in range(2): A(f"v_add_f32_dpp v{T+i}, v{T+i}, v{T+i} quad_perm:[1,0,3,2] row_mask:0xf bank_mask:0xf")
        A(f"v_cndmask_b32 v{S+g}, v{T}, v{T+1}, s[60:61]")
    stamp(3)
    st["cnt"] = 20
    for j in range(0, 8, 2): rbf2(S+j, S+j+1, AH)
    for j in range(8): AH(f"v_mul_f32 v{S+j}, s65, v{S+j}")
    for j in range(0, 8, 2): rbf2(S+j, S+j+1, AH)
    M = TMP + 2; Lr = TMP + 3; M2 = TMP + 4
    AH(f"""v_max3_f32 v{M}, v{S}, v{S+1}, v{S+2}
    v_max3_f32 v{M}, v{M}, v{S+3}, v{S+4}
    v_max3_f32 v{M}, v{M}, v{S+5}, v{S+6}
    v_max_f32 v{M}, v{M}, v{S+7}""")
    allred(M, TMP, "max_f32", AH)
    AH(f"v_mul_f32 v{M2}, s66, v{M}")
    for j in range(8): AH(f"v_fma_f32 v{S+j}, v{S+j}, s66, -v{M2}")
    for j in range(8): AH(f"v_exp_f32 v{S+j}, v{S+j}")
    AH(f"v_add_f32 v{Lr}, v{S}, v{S+1}")
    for j in range(2, 8): AH(f"v_add_f32 v{Lr}, v{Lr}, v{S+j}")
    for j in range(8): AH(f"v_cvt_pk_bf16_f32 v{S+j}, v{S+j}, v{S+j}")
    allred(Lr, TMP, "add_f32", AH)
    AH(f"""v_min_u32 v{Lr}, -2, v{Lr}
    s_lshl_b32 s39, s56, 3
    v_mov_b32 v{TMP}, s39
    ds_write_b64 v{TMP}, v[{M}:{Lr}] offset:{L_ML}""")
    AH(f"""v_and_b32 v3, 15, v1
    v_lshlrev_b32 v3, 4, v3
    v_lshrrev_b32 v4, 4, v1
    v_lshl_add_u32 v3, v4, 3, v3
    s_lshl_b32 s39, s56, 8
    v_add_u32 v3, s39, v3""")
    def aprep(i):
        g, c = divmod(i, 16)
        for kk in range(4):
            A(f"v_and_b32_dpp v{AO+4*(i%2)+kk}, v{S+g}, v{MK+kk} row_newbcast:{c} row_mask:0xf bank_mask:0xf")
    aprep(0)
    for i in range(128):
        r = slot(128 + i); a = AO + 4 * (i % 2)
        landed(128 + i)
        A(f"v_mfma_f32_16x16x32_bf16 v[{ACC}:{ACC+3}], v[{a}:{a+3}], v[{r}:{r+3}], {'0' if i == 0 else f'v[{ACC}:{ACC+3}]'}")
        if i < 127: aprep(i + 1)
        consumed(128 + i)
    stamp(4)
    A(f"""v_cvt_pk_bf16_f32 v{TMP}, v{ACC}, v{ACC+1}
    v_cvt_pk_bf16_f32 v{TMP+1}, v{ACC+2}, v{ACC+3}
    s_mov_b32 exec_hi, 0
    ds_write_b64 v3, v[{TMP}:{TMP+1}] offset:{L_O}
    s_mov_b64 exec, -1
    s_waitcnt lgkmcnt(0)
    s_barrier
    s_cmp_lg_u32 s56, 0
    s_cbranch_scc1 L_ep""")
    if not pst: stamp(5); stamp(6)
    A(f"""s_and_b32 s39, s35, 6
    s_cmp_lg_u32 s39, 0
    s_cbranch_scc1 L_fend""")
    U = 8
    srdws()
    A(f"""v_readfirstlane_b32 s5, v5
    s_lshl_b32 s67, s34, 1
    s_and_b32 s5, s5, 0xff
    s_add_u32 s67, s67, s38          ; cq
    s_mul_i32 s70, s37, {64*US}
    s_lshl_b32 s39, s67, 7
    s_add_u32 s70, s70, s39
    s_add_u32 s70, s70, {W_U}
    v_lshrrev_b32 v3, 3, v1
    s_mov_b32 s39, {US}
    v_mul_u32_u24 v3, s39, v3
    v_and_b32 v4, 7, v1
    v_lshl_add_u32 v3, v4, 4, v3""")
    for t in range(1, 8): A(f"s_add_u32 s{56+t}, s70, {t*8*US}")
    uloads = [f"buffer_load_dwordx4 v[{U+4*t}:{U+4*t+3}], v3, s[44:47], s{70 if t == 0 else 56+t} offen {ulf}" for t in range(8)]
    for l in uloads: A(l)
    if u4:
        A(f"""v_lshrrev_b32 v5, 4, v1
        v_and_b32 v6, 4, v1
        v_add_u32 v5, v5, v6
        v_and_b32 v6, 3, v1
        v_lshl_add_u32 v4, v5, 2, v6
        v_lshlrev_b32 v4, 1, v4
        v_lshlrev_b32 v6, 2, v6
        v_lshl_add_u32 v5, v5, 5, v6
        ds_read_b32 v44, v5 offset:{L_G}
        ds_read_b32 v45, v5 offset:{L_G+16}""")
    else:
        A(f"""v_lshlrev_b32 v5, 5, v4
        ds_read_b128 v[44:47], v5 offset:{L_G}
        ds_read_b128 v[48:51], v5 offset:{L_G+16}
        v_lshlrev_b32 v4, 3, v4""")
    A(f"""s_lshl_b32 s71, s37, 10
    s_lshl_b32 s39, s67, 6
    s_add_u32 s71, s71, s39""")
    srd(48, 28, 4096)
    if fp:
        X = 64
        A(f"s_mov_b32 s68, 0xff\ns_mov_b32 s69, 0xff\ns_mov_b32 s72, {POLL_LIMIT}\ns_waitcnt vmcnt(0)")
        A("L_fp:")
        for t in range(8):
            A(f"s_bitcmp1_b32 s68, {t}\ns_cbranch_scc0 L_fp{t}")
            for i in range(4): A(f"v_xor_b32 v{X+4*t+i}, s5, v{U+4*t+i}")
            A(f"""v_or3_b32 v40, v{X+4*t}, v{X+4*t+1}, v{X+4*t+2}
            v_bitop3_b32 v40, v40, v{X+4*t+3}, s69 bitop3:0xa8
            v_or_b32_dpp v40, v40, v40 quad_perm:[1,0,3,2] row_mask:0xf bank_mask:0xf
            v_cmp_ne_u32 vcc, 0, v40
            s_bitset0_b32 s68, {t}
            s_cbranch_vccz L_fp{t}
            s_mov_b64 exec, vcc
            {uloads[t]}
            s_mov_b64 exec, -1
            s_bitset1_b32 s68, {t}""")
            A(f"L_fp{t}:")
        A(f"""s_bcnt1_i32_b32 s39, s68
        s_cbranch_scc0 L_fpd
        s_cmp_lt_u32 s39, {fthr}
        s_cbranch_scc1 L_fpn
        s_waitcnt vmcnt(0)""")
        A("L_fpn:")
        if fs2: A(f"s_sleep {fs2}")
        A(f"""s_waitcnt vmcnt({fmax})
        s_sub_u32 s72, s72, 1
        s_cbranch_scc0 L_fp""")
        A("L_fpd:")
        if not pst: stamp(6)
        U = X
        for s_ in (16, 8, 4):
            for i in range(0, s_, 2): A(f"v_pk_add_f32 v[{U+i}:{U+i+1}], v[{U+i}:{U+i+1}], v[{U+s_+i}:{U+s_+i+1}]")
    else:
        poll(uloads, U, 32, 40, 41, fsleep, first_issued=True, mode=2 if "F" in abl else 0)
        if not pst: stamp(6)
        strip(U, 32)
        for s_ in (16, 8, 4):
            for i in range(s_): A(f"v_add_f32 v{U+i}, v{U+i}, v{U+s_+i}")
    if u4:
        tred([U])
        A(f"v_add_f32_dpp v{U}, v{U}, v{U} row_ror:8 row_mask:0xf bank_mask:0xf\ns_waitcnt lgkmcnt(0)")
        rbf(U)
        A(f"v_mul_f32 v{U}, v{U}, v44")
        rbf(U)
        A(f"""v_add_f32 v{U}, v{U}, v45
        v_cvt_pk_bf16_f32 v{U}, v{U}, v{U}
        s_mov_b32 exec_lo, 0x00ff00ff
        s_mov_b32 exec_hi, 0x00ff00ff
        buffer_store_short v{U}, v4, s[48:51], s71 offen {osf}""")
    else:
        for i in range(4): A(f"v_add_f32_dpp v{U+i}, v{U+i}, v{U+i} row_ror:8 row_mask:0xf bank_mask:0xf")
        for sw in (16, 32):
            for i in range(4): A(f"v_mov_b32 v{U+4+i}, v{U+i}")
            for i in range(4): A(f"v_permlane{sw}_swap_b32 v{U+i}, v{U+4+i}")
            for i in range(4): A(f"v_add_f32 v{U+i}, v{U+i}, v{U+4+i}")
        A("s_waitcnt lgkmcnt(0)")
        rbf2(U, U+1); rbf2(U+2, U+3)
        for i in range(4): A(f"v_mul_f32 v{U+i}, v{U+i}, v{44+i}")
        rbf2(U, U+1); rbf2(U+2, U+3)
        for i in range(4): A(f"v_add_f32 v{U+i}, v{U+i}, v{48+i}")
        A(f"""v_cvt_pk_bf16_f32 v{U}, v{U}, v{U+1}
        v_cvt_pk_bf16_f32 v{U+1}, v{U+2}, v{U+3}
        s_mov_b64 exec, 0xff
        buffer_store_dwordx2 v[{U}:{U+1}], v4, s[48:51], s71 offen""")
    A("L_fend:")
    if not pst: stamp(7)
    write_stamps(0, 8)
    A("s_endpgm")
    A("L_ep:")
    A("s_cmp_lg_u32 s56, 1\ns_cbranch_scc1 L_end\ns_cmp_lg_u32 s2, 16\ns_cbranch_scc1 L_end")
    if "e" in abl: A("s_branch L_end")
    srdws()
    A(f"""v_readfirstlane_b32 s4, v5
    s_mov_b32 s39, {US}
    v_mul_u32_u24 v3, s39, v1
    s_and_b32 s5, s4, 0xff""")
    for t in range(4): A(f"s_mov_b32 s{60+t}, {W_U + t*64*US}")
    eloads = [f"buffer_load_dwordx4 v[{U+4*t}:{U+4*t+3}], v3, s[44:47], s{60+t} offen sc1" for t in range(4)]
    poll(eloads, U, 16, 40, 41, 8, grp=0)
    A(f"""v_mov_b32 v{U}, s4
    s_mov_b64 exec, 1
    buffer_store_dword v{U}, off, s[44:47], 0 offset:{W_EP} sc1
    s_endpgm""")

    W = 128
    XR = 8
    MB = 24; RD = 25; TT = 26
    FF = 29
    TR = 30
    TC = 31
    FA = 32
    BI = 36
    A0 = 40
    HACC = 52
    PUB = 68
    F = 72
    AP = 104
    A("L_H:")
    if hprio: A(f"s_setprio {hprio}")
    A(f"""v_lshlrev_b32 v2, 4, v1             ; lane*16
    v_and_b32 v3, 15, v1                  ; n / m
    v_lshrrev_b32 v4, 4, v1               ; g
    v_mov_b32 v{FF}, 0xff
    s_cmp_lg_u32 s3, 0
    s_cbranch_scc1 L_H1""")
    def tissue(fl):
        A(f"buffer_load_dwordx4 v7, s[48:51], s60 offen {fl} lds\ns_add_u32 s60, s60, s61\ns_add_u32 m0, m0, 0x400")
    def tloop(n, nm, depth, fl):
        if n <= 0: return
        A(f"s_mov_b32 s64, {n}")
        A(f"L_{nm}:")
        A(f"s_waitcnt vmcnt({depth-1})")
        tissue(fl)
        A(f"s_sub_u32 s64, s64, 1\ns_cmp_lg_u32 s64, 0\ns_cbranch_scc1 L_{nm}")
    def asel(sreg):
        for r in range(4): A(f"v_mov_b32 v{A0+r}, v{AP+r}")
        for t in range(1, 4):
            A(f"s_cmp_eq_u32 s{sreg}, {t}\ns_cselect_b64 vcc, -1, 0")
            for r in range(4): A(f"v_cndmask_b32 v{A0+r}, v{A0+r}, v{AP+4*t+r}, vcc")
    def amask():
        for ks in range(4):
            A(f"s_mov_b32 vcc_lo, {0x000f000f << (4*ks):#x}\ns_mov_b32 vcc_hi, {0x000f000f << (4*ks):#x}")
            for r in range(4): A(f"v_cndmask_b32 v{XR+4*ks+r}, 0, v{A0+r}, vcc")
    def frags(second):
        for ks in range(4):
            for cb in range(4):
                r = W + 4 * (4*ks + cb)
                A(f"ds_read_b64_tr_b16 v[{r}:{r+1}], v{FA} offset:{L_T+ks*4096+cb*8}")
                A(f"ds_read_b64_tr_b16 v[{r+2}:{r+3}], v{FA} offset:{L_T+ks*4096+cb*8+second}")
        A("s_waitcnt lgkmcnt(0)")
    def gemv(soff, drop, local=False, pre=None):
        for ks in range(4):
            for cb in range(4):
                r = W + 4 * (4*ks + cb); d = HACC + 4*cb; a = XR + 4*ks
                A(f"v_mfma_f32_16x16x32_bf16 v[{d}:{d+3}], v[{a}:{a+3}], v[{r}:{r+3}], {'0' if ks == 0 else f'v[{d}:{d+3}]'}")
        tred([HACC + 4*cb for cb in range(4)])
        for cb in range(4): tagv(PUB+cb, HACC+4*cb, FF)
        st_ = f"buffer_store_dwordx4 v[{PUB}:{PUB+3}], v2, s[44:47], s{soff} offen"
        if pre: pre()
        if drop: return
        if local: lstore(st_)
        else: A(st_ + " sc1")
    def ldswait(nm, rd, cmp, sl=8):
        A(f"s_mov_b32 s72, {POLL_LIMIT}")
        A(f"L_{nm}:")
        A(f"""{rd}
        s_waitcnt lgkmcnt(0)
        {cmp}
        s_cbranch_vccz L_{nm}d
        s_sleep {sl}
        s_sub_u32 s72, s72, 1
        s_cbranch_scc0 L_{nm}""")
        A(f"L_{nm}d:")
    def prwait(nm, at, sl=8):
        A(f"v_mov_b32 v{TT}, 0")
        ldswait(nm, f"ds_read_b32 v{TT+1}, v{TT} offset:{L_PR}", f"v_cmp_gt_u32 vcc, {at}, v{TT+1}", sl)
    def wowaitf(nm):
        A(f"v_and_b32 v{TT}, 1, v1\nv_lshlrev_b32 v{TT}, 2, v{TT}")
        ldswait(nm, f"ds_read_b32 v{TT+1}, v{TT} offset:{L_WF}", f"v_cmp_eq_u32 vcc, 0, v{TT+1}")
    A(f"""s_lshl_b32 s57, s36, 2
    s_add_u32 s57, s57, s37
    s_lshl_b32 s57, s57, 1
    s_add_u32 s57, s57, s38
    s_mov_b32 m0, {L_T}
    s_lshl_b32 s60, s37, 20
    s_lshl_b32 s39, s36, 8
    s_add_u32 s60, s60, s39
    s_lshl_b32 s39, s38, 7
    s_add_u32 s60, s60, s39
    s_mov_b32 s61, {8*8192}
    v_lshrrev_b32 v{TR}, 3, v1
    v_and_b32 v{TC}, 7, v1
    v_lshlrev_b32 v{TC}, 4, v{TC}
    v_lshl_add_u32 v7, v{TR}, 13, v{TC}
    v_and_b32 v{FA+1}, 3, v1              ; b / c
    v_lshlrev_b32 v5, 10, v{FA+1}
    v_bfe_u32 v{FA+2}, v1, 2, 2           ; q4 / r
    v_lshl_add_u32 v5, v{FA+2}, 6, v5
    v_lshl_add_u32 v5, v4, 4, v5
    s_waitcnt lgkmcnt(0)""")
    srd(40, 8, 4096)
    srd(48, 14, 0 if "q" in abl else 0x400000)
    A(f"s_load_dword s6, s[32:33], {W_EP}")
    for t in range(4): A(f"buffer_load_dwordx4 v[{XR+4*t}:{XR+4*t+3}], v5, s[40:43], 0 offen offset:{t*256}")
    kq0 = min(kq, kqb)
    for i in range(kq0): tissue(wflags)
    A("s_barrier")
    for i in range(kq - kq0): tissue(wflags)
    srdws()
    A(f"""s_mul_i32 s57, s57, {QS}
    s_add_u32 s57, s57, {W_Q}
    v_lshl_add_u32 v{FA}, v4, 3, v{FA+2}
    v_lshlrev_b32 v{FA}, 7, v{FA}
    v_lshl_add_u32 v{FA}, v{FA+1}, 5, v{FA}
    s_waitcnt vmcnt({kq})""")
    unpack(F, XR, 16)
    ln_stats(F, 32, MB, RD, TT, red16x)
    ln_apply(F, 32, MB, RD, pack=AP)
    tloop(16 - kq, "tq", kq, wflags)
    caddr(6)
    if cpos == 0: A(cload(BI, 6))
    asel(37)
    amask()
    A(f"s_waitcnt vmcnt({1-cpos}) lgkmcnt(0)")
    if cpos == 1: A(cload(BI, 6))
    tags()
    cval()
    frags(512)
    gemv(57, "P" in abl, True, lambda: census("c0", BI, 6))
    stamp(1)
    if "A" in abl: A("s_branch L_tr")
    A(f"""s_mov_b32 m0, {L_T}
    s_cmp_eq_u32 s34, 7
    s_cbranch_scc1 L_tr
    s_cmp_ge_u32 s37, 2
    s_cbranch_scc1 L_m2
    s_lshl_b32 s62, s34, 4
    s_add_u32 s62, s62, s35
    s_and_b32 s63, s62, 3
    s_mul_i32 s60, s63, {128*3584}
    s_lshr_b32 s39, s62, 2
    s_lshl_b32 s39, s39, 7
    s_add_u32 s60, s60, s39
    s_mov_b32 s61, {8*3584}
    s_mov_b32 s39, 3584
    v_mad_u32_u24 v7, v{TR}, s39, v{TC}""")
    srd(48, 20, 0 if "1" in abl else 512*1792*2)
    for i in range(km): tissue(mflags)
    unpack(F, AP, 16)
    ln_stats(F, 32, MB, RD, TT, red16x)
    asel(63)
    unpack(F, A0, 4)
    ln_apply(F, 8, MB, RD, pack=A0)
    amask()
    tloop(16 - km, "t1", km, mflags)
    A(f"""s_mul_i32 s62, s62, {HS}
    s_add_u32 s62, s62, {W_H}
    s_waitcnt vmcnt(0)""")
    frags(512)
    gemv(62, "S" in abl, True)
    stamp(2)
    A("s_branch L_tr")
    A("L_m2:")
    srd(48, 24, 0 if "2" in abl else 1792*1024)
    srd(68, 22, 1792*2)
    A(f"""s_lshl_b32 s62, s34, 1
    s_and_b32 s39, s37, 1
    s_add_u32 s62, s62, s39               ; ks2
    s_add_u32 s63, s35, {c2}
    s_and_b32 s63, s63, 7                 ; cb2
    s_lshl_b32 s60, s62, 17
    s_lshl_b32 s39, s63, 7
    s_add_u32 s60, s60, s39
    s_mov_b32 s61, 0x2000
    v_lshl_add_u32 v7, v{TR}, 10, v{TC}
    v_lshrrev_b32 v5, 1, v4
    v_and_b32 v6, 1, v4
    v_lshlrev_b32 v6, 1, v6
    v_lshl_add_u32 v6, v5, 4, v6          ; 16(g>>1) + 2(g&1)
    v_lshl_add_u32 v{FA}, v{FA+2}, 2, v6
    v_lshlrev_b32 v{FA}, 7, v{FA}
    v_lshl_add_u32 v{FA}, v{FA+1}, 5, v{FA}
    v_lshl_add_u32 v6, v{FA+2}, 5, v6
    v_lshlrev_b32 v6, 1, v6
    s_lshl_b32 s39, s62, 8""")
    for r in range(4): A(f"buffer_load_dword v{BI+r}, v6, s[68:71], s39 offen offset:{8*r}")
    tloop(16, "t2", km, mflags)
    A(f"""s_mul_i32 s56, s62, {8*HS}
    s_add_u32 s56, s56, {W_H}
    s_add_u32 s57, s56, {HS}
    s_add_u32 s58, s56, {2*HS}
    s_add_u32 s59, s56, {3*HS}
    s_mov_b32 s39, {4*HS}
    v_lshlrev_b32 v7, 8, v{FA+1}
    v_lshl_add_u32 v7, v4, 5, v7
    v_bfe_u32 v5, v1, 2, 1
    v_lshl_add_u32 v7, v5, 7, v7         ; b*256 + (q4&1)*128 + g*32
    v_bfe_u32 v5, v1, 3, 1
    v_mad_u32_u24 v5, v5, s39, v7
    s_lshl_b32 s62, s62, 3
    s_add_u32 s62, s62, s63
    s_mul_i32 s62, s62, {GS}
    s_add_u32 s62, s62, {W_G}
    s_waitcnt vmcnt(0)""")
    frags(128)
    prwait("wm", m2at, 16)
    hloads = [f"buffer_load_dwordx4 v[{F+4*t}:{F+4*t+3}], v5, s[44:47], s{56+t//2} offen offset:{16*(t%2)} sc1" for t in range(8)]
    poll(hloads, F, 32, TT, TT+1, psleep, mode=2 if "L" in abl else 1 if "S" in abl else 0, grp=0, local=True)
    strip(F, 32)
    for s_ in (16, 8):
        for i in range(s_): A(f"v_add_f32 v{F+i}, v{F+i}, v{F+s_+i}")
    for j in range(0, 8, 2): rbf2(F+j, F+j+1)
    for r in range(4): A(f"v_lshlrev_b32 v{F+8+r}, 16, v{BI+r}\nv_and_b32 v{F+12+r}, 0xffff0000, v{BI+r}")
    for j in range(8): A(f"v_add_f32 v{F+j}, v{F+j}, v{F+8+j}")
    for j in range(0, 8, 2): rbf2(F+j, F+j+1)
    cg = -2.0 * 1.4426950408889634 * 0.7978845608028654
    for ins in ("v_mul_f32 v{t}, v{x}, v{x}", f"v_mul_f32 v{{t}}, {f2u(0.044715):#x}, v{{t}}", "v_add_f32 v{t}, 1.0, v{t}", "v_mul_f32 v{t}, v{t}, v{x}",
                f"v_mul_f32 v{{t}}, {f2u(cg):#x}, v{{t}}", "v_exp_f32 v{t}, v{t}", "v_add_f32 v{t}, 1.0, v{t}", "v_rcp_f32 v{t}, v{t}", "v_mul_f32 v{x}, v{x}, v{t}"):
        for j in range(8): A(ins.format(t=F+8+j, x=F+j))
    for r in range(4): A(f"v_cvt_pk_bf16_f32 v{A0+r}, v{F+2*r}, v{F+2*r+1}")
    amask()
    gemv(62, "S" in abl or "G" in abl)
    stamp(2)
    A("s_branch L_tr")
    A("L_H1:")
    A(f"""v_mov_b32 v{TT}, -1
    v_mov_b32 v{TT+1}, 0
    v_lshlrev_b32 v7, 2, v1
    ds_write_b32 v7, v{TT} offset:{L_Q}
    s_mov_b64 exec, 0xff
    ds_write_b32 v7, v{TT} offset:{L_ML}
    ds_write_b32 v7, v{TT+1} offset:{L_WF}
    s_mov_b64 exec, -1
    s_waitcnt lgkmcnt(0)
    s_load_dword s6, s[32:33], {W_EP}
    s_barrier""")
    srd(40, 8, 4096)
    srdws()
    A("s_cmp_lg_u32 s3, 1\ns_cbranch_scc1 L_wo")
    caddr(FA)
    A("s_lshl_b32 s39, s35, 4\ns_add_u32 s39, s39, s73\ns_waitcnt lgkmcnt(0)")
    tags()
    cval()
    for j in range(4): A(f"v_mov_b32 v{PUB+j}, s7")
    A(f"s_mov_b64 exec, 1\nbuffer_store_dwordx4 v[{PUB}:{PUB+3}], off, s[44:47], s39\ns_mov_b64 exec, -1")
    G = F
    A(f"""v_mov_b32 v{TT}, s4
    ds_write_b32 v{TT+1}, v{TT} offset:{L_TG}
    s_mul_i32 s60, s36, {8*QS}
    s_lshl_b32 s39, s37, 8
    s_add_u32 s60, s60, s39
    s_add_u32 s60, s60, {W_Q}
    s_add_u32 s61, s60, {QS}
    s_mov_b32 s39, {2*QS}
    v_lshlrev_b32 v5, 4, v3
    v_mad_u32_u24 v7, v4, s39, v5
    v_bfe_u32 v5, v1, 2, 2
    v_and_b32 v6, 3, v1
    v_lshl_add_u32 v6, v5, 4, v6
    v_lshl_add_u32 v6, v4, 2, v6
    v_lshlrev_b32 v6, 1, v6""")
    prwait("qw", qat, 4)
    poll([f"buffer_load_dwordx4 v[{G+4*t}:{G+4*t+3}], v7, s[44:47], s{60+t} offen sc1" for t in range(2)], G, 8, TT, TT+1, 8, mode=1 if "P" in abl else 0, local=True)
    strip(G, 8)
    tred([G, G+4])
    A(f"""v_cvt_pk_bf16_f32 v{G}, v{G}, v{G+4}
    v_mov_b32 v{G+1}, 0xfffefffe
    v_pk_min_u16 v{G}, v{G}, v{G+1}
    ds_write_b16 v6, v{G} offset:{L_Q}
    ds_write_b16_d16_hi v6, v{G} offset:{L_Q+128}""")
    stamp(1)
    A(cload(BI, FA))
    census("c1", BI, FA)
    if "m" in abl: A("s_branch L_ml2")
    A(f"""s_lshl_b32 s63, s37, 5
    s_add_u32 s63, s63, s36
    s_mul_i32 s63, s63, {MLS}
    s_add_u32 s63, s63, {W_ML}
    s_lshl_b32 s39, s38, {mlw}
    s_add_u32 s66, s63, s39""")
    A(f"v_and_b32 v6, 16, v2\ns_mov_b64 exec, {(1 << (1 << (mlw - 4))) - 1:#x}")
    ldswait("mw", f"ds_read_b128 v[{XR}:{XR+3}], v6 offset:{L_ML}", f"v_max_u32 v{TT}, v{XR+1}, v{XR+3}\nv_cmp_eq_u32 vcc, -1, v{TT}", 16)
    for j in range(4): A(f"v_bfi_b32 v{PUB+j}, v{FF}, s5, v{XR+j}")
    lstore(f"buffer_store_dwordx4 v[{PUB}:{PUB+3}], v2, s[44:47], s66 offen")
    A(f"""s_mov_b64 exec, 0xff
    v_and_b32 v6, 3, v1
    v_lshlrev_b32 v6, 3, v6
    v_lshrrev_b32 v{TT}, 2, v1
    v_lshl_add_u32 v6, v{TT}, {mlw}, v6""")
    prwait("mg", mlat, 16)
    poll([f"buffer_load_dwordx2 v[{XR}:{XR+1}], v6, s[44:47], s63 offen sc1"], XR, 2, TT, TT+1, psleep, base_exec="0xff", local=True)
    strip(XR, 2)
    A(f"""v_max_f32_dpp v{TT}, v{XR}, v{XR} quad_perm:[1,0,3,2] row_mask:0xf bank_mask:0xf
    v_max_f32_dpp v{TT}, v{TT}, v{TT} quad_perm:[2,3,0,1] row_mask:0xf bank_mask:0xf
    v_max_f32_dpp v{TT}, v{TT}, v{TT} row_half_mirror row_mask:0xf bank_mask:0xf
    v_sub_f32 v{XR}, v{XR}, v{TT}
    v_mul_f32 v{XR}, {LOG2E:#x}, v{XR}
    v_exp_f32 v{XR}, v{XR}
    v_mul_f32 v{TT}, v{XR}, v{XR+1}
    v_add_f32_dpp v{TT}, v{TT}, v{TT} quad_perm:[1,0,3,2] row_mask:0xf bank_mask:0xf
    v_add_f32_dpp v{TT}, v{TT}, v{TT} quad_perm:[2,3,0,1] row_mask:0xf bank_mask:0xf
    v_add_f32_dpp v{TT}, v{TT}, v{TT} row_half_mirror row_mask:0xf bank_mask:0xf
    v_rcp_f32 v{TT}, v{TT}
    v_mul_f32 v{XR}, v{XR}, v{TT}
    v_and_b32 v6, 3, v1
    v_lshlrev_b32 v6, 2, v6
    s_lshl_b32 s39, s38, 2
    s_lshl_b32 s64, 0xf, s39
    s_mov_b32 s65, 0
    s_mov_b64 exec, s[64:65]
    ds_write_b32 v6, v{XR} offset:{L_C}
    s_mov_b64 exec, -1""")
    A("L_ml2:")
    stamp(2)
    if "g" in abl or "A" in abl: A("s_branch L_tr")
    A(f"""s_and_b32 s39, s35, 6
    s_cmp_lg_u32 s39, 0
    s_cbranch_scc1 L_tr""")
    srd(68, 26, 1024)
    A(f"""s_lshl_b32 s67, s34, 1
    s_add_u32 s67, s67, s38          ; cq
    s_lshl_b32 s58, s67, 6
    s_lshl_b32 s39, s37, 10
    s_add_u32 s59, s58, s39
    s_mul_i32 s60, s34, {GS}
    s_lshl_b32 s39, s37, 8
    s_add_u32 s60, s60, s39
    s_lshl_b32 s39, s38, 7
    s_add_u32 s60, s60, s39
    s_add_u32 s60, s60, {W_G}
    s_add_u32 s61, s60, {48*GS}
    v_and_b32 v6, 7, v1
    v_lshlrev_b32 v5, 3, v6
    buffer_load_dwordx2 v[{XR}:{XR+1}], v5, s[68:71], s58 offen
    buffer_load_dwordx2 v[{XR+2}:{XR+3}], v5, s[40:43], s59 offen
    v_lshrrev_b32 v7, 3, v1
    v_lshlrev_b32 v5, 4, v6
    s_mov_b32 s39, {8*GS}
    v_mad_u32_u24 v7, v7, s39, v5""")
    gloads = [f"buffer_load_dwordx4 v[{G+4*t}:{G+4*t+3}], v7, s[44:47], s{60+t} offen sc1" for t in range(2)]
    poll(gloads, G, 8, TT, TT+1, psleep, mode=2 if "L" in abl or "G" in abl else 1 if "S" in abl else 0)
    strip(G, 8)
    for i in range(4): A(f"v_add_f32_dpp v{G+i}, v{G+4+i}, v{G+i} quad_perm:[0,1,2,3] row_mask:0xe bank_mask:0xf")
    for i in range(4): A(f"v_add_f32_dpp v{G+i}, v{G+i}, v{G+i} row_ror:8 row_mask:0xf bank_mask:0xf")
    tred([G])
    A(f"""v_bfe_u32 v5, v1, 2, 1
    v_and_b32 v7, 3, v1
    v_lshl_add_u32 v7, v5, 4, v7
    v_lshl_add_u32 v7, v4, 2, v7
    v_lshlrev_b32 v7, 2, v7
    ds_write_b32 v7, v{G} offset:{L_GT}
    v_lshlrev_b32 v7, 4, v6
    s_waitcnt lgkmcnt(0)
    ds_read_b128 v[{G}:{G+3}], v7 offset:{L_GT}
    s_waitcnt lgkmcnt(0)""")
    rbf2(G, G+1); rbf2(G+2, G+3)
    unpack(G+4, XR, 2)
    for i in range(4): A(f"v_add_f32 v{G+i}, v{G+i}, v{G+4+i}")
    rbf2(G, G+1); rbf2(G+2, G+3)
    for r in range(4):
        A(f"""v_mul_f32 v{TT}, {LOG2E ^ 0x80000000:#x}, v{G+r}
        v_exp_f32 v{TT}, v{TT}
        v_add_f32 v{TT}, 1.0, v{TT}
        v_rcp_f32 v{TT}, v{TT}
        v_mul_f32 v{G+r}, v{G+r}, v{TT}""")
    rbf2(G, G+1); rbf2(G+2, G+3)
    unpack(G+4, XR+2, 2)
    A(f"""v_lshlrev_b32 v6, 5, v6
    ds_write_b128 v6, v[{G}:{G+3}] offset:{L_G}
    ds_write_b128 v6, v[{G+4}:{G+7}] offset:{L_G+16}
    s_branch L_tr""")
    A("L_wo:")
    srd(48, 16, 0 if "o" in abl else 0x400000)
    A(f"""s_and_b32 s56, s3, 1
    s_lshl_b32 s60, s36, 17
    s_lshl_b32 s39, s56, 10
    s_add_u32 s60, s60, s39
    s_mul_i32 s39, s56, {PITCH}
    s_add_u32 m0, s39, {L_WO}
    s_mov_b32 s64, 64""")
    prwait("ws", woat, 4)
    stamp(1)
    if "w" in abl: A("s_branch L_wo2")
    A("L_wo1:")
    A(f"""s_waitcnt vmcnt({kw-1})
    buffer_load_dwordx4 v2, s[48:51], s60 offen {woflags} lds
    s_add_u32 s60, s60, 0x800
    s_add_u32 m0, m0, {2*PITCH}
    s_sub_u32 s64, s64, 1
    s_cmp_lg_u32 s64, 0
    s_cbranch_scc1 L_wo1""")
    A("L_wo2:")
    ldswait("wq", f"ds_read_b32 v{TT+1}, v7 offset:{L_Q}", f"v_cmp_eq_u32 vcc, -1, v{TT+1}", 4)
    A(f"""v_mov_b32 v{TT}, 0
    ds_read_b32 v{TT}, v{TT} offset:{L_TG}
    s_waitcnt lgkmcnt(0)
    v_readfirstlane_b32 s5, v{TT}
    s_lshl_b32 s39, s56, 2
    s_and_b32 s5, s5, 0xff
    v_mov_b32 v{TT}, s39
    s_waitcnt vmcnt(0)
    ds_write_b32 v{TT}, v{FF} offset:{L_WF}""")
    stamp(2)
    A("L_tr:")
    stamp(3)
    wowaitf("wf")
    stamp(4)
    A(f"""v_bfe_u32 v{TT}, v1, 2, 2
    v_lshl_add_u32 v{TT}, v4, 3, v{TT}
    v_and_b32 v7, 3, v1
    v_lshlrev_b32 v7, {5 if u4 else 3}, v7
    s_mov_b32 s39, {PITCH}
    v_mad_u32_u24 v7, v{TT}, s39, v7
    s_lshl_b32 s39, s3, 8
    s_add_u32 s39, s39, {L_WO}
    v_add_u32 v7, s39, v7
    v_add_u32 v6, {64*PITCH}, v7""")
    for cb in range(8):
        for ks in range(4):
            r = W + 4 * (cb * 4 + ks)
            off = (ks % 2) * 32 * PITCH + ((cb >> 2) * 128 + (cb & 3) * 8 if u4 else cb * 32)
            A(f"ds_read_b64_tr_b16 v[{r}:{r+1}], v{7 if ks < 2 else 6} offset:{off}")
            A(f"ds_read_b64_tr_b16 v[{r+2}:{r+3}], v{7 if ks < 2 else 6} offset:{off+4*PITCH}")
    OA = 72
    CC = 88
    DD = 92
    UU = 44
    A(f"""v_and_b32 v6, 3, v1
    v_lshlrev_b32 v6, 8, v6
    v_lshl_add_u32 v6, v4, 4, v6
    v_mov_b32 v5, 0
    v_lshlrev_b32 v7, 2, v1
    s_lshl_b32 s59, s37, 5
    s_add_u32 s59, s59, s36
    s_lshl_b32 s59, s59, 1
    s_add_u32 s59, s59, s38
    s_mul_i32 s59, s59, {US}
    s_lshl_b32 s39, s3, 9
    s_add_u32 s59, s59, s39
    s_add_u32 s59, s59, {W_U}
    s_waitcnt lgkmcnt(0)""")
    stamp(6)
    A("s_barrier")
    for ks in range(4):
        A(f"ds_read_b128 v[{OA+4*ks}:{OA+4*ks+3}], v6 offset:{L_O+ks*64}")
    A(f"ds_read_b128 v[{CC}:{CC+3}], v5 offset:{L_C}")
    for ks in range(4):
        A(f"s_waitcnt lgkmcnt({4-ks})")
        for cb in range(8):
            r = W + 4 * (cb * 4 + ks)
            d = DD + 4 * cb
            A(f"v_mfma_f32_16x16x32_bf16 v[{d}:{d+3}], v[{OA+4*ks}:{OA+4*ks+3}], v[{r}:{r+3}], {'0' if ks == 0 else f'v[{d}:{d+3}]'}")
    A("s_waitcnt lgkmcnt(0)")
    if u4:
        for r in range(4):
            for cb in range(8):
                A(f"v_{'mul' if r == 0 else 'fmac'}_f32_dpp v{UU+cb%4}, v{DD+4*cb+r}, v{CC+r} quad_perm:[0,1,2,3] row_mask:{0x5 << (cb//4):#x} bank_mask:0xf")
        for j in range(4): A(f"v_add_u32 v{PUB+j}, 0x80, v{UU+j}")
        for j in range(4): A(f"v_bfi_b32 v{PUB+j}, v{FF}, s5, v{PUB+j}")
        if "U" not in abl: A(f"s_mov_b32 exec_hi, 0\nbuffer_store_dwordx4 v[{PUB}:{PUB+3}], v2, s[44:47], s59 offen {usf}")
    else:
        for r in range(4):
            for cb in range(8):
                A(f"v_{'mul' if r == 0 else 'fmac'}_f32_dpp v{UU+cb//4+2*(cb%4)}, v{DD+4*cb+r}, v{CC+r} quad_perm:[0,1,2,3] row_mask:{1<<(cb%4):#x} bank_mask:0xf")
        for j in range(2):
            for gq in range(1, 4):
                A(f"v_mov_b32_dpp v{UU+j}, v{UU+j+2*gq} quad_perm:[0,1,2,3] row_mask:{1<<gq:#x} bank_mask:0xf")
        tagv(PUB, UU, FF); tagv(PUB+1, UU+1, FF)
        if "U" not in abl: A(f"""buffer_store_dword v{PUB}, v7, s[44:47], s59 offen sc1
        buffer_store_dword v{PUB+1}, v7, s[44:47], s59 offen offset:256 sc1""")
    if stamps:
        stamp(7)
        A(f"s_cmp_lg_u32 s3, {hst}\ns_cbranch_scc1 L_end")
        A("s_lshl_b32 s90, s74, 4\ns_add_u32 s90, s90, s75\ns_mov_b32 s91, 0")
        write_stamps(8, 8)
    A("L_end:")
    A("s_endpgm")
    E.raw(f""".section .rodata,"a"
.p2align 6
.amdhsa_kernel {KN}
  .amdhsa_next_free_vgpr 256
  .amdhsa_next_free_sgpr 102
  .amdhsa_accum_offset 256
  .amdhsa_group_segment_fixed_size 0
  .amdhsa_kernarg_size 104
  .amdhsa_user_sgpr_count 2
  .amdhsa_user_sgpr_kernarg_segment_ptr 1
  .amdhsa_system_sgpr_workgroup_id_x 1
  .amdhsa_float_denorm_mode_32 3
.end_amdhsa_kernel""")
    return E.text()

if __name__ == "__main__":
    kw_ = {}
    out = sys.argv[1]
    for a in sys.argv[2:]:
        kk, v = a.split("=")
        kw_[kk] = int(v) if (v.lstrip("-").isdigit() and kk != "abl") else v.replace("+", " ")
    open(out, "w").write(gen(**kw_))
```

```python
import sys, struct
from emit import Emit
KN = "recurrent_scan__mha_block_cached__mixer_channel_mlp__decode_kernel"
HEADER = open("recurrent_scan__mha_block_cached__mixer_channel_mlp__decode.s.ref").read().split("; Override launch")[0]

L_Q  = 0x000
L_WF = 0x100
L_PR = 0x110
L_TG = 0x108
L_GT = 0x140
L_O  = 0x800
L_ML = 0xC00
L_C  = 0xC40
L_G  = 0xC80
L_T  = 0x1000
L_WO = 0x5000
PITCH = 1040
LDS_BYTES = L_WO + 128 * PITCH
W_EP = 0x0
W_C  = 0x1000
LOG2E = 0x3fb8aa3b
SCALE = 0x3db504f3
POLL_LIMIT = 0x20000
def f2u(x): return struct.unpack("<I", struct.pack("<f", x))[0]

def gen(pst=0, k=6, kp=6, NS=48, npro=48, dt=2, kq=16, kqb=4, kw=3, km=8, kvflags="nt", wflags="nt", woflags="nt", mflags="nt", stamps=0, hst=2, abl="",
        sprio=3, hprio=0, fsleep=2, gap=40, hx=0, hk=0, QS=1024, HS=1024, GS=1024, US=2048, pad=0x40000, psleep=32, idle=3, MLS=256, mlw=7, ks="0:5,176:6", u4=1, lf="nt", cre=3, force=0, c2=4, cpos=1, perm=0, ulf="sc1", usf="sc1", osf="", fp=1, fmax=16, fthr=9, fs2=0, esf="", diag=0, wb=0x2000,
        qat=28, woat=40, m2at=56, mlat=166):
    sched = sorted((int(x.split(':')[0]), int(x.split(':')[1])) for x in ks.split(','))
    kp = sched[0][1]
    def up(x): return (x + pad - 1) // pad * pad
    W_H = up(wb); W_G = up(W_H + 112 * HS); W_ML = up(W_G + 112 * GS); W_U = up(W_ML + 128 * MLS); W_Q = up(W_U + 256 * US); W_END = up(W_Q + 256 * QS)
    assert W_END <= 0x20000000
    E = Emit()
    A = E
    E.raw(HEADER.rstrip())
    E.raw(f"; @launch grid=(256,1,1) block=(512,1,1) lds={LDS_BYTES}")
    E.raw('.amdgcn_target "amdgcn-amd-amdhsa--gfx950"\n.text')
    E.raw(f".globl {KN}\n.p2align 8\n.type {KN},@function\n{KN}:")

    def srd(r, lo, size):
        A(f"s_mov_b32 s{r}, s{lo}\ns_mov_b32 s{r+1}, s{lo+1}\ns_mov_b32 s{r+2}, {size:#x}\ns_mov_b32 s{r+3}, 0x20000")
    def srdws(): srd(44, 32, W_END)
    def swapadd(v, t, sw, op="add_f32", A=A):
        A(f"v_mov_b32 v{t}, v{v}\nv_permlane{sw}_swap_b32 v{v}, v{t}\nv_{op} v{v}, v{v}, v{t}")
    def allred(v, t, op="add_f32", A=A):
        for kk in (8, 4, 2, 1):
            A(f"v_{op}_dpp v{v}, v{v}, v{v} row_ror:{kk} row_mask:0xf bank_mask:0xf")
        swapadd(v, t, 16, op, A); swapadd(v, t, 32, op, A)
    def red16x(v, t):
        for p in ("row_ror:4", "row_ror:8"):
            A(f"v_add_f32_dpp v{v}, v{v}, v{v} {p} row_mask:0xf bank_mask:0xf")
        swapadd(v, t, 16); swapadd(v, t, 32)
    def rbf(v):
        A(f"v_cvt_pk_bf16_f32 v{v}, v{v}, v{v}\nv_and_b32 v{v}, 0xffff0000, v{v}")
    def rbf2(a, b, A=A):
        A(f"v_cvt_pk_bf16_f32 v{b}, v{a}, v{b}\nv_lshlrev_b32 v{a}, 16, v{b}\nv_and_b32 v{b}, 0xffff0000, v{b}")
    def unpack(dst, src, n):
        for i in range(n):
            A(f"v_lshlrev_b32 v{dst+2*i}, 16, v{src+i}\nv_and_b32 v{dst+2*i+1}, 0xffff0000, v{src+i}")
    def ln_stats(f, n, mb, rd, t, red):
        A(f"v_add_f32 v{mb}, v{f}, v{f+1}\nv_add_f32 v{t+1}, v{f+2}, v{f+3}")
        for j in range(4, n, 2): A(f"v_add_f32 v{mb}, v{mb}, v{f+j}\nv_add_f32 v{t+1}, v{t+1}, v{f+j+1}")
        A(f"v_add_f32 v{mb}, v{mb}, v{t+1}")
        red(mb, t)
        A(f"v_mul_f32 v{mb}, 0x3b000000, v{mb}")
        A(f"v_sub_f32 v{t+1}, v{f}, v{mb}\nv_sub_f32 v{t+2}, v{f+1}, v{mb}\nv_mul_f32 v{rd}, v{t+1}, v{t+1}\nv_mul_f32 v{t}, v{t+2}, v{t+2}")
        for j in range(2, n, 2):
            A(f"v_sub_f32 v{t+1}, v{f+j}, v{mb}\nv_sub_f32 v{t+2}, v{f+j+1}, v{mb}\nv_fmac_f32 v{rd}, v{t+1}, v{t+1}\nv_fmac_f32 v{t}, v{t+2}, v{t+2}")
        A(f"v_add_f32 v{rd}, v{rd}, v{t}")
        red(rd, t)
        A(f"v_mul_f32 v{rd}, 0x3b000000, v{rd}")
        rbf2(mb, rd)
        A(f"v_add_f32 v{rd}, 0x3727c5ac, v{rd}")
        rbf(rd)
        A(f"v_sqrt_f32 v{rd}, v{rd}")
        rbf(rd)
        A(f"v_rcp_f32 v{rd}, v{rd}")
    def ln_apply(f, n, mb, rd, pack=None):
        for j in range(n): A(f"v_sub_f32 v{f+j}, v{f+j}, v{mb}")
        for j in range(0, n, 2): rbf2(f+j, f+j+1)
        for j in range(n): A(f"v_mul_f32 v{f+j}, v{f+j}, v{rd}")
        if pack is not None:
            for j in range(0, n, 2): A(f"v_cvt_pk_bf16_f32 v{pack+j//2}, v{f+j}, v{f+j+1}")
        else:
            for j in range(0, n, 2): rbf2(f+j, f+j+1)
    def masks(mk, t):
        A(f"""v_and_b32 v{t}, 1, v1
        v_lshlrev_b32 v{t}, 4, v{t}
        s_mov_b32 s39, 0xffff
        v_lshlrev_b32_e64 v{t}, v{t}, s39
        v_bfe_u32 v{t+1}, v1, 1, 2""")
        for kk in range(4):
            A(f"v_cmp_eq_u32 vcc, {kk}, v{t+1}\nv_cndmask_b32 v{mk+kk}, 0, v{t}, vcc")
    def stamp(i):
        if stamps: A(f"s_memrealtime s[{80+2*i}:{81+2*i}]")
    def write_stamps(base, n):
        if not stamps: return
        A("s_waitcnt lgkmcnt(0)")
        A("s_mov_b32 s76, s32\ns_mov_b32 s77, s33\ns_mov_b32 s78, 0x20000000\ns_mov_b32 s79, 0x20000")
        A(f"s_lshl_b32 s39, s2, 7\ns_add_u32 s39, s39, {0x10000000 + base*8}")
        A("s_mov_b64 exec, 1\nv_mov_b32 v20, 0")
        for i in range(n):
            A(f"v_mov_b32 v22, s{80+2*i}\nv_mov_b32 v23, s{81+2*i}\nbuffer_store_dwordx2 v[22:23], v20, s[76:79], s39 offen offset:{i*8}\ns_nop 1")
    def tags():
        A("s_add_u32 s4, s6, 1\ns_and_b32 s5, s4, 0xff")
    def check(d, n, a0, a1, grp):
        A(f"v_xor_b32 v{a0}, s5, v{d}\nv_xor_b32 v{a1}, s5, v{d+1}")
        for i in range(2, n):
            a = a0 if i % 2 == 0 else a1
            A(f"v_bitop3_b32 v{a}, v{d+i}, v{a}, s5 bitop3:0xde")
        A(f"v_or_b32 v{a0}, v{a0}, v{a1}\nv_and_b32 v{a0}, 0xff, v{a0}")
        for p in ("quad_perm:[1,0,3,2]", "quad_perm:[2,3,0,1]", "row_half_mirror")[:grp]:
            A(f"v_or_b32_dpp v{a0}, v{a0}, v{a0} {p} row_mask:0xf bank_mask:0xf")
        A(f"v_cmp_ne_u32 vcc, 0, v{a0}")
    lab = [0]
    def poll(loads, d, n, a0, a1, sleep, base_exec="-1", first_issued=False, mode=0, grp=3, local=False):
        if mode:
            if mode == 1:
                for l in loads: A(l)
            A("s_waitcnt vmcnt(0)")
            return
        lab[0] += 1
        L = f"L_pl{lab[0]}"
        A(f"s_mov_b32 s72, {POLL_LIMIT}")
        if not first_issued:
            for l in loads: A(l.replace("sc1", lf) if local else l)
        A(f"{L}:")
        A("s_waitcnt vmcnt(0)")
        check(d, n, a0, a1, grp)
        A(f"s_cbranch_vccz {L}d")
        if sleep: A(f"s_sleep {sleep}")
        A("s_mov_b64 exec, vcc")
        for l in loads: A(l)
        A(f"s_mov_b64 exec, {base_exec}\ns_sub_u32 s72, s72, 1\ns_cbranch_scc0 {L}\ns_waitcnt vmcnt(0)")
        A(f"{L}d:")
    def tred(ds):
        for d in ds: A(f"v_permlane32_swap_b32 v{d}, v{d+2}\nv_permlane32_swap_b32 v{d+1}, v{d+3}")
        for d in ds: A(f"v_add_f32 v{d}, v{d}, v{d+2}\nv_add_f32 v{d+1}, v{d+1}, v{d+3}")
        for d in ds: A(f"v_permlane16_swap_b32 v{d}, v{d+1}")
        for d in ds: A(f"v_add_f32 v{d}, v{d}, v{d+1}")
    def cval():
        A("s_getreg_b32 s7, hwreg(HW_REG_XCC_ID)\ns_and_b32 s7, s7, 15\ns_lshl_b32 s7, s7, 8\ns_or_b32 s7, s7, s5")
    def cload(d, a):
        return f"buffer_load_dwordx4 v[{d}:{d+3}], v{a}, s[44:47], s73 offen {lf}"
    def caddr(a):
        A(f"v_and_b32 v{a}, 0x1f0, v2\ns_lshl_b32 s73, s34, 9\ns_add_u32 s73, s73, {W_C}")
    def census(nm, d, a):
        A(f"s_mov_b32 s72, {cre}\ns_mov_b32 s74, 1")
        A(f"L_{nm}:")
        A(f"""s_waitcnt vmcnt(0)
        v_xor_b32 v{d}, s7, v{d}
        v_bitop3_b32 v{d}, v{d+1}, v{d}, s7 bitop3:0xde
        v_bitop3_b32 v{d}, v{d+2}, v{d}, s7 bitop3:0xde
        v_bitop3_b32 v{d}, v{d+3}, v{d}, s7 bitop3:0xde
        v_cmp_ne_u32 vcc, 0, v{d}
        s_cbranch_vccz L_{nm}d
        s_sleep 8
        {cload(d, a)}
        s_sub_u32 s72, s72, 1
        s_cbranch_scc0 L_{nm}
        s_waitcnt vmcnt(0)
        s_mov_b32 s74, 0""")
        A(f"L_{nm}d:")
        if stamps: A("s_and_b32 s75, s72, 15")
        if force: A(f"s_mov_b32 s74, {force - 1}")
        if diag and nm == "c1":
            A(f"s_cmp_eq_u32 s74, 1\ns_cbranch_scc1 L_dg\ns_mov_b32 s72, 40")
            A("L_dg0:")
            A("s_sleep 100\ns_sub_u32 s72, s72, 1\ns_cbranch_scc0 L_dg0")
            A("L_dg:")
    def lstore(st_):
        lab[0] += 1
        L = f"L_st{lab[0]}"
        A(f"s_cmp_eq_u32 s74, 0\ns_cbranch_scc1 {L}\n{st_}\ns_branch {L}d")
        A(f"{L}:\n{st_} sc1")
        A(f"{L}d:")
    def strip(d, n):
        for i in range(n): A(f"v_and_b32 v{d+i}, 0xffffff00, v{d+i}")
    def tagv(dst, src, ff):
        A(f"v_add_u32 v{dst}, 0x80, v{src}\nv_bfi_b32 v{dst}, v{ff}, s5, v{dst}")

    A("""s_cmp_ge_u32 s2, 256
    s_cbranch_scc1 L_end""")
    if perm == 1: A("s_lshr_b32 s3, s2, 3\ns_and_b32 s2, s2, 7\ns_lshl_b32 s2, s2, 5\ns_or_b32 s2, s2, s3")
    if perm == 2: A("s_cmp_lt_u32 s2, 2\ns_cselect_b32 s3, 1, 0\ns_xor_b32 s2, s2, s3")
    if perm == 3: A("s_lshr_b32 s3, s2, 7\ns_xor_b32 s2, s2, s3")
    stamp(0)
    A("""s_load_dwordx16 s[8:23], s[0:1], 0
    s_load_dwordx8 s[24:31], s[0:1], 64
    s_load_dwordx2 s[32:33], s[0:1], 96
    v_lshrrev_b32 v2, 6, v0
    v_and_b32 v1, 63, v0
    s_and_b32 s34, s2, 7
    v_readfirstlane_b32 s3, v2
    s_lshr_b32 s35, s2, 3
    s_bfe_u32 s36, s35, 0x20001
    s_lshl_b32 s39, s34, 2
    s_add_u32 s36, s36, s39          ; h
    s_xor_b32 s36, s36, HXX
    s_lshr_b32 s37, s35, 3           ; b
    s_and_b32 s38, s35, 1            ; sp
    s_cmp_lt_u32 s3, 4
    s_cbranch_scc1 L_H""".replace("s_xor_b32 s36, s36, HXX", f"s_xor_b32 s36, s36, {hx}" if hx else ""))
    if hk: A(f"s_xor_b32 s36, s36, {hk}")

    T = 8
    Q = 24
    MK = 28
    S = 32
    AO = 40
    ACC = 48
    TMP = 52
    RB = 64
    if sprio: A(f"s_setprio {sprio}")
    A(f"""s_sub_u32 s56, s3, 4
    s_lshl_b32 s57, s37, 5
    s_add_u32 s57, s57, s36
    s_lshl_b32 s57, s57, 20
    s_lshl_b32 s58, s38, 19
    s_add_u32 s57, s57, s58
    s_lshl_b32 s58, s56, 10
    s_add_u32 s57, s57, s58
    s_mov_b32 s59, s57
    v_lshlrev_b32 v2, 4, v1
    s_waitcnt lgkmcnt(0)""")
    srd(40, 10, 0x8000000)
    st = dict(ii=0, ci=0, landed=0, cnt=0)
    def slot(i): return RB + 4 * (i % NS)
    def kcur(): return [kk for (a, kk) in sched if st["ii"] >= a][-1]
    def issue():
        kk = kcur()
        ii = st["ii"]
        if ii >= 256 or ii - st["ci"] >= NS: return False
        if ii - (kk - 1) > st["landed"]:
            A(f"s_waitcnt vmcnt({kk-1})"); st["landed"] = ii - (kk - 1)
        r = slot(ii)
        A(f"buffer_load_dwordx4 v[{r}:{r+3}], v2, s[{40 if ii < 128 else 48}:{43 if ii < 128 else 51}], s59 offen {kvflags}")
        if ii == 127: A("s_mov_b32 s59, s57")
        elif ii < 255: A("s_add_u32 s59, s59, 4096")
        if ii in (qat, woat, m2at, mlat): A(f"v_mov_b32 v6, {ii}\nds_write_b32 v7, v6 offset:{L_PR}")
        st["ii"] += 1; st["cnt"] = 0
        return True
    def landed(i):
        if i >= st["landed"]:
            A(f"s_waitcnt vmcnt({st['ii'] - i - 1})"); st["landed"] = i + 1
    def consumed(i):
        st["ci"] = i + 1
        if i < kcur() or st["ii"] - st["ci"] <= kcur() + dt or i % 2 == 1: issue()
        if st["ii"] - st["ci"] < kcur() + dt: issue()
    def AH(text):
        for t in text.strip().split("\n"):
            A(t); st["cnt"] += 1
            if st["cnt"] >= gap: issue()
    for i in range(npro):
        issue()
        if pst and i in (11, 23, 35): stamp({11: 5, 23: 6, 35: 7}[i])
        if i == kp - 1:
            A("s_barrier")
            srd(48, 12, 0x8000000)
            masks(MK, TMP)
            A(f"""s_mov_b32 s60, 0xaaaaaaaa
            s_mov_b32 s61, 0xaaaaaaaa
            s_mov_b32 s62, 0xcccccccc
            s_mov_b32 s63, 0xcccccccc
            s_mov_b32 s65, {SCALE:#x}
            s_mov_b32 s66, {LOG2E:#x}
            v_and_b32 v3, 15, v1
            v_lshlrev_b32 v3, 4, v3
            s_lshl_b32 s39, s56, 2
            v_mov_b32 v7, s39
            s_mov_b32 s72, {POLL_LIMIT}""")
    stamp(1)
    A("L_QW:")
    A(f"""ds_read_b128 v[{Q}:{Q+3}], v3 offset:{L_Q}
    s_waitcnt lgkmcnt(0)
    v_max3_u32 v{TMP}, v{Q}, v{Q+1}, v{Q+2}
    v_max_u32 v{TMP}, v{TMP}, v{Q+3}
    v_cmp_eq_u32 vcc, -1, v{TMP}
    s_cbranch_vccz L_QD
    s_sleep 1
    s_sub_u32 s72, s72, 1
    s_cbranch_scc0 L_QW""")
    A("L_QD:")
    A(f"v_mov_b32 v5, 0\nds_read_b32 v5, v5 offset:{L_TG}")
    stamp(2)
    for g in range(8):
        pend = None
        for c in range(16):
            i = 16 * g + c
            r = slot(i)
            landed(i)
            A(f"v_dot2_f32_bf16 v{T+c}, v{r}, v{Q}, 0")
            for kk in range(1, 4):
                A(f"v_dot2_f32_bf16 v{T+c}, v{r+kk}, v{Q+kk}, v{T+c}")
            if pend: A(pend)
            consumed(i)
            if c < 8: pend = f"v_add_f32_dpp v{T+c}, v{T+c}, v{T+c} row_ror:8 row_mask:0xf bank_mask:0x3"
            else:     pend = f"v_add_f32_dpp v{T+c-8}, v{T+c}, v{T+c} row_ror:8 row_mask:0xf bank_mask:0xc"
        A(pend)
        for i in range(4): A(f"v_add_f32_dpp v{T+i}, v{T+i}, v{T+i} row_half_mirror row_mask:0xf bank_mask:0x5")
        for i in range(4): A(f"v_add_f32_dpp v{T+i}, v{T+i+4}, v{T+i+4} row_half_mirror row_mask:0xf bank_mask:0xa")
        for i in range(4): A(f"v_add_f32_dpp v{T+i}, v{T+i}, v{T+i} quad_perm:[2,3,0,1] row_mask:0xf bank_mask:0xf")
        for i in range(2): A(f"v_cndmask_b32 v{T+i}, v{T+i}, v{T+i+2}, s[62:63]")
        for i in range(2): A(f"v_add_f32_dpp v{T+i}, v{T+i}, v{T+i} quad_perm:[1,0,3,2] row_mask:0xf bank_mask:0xf")
        A(f"v_cndmask_b32 v{S+g}, v{T}, v{T+1}, s[60:61]")
    stamp(3)
    st["cnt"] = 20
    for j in range(0, 8, 2): rbf2(S+j, S+j+1, AH)
    for j in range(8): AH(f"v_mul_f32 v{S+j}, s65, v{S+j}")
    for j in range(0, 8, 2): rbf2(S+j, S+j+1, AH)
    M = TMP + 2; Lr = TMP + 3; M2 = TMP + 4
    AH(f"""v_max3_f32 v{M}, v{S}, v{S+1}, v{S+2}
    v_max3_f32 v{M}, v{M}, v{S+3}, v{S+4}
    v_max3_f32 v{M}, v{M}, v{S+5}, v{S+6}
    v_max_f32 v{M}, v{M}, v{S+7}""")
    allred(M, TMP, "max_f32", AH)
    AH(f"v_mul_f32 v{M2}, s66, v{M}")
    for j in range(8): AH(f"v_fma_f32 v{S+j}, v{S+j}, s66, -v{M2}")
    for j in range(8): AH(f"v_exp_f32 v{S+j}, v{S+j}")
    AH(f"v_add_f32 v{Lr}, v{S}, v{S+1}")
    for j in range(2, 8): AH(f"v_add_f32 v{Lr}, v{Lr}, v{S+j}")
    for j in range(8): AH(f"v_cvt_pk_bf16_f32 v{S+j}, v{S+j}, v{S+j}")
    allred(Lr, TMP, "add_f32", AH)
    AH(f"""v_min_u32 v{Lr}, -2, v{Lr}
    s_lshl_b32 s39, s56, 3
    v_mov_b32 v{TMP}, s39
    ds_write_b64 v{TMP}, v[{M}:{Lr}] offset:{L_ML}""")
    AH(f"""v_and_b32 v3, 15, v1
    v_lshlrev_b32 v3, 4, v3
    v_lshrrev_b32 v4, 4, v1
    v_lshl_add_u32 v3, v4, 3, v3
    s_lshl_b32 s39, s56, 8
    v_add_u32 v3, s39, v3""")
    def aprep(i):
        g, c = divmod(i, 16)
        for kk in range(4):
            A(f"v_and_b32_dpp v{AO+4*(i%2)+kk}, v{S+g}, v{MK+kk} row_newbcast:{c} row_mask:0xf bank_mask:0xf")
    aprep(0)
    for i in range(128):
        r = slot(128 + i); a = AO + 4 * (i % 2)
        landed(128 + i)
        A(f"v_mfma_f32_16x16x32_bf16 v[{ACC}:{ACC+3}], v[{a}:{a+3}], v[{r}:{r+3}], {'0' if i == 0 else f'v[{ACC}:{ACC+3}]'}")
        if i < 127: aprep(i + 1)
        consumed(128 + i)
    stamp(4)
    A(f"""v_cvt_pk_bf16_f32 v{TMP}, v{ACC}, v{ACC+1}
    v_cvt_pk_bf16_f32 v{TMP+1}, v{ACC+2}, v{ACC+3}
    s_mov_b32 exec_hi, 0
    ds_write_b64 v3, v[{TMP}:{TMP+1}] offset:{L_O}
    s_mov_b64 exec, -1
    s_waitcnt lgkmcnt(0)
    s_barrier
    s_cmp_lg_u32 s56, 0
    s_cbranch_scc1 L_end""")
    if not pst: stamp(5); stamp(6)
    A(f"""s_and_b32 s39, s35, 6
    s_cmp_lg_u32 s39, 0
    s_cbranch_scc1 L_fend""")
    U = 8
    srdws()
    A(f"""v_readfirstlane_b32 s4, v5
    s_lshl_b32 s67, s34, 1
    s_and_b32 s5, s4, 0xff
    s_add_u32 s67, s67, s38          ; cq
    s_mul_i32 s70, s37, {64*US}
    s_lshl_b32 s39, s67, 7
    s_add_u32 s70, s70, s39
    s_add_u32 s70, s70, {W_U}
    v_lshrrev_b32 v3, 3, v1
    s_mov_b32 s39, {US}
    v_mul_u32_u24 v3, s39, v3
    v_and_b32 v4, 7, v1
    v_lshl_add_u32 v3, v4, 4, v3""")
    for t in range(1, 8): A(f"s_add_u32 s{56+t}, s70, {t*8*US}")
    uloads = [f"buffer_load_dwordx4 v[{U+4*t}:{U+4*t+3}], v3, s[44:47], s{70 if t == 0 else 56+t} offen {ulf}" for t in range(8)]
    for l in uloads: A(l)
    if u4:
        A(f"""v_lshrrev_b32 v5, 4, v1
        v_and_b32 v6, 4, v1
        v_add_u32 v5, v5, v6
        v_and_b32 v6, 3, v1
        v_lshl_add_u32 v4, v5, 2, v6
        v_lshlrev_b32 v4, 1, v4
        v_lshlrev_b32 v6, 2, v6
        v_lshl_add_u32 v5, v5, 5, v6
        ds_read_b32 v44, v5 offset:{L_G}
        ds_read_b32 v45, v5 offset:{L_G+16}""")
    else:
        A(f"""v_lshlrev_b32 v5, 5, v4
        ds_read_b128 v[44:47], v5 offset:{L_G}
        ds_read_b128 v[48:51], v5 offset:{L_G+16}
        v_lshlrev_b32 v4, 3, v4""")
    A(f"""s_lshl_b32 s71, s37, 10
    s_lshl_b32 s39, s67, 6
    s_add_u32 s71, s71, s39""")
    srd(48, 28, 4096)
    if fp:
        X = 64
        A(f"s_mov_b32 s68, 0xff\ns_mov_b32 s69, 0xff\ns_mov_b32 s72, {POLL_LIMIT}\ns_waitcnt vmcnt(0)")
        A("L_fp:")
        for t in range(8):
            A(f"s_bitcmp1_b32 s68, {t}\ns_cbranch_scc0 L_fp{t}")
            for i in range(4): A(f"v_xor_b32 v{X+4*t+i}, s5, v{U+4*t+i}")
            A(f"""v_or3_b32 v40, v{X+4*t}, v{X+4*t+1}, v{X+4*t+2}
            v_bitop3_b32 v40, v40, v{X+4*t+3}, s69 bitop3:0xa8
            v_or_b32_dpp v40, v40, v40 quad_perm:[1,0,3,2] row_mask:0xf bank_mask:0xf
            v_cmp_ne_u32 vcc, 0, v40
            s_bitset0_b32 s68, {t}
            s_cbranch_vccz L_fp{t}
            s_mov_b64 exec, vcc
            {uloads[t]}
            s_mov_b64 exec, -1
            s_bitset1_b32 s68, {t}""")
            A(f"L_fp{t}:")
        A(f"""s_bcnt1_i32_b32 s39, s68
        s_cbranch_scc0 L_fpd
        s_cmp_lt_u32 s39, {fthr}
        s_cbranch_scc1 L_fpn
        s_waitcnt vmcnt(0)""")
        A("L_fpn:")
        if fs2: A(f"s_sleep {fs2}")
        A(f"""s_waitcnt vmcnt({fmax})
        s_sub_u32 s72, s72, 1
        s_cbranch_scc0 L_fp""")
        A("L_fpd:")
        if not pst: stamp(6)
        U = X
        for s_ in (16, 8, 4):
            for i in range(0, s_, 2): A(f"v_pk_add_f32 v[{U+i}:{U+i+1}], v[{U+i}:{U+i+1}], v[{U+s_+i}:{U+s_+i+1}]")
    else:
        poll(uloads, U, 32, 40, 41, fsleep, first_issued=True, mode=2 if "F" in abl else 0)
        if not pst: stamp(6)
        strip(U, 32)
        for s_ in (16, 8, 4):
            for i in range(s_): A(f"v_add_f32 v{U+i}, v{U+i}, v{U+s_+i}")
    if u4:
        tred([U])
        A(f"v_add_f32_dpp v{U}, v{U}, v{U} row_ror:8 row_mask:0xf bank_mask:0xf\ns_waitcnt lgkmcnt(0)")
        rbf(U)
        A(f"v_mul_f32 v{U}, v{U}, v44")
        rbf(U)
        A(f"""v_add_f32 v{U}, v{U}, v45
        v_cvt_pk_bf16_f32 v{U}, v{U}, v{U}
        s_mov_b32 exec_lo, 0x00ff00ff
        s_mov_b32 exec_hi, 0x00ff00ff
        buffer_store_short v{U}, v4, s[48:51], s71 offen {osf}""")
    else:
        for i in range(4): A(f"v_add_f32_dpp v{U+i}, v{U+i}, v{U+i} row_ror:8 row_mask:0xf bank_mask:0xf")
        for sw in (16, 32):
            for i in range(4): A(f"v_mov_b32 v{U+4+i}, v{U+i}")
            for i in range(4): A(f"v_permlane{sw}_swap_b32 v{U+i}, v{U+4+i}")
            for i in range(4): A(f"v_add_f32 v{U+i}, v{U+i}, v{U+4+i}")
        A("s_waitcnt lgkmcnt(0)")
        rbf2(U, U+1); rbf2(U+2, U+3)
        for i in range(4): A(f"v_mul_f32 v{U+i}, v{U+i}, v{44+i}")
        rbf2(U, U+1); rbf2(U+2, U+3)
        for i in range(4): A(f"v_add_f32 v{U+i}, v{U+i}, v{48+i}")
        A(f"""v_cvt_pk_bf16_f32 v{U}, v{U}, v{U+1}
        v_cvt_pk_bf16_f32 v{U+1}, v{U+2}, v{U+3}
        s_mov_b64 exec, 0xff
        buffer_store_dwordx2 v[{U}:{U+1}], v4, s[48:51], s71 offen""")
    A(f"""s_cmp_lg_u32 s2, 0
    s_cbranch_scc1 L_fend
    v_mov_b32 v41, s4
    s_mov_b64 exec, 1
    buffer_store_dword v41, off, s[44:47], 0 offset:{W_EP} {esf}""")
    A("L_fend:")
    if not pst: stamp(7)
    write_stamps(0, 8)
    A("s_endpgm")

    W = 128
    XR = 8
    MB = 24; RD = 25; TT = 26
    FF = 29
    TR = 30
    TC = 31
    FA = 32
    BI = 36
    A0 = 40
    HACC = 52
    PUB = 68
    F = 72
    AP = 104
    A("L_H:")
    if hprio: A(f"s_setprio {hprio}")
    A(f"""v_lshlrev_b32 v2, 4, v1             ; lane*16
    v_and_b32 v3, 15, v1                  ; n / m
    v_lshrrev_b32 v4, 4, v1               ; g
    v_mov_b32 v{FF}, 0xff
    s_cmp_lg_u32 s3, 0
    s_cbranch_scc1 L_H1""")
    def tissue(fl):
        A(f"buffer_load_dwordx4 v7, s[48:51], s60 offen {fl} lds\ns_add_u32 s60, s60, s61\ns_add_u32 m0, m0, 0x400")
    def tloop(n, nm, depth, fl):
        if n <= 0: return
        A(f"s_mov_b32 s64, {n}")
        A(f"L_{nm}:")
        A(f"s_waitcnt vmcnt({depth-1})")
        tissue(fl)
        A(f"s_sub_u32 s64, s64, 1\ns_cmp_lg_u32 s64, 0\ns_cbranch_scc1 L_{nm}")
    def asel(sreg):
        for r in range(4): A(f"v_mov_b32 v{A0+r}, v{AP+r}")
        for t in range(1, 4):
            A(f"s_cmp_eq_u32 s{sreg}, {t}\ns_cselect_b64 vcc, -1, 0")
            for r in range(4): A(f"v_cndmask_b32 v{A0+r}, v{A0+r}, v{AP+4*t+r}, vcc")
    def amask():
        for ks in range(4):
            A(f"s_mov_b32 vcc_lo, {0x000f000f << (4*ks):#x}\ns_mov_b32 vcc_hi, {0x000f000f << (4*ks):#x}")
            for r in range(4): A(f"v_cndmask_b32 v{XR+4*ks+r}, 0, v{A0+r}, vcc")
    def frags(second):
        for ks in range(4):
            for cb in range(4):
                r = W + 4 * (4*ks + cb)
                A(f"ds_read_b64_tr_b16 v[{r}:{r+1}], v{FA} offset:{L_T+ks*4096+cb*8}")
                A(f"ds_read_b64_tr_b16 v[{r+2}:{r+3}], v{FA} offset:{L_T+ks*4096+cb*8+second}")
        A("s_waitcnt lgkmcnt(0)")
    def gemv(soff, drop, local=False, pre=None):
        for ks in range(4):
            for cb in range(4):
                r = W + 4 * (4*ks + cb); d = HACC + 4*cb; a = XR + 4*ks
                A(f"v_mfma_f32_16x16x32_bf16 v[{d}:{d+3}], v[{a}:{a+3}], v[{r}:{r+3}], {'0' if ks == 0 else f'v[{d}:{d+3}]'}")
        tred([HACC + 4*cb for cb in range(4)])
        for cb in range(4): tagv(PUB+cb, HACC+4*cb, FF)
        st_ = f"buffer_store_dwordx4 v[{PUB}:{PUB+3}], v2, s[44:47], s{soff} offen"
        if pre: pre()
        if drop: return
        if local: lstore(st_)
        else: A(st_ + " sc1")
    def ldswait(nm, rd, cmp, sl=8):
        A(f"s_mov_b32 s72, {POLL_LIMIT}")
        A(f"L_{nm}:")
        A(f"""{rd}
        s_waitcnt lgkmcnt(0)
        {cmp}
        s_cbranch_vccz L_{nm}d
        s_sleep {sl}
        s_sub_u32 s72, s72, 1
        s_cbranch_scc0 L_{nm}""")
        A(f"L_{nm}d:")
    def prwait(nm, at, sl=8):
        A(f"v_mov_b32 v{TT}, 0")
        ldswait(nm, f"ds_read_b32 v{TT+1}, v{TT} offset:{L_PR}", f"v_cmp_gt_u32 vcc, {at}, v{TT+1}", sl)
    def wowaitf(nm):
        A(f"v_and_b32 v{TT}, 1, v1\nv_lshlrev_b32 v{TT}, 2, v{TT}")
        ldswait(nm, f"ds_read_b32 v{TT+1}, v{TT} offset:{L_WF}", f"v_cmp_eq_u32 vcc, 0, v{TT+1}")
    A(f"""s_lshl_b32 s57, s36, 2
    s_add_u32 s57, s57, s37
    s_lshl_b32 s57, s57, 1
    s_add_u32 s57, s57, s38
    s_mov_b32 m0, {L_T}
    s_lshl_b32 s60, s37, 20
    s_lshl_b32 s39, s36, 8
    s_add_u32 s60, s60, s39
    s_lshl_b32 s39, s38, 7
    s_add_u32 s60, s60, s39
    s_mov_b32 s61, {8*8192}
    v_lshrrev_b32 v{TR}, 3, v1
    v_and_b32 v{TC}, 7, v1
    v_lshlrev_b32 v{TC}, 4, v{TC}
    v_lshl_add_u32 v7, v{TR}, 13, v{TC}
    v_and_b32 v{FA+1}, 3, v1              ; b / c
    v_lshlrev_b32 v5, 10, v{FA+1}
    v_bfe_u32 v{FA+2}, v1, 2, 2           ; q4 / r
    v_lshl_add_u32 v5, v{FA+2}, 6, v5
    v_lshl_add_u32 v5, v4, 4, v5
    s_waitcnt lgkmcnt(0)""")
    srd(40, 8, 4096)
    srd(48, 14, 0 if "q" in abl else 0x400000)
    for t in range(4): A(f"buffer_load_dwordx4 v[{XR+4*t}:{XR+4*t+3}], v5, s[40:43], 0 offen offset:{t*256}")
    kq0 = min(kq, kqb)
    for i in range(kq0): tissue(wflags)
    A("s_barrier")
    for i in range(kq - kq0): tissue(wflags)
    srdws()
    A(f"""s_mul_i32 s57, s57, {QS}
    s_add_u32 s57, s57, {W_Q}
    v_lshl_add_u32 v{FA}, v4, 3, v{FA+2}
    v_lshlrev_b32 v{FA}, 7, v{FA}
    v_lshl_add_u32 v{FA}, v{FA+1}, 5, v{FA}
    s_waitcnt vmcnt({kq})""")
    unpack(F, XR, 16)
    ln_stats(F, 32, MB, RD, TT, red16x)
    ln_apply(F, 32, MB, RD, pack=AP)
    tloop(16 - kq, "tq", kq, wflags)
    caddr(6)
    if cpos == 0: A(cload(BI, 6))
    asel(37)
    amask()
    A(f"v_mov_b32 v{TT}, 0")
    ldswait("tg", f"ds_read_b64 v[{PUB}:{PUB+1}], v{TT} offset:{L_TG}", f"v_cmp_eq_u32 vcc, 0, v{PUB+1}", 2)
    A(f"v_readfirstlane_b32 s5, v{PUB}\ns_waitcnt vmcnt({1-cpos})")
    if cpos == 1: A(cload(BI, 6))
    A("s_and_b32 s5, s5, 0xff")
    cval()
    frags(512)
    gemv(57, "P" in abl, True, lambda: census("c0", BI, 6))
    stamp(1)
    if "A" in abl: A("s_branch L_tr")
    A(f"""s_mov_b32 m0, {L_T}
    s_cmp_eq_u32 s34, 7
    s_cbranch_scc1 L_tr
    s_cmp_ge_u32 s37, 2
    s_cbranch_scc1 L_m2
    s_lshl_b32 s62, s34, 4
    s_add_u32 s62, s62, s35
    s_and_b32 s63, s62, 3
    s_mul_i32 s60, s63, {128*3584}
    s_lshr_b32 s39, s62, 2
    s_lshl_b32 s39, s39, 7
    s_add_u32 s60, s60, s39
    s_mov_b32 s61, {8*3584}
    s_mov_b32 s39, 3584
    v_mad_u32_u24 v7, v{TR}, s39, v{TC}""")
    srd(48, 20, 0 if "1" in abl else 512*1792*2)
    for i in range(km): tissue(mflags)
    unpack(F, AP, 16)
    ln_stats(F, 32, MB, RD, TT, red16x)
    asel(63)
    unpack(F, A0, 4)
    ln_apply(F, 8, MB, RD, pack=A0)
    amask()
    tloop(16 - km, "t1", km, mflags)
    A(f"""s_mul_i32 s62, s62, {HS}
    s_add_u32 s62, s62, {W_H}
    s_waitcnt vmcnt(0)""")
    frags(512)
    gemv(62, "S" in abl, True)
    stamp(2)
    A("s_branch L_tr")
    A("L_m2:")
    srd(48, 24, 0 if "2" in abl else 1792*1024)
    srd(68, 22, 1792*2)
    A(f"""s_lshl_b32 s62, s34, 1
    s_and_b32 s39, s37, 1
    s_add_u32 s62, s62, s39               ; ks2
    s_add_u32 s63, s35, {c2}
    s_and_b32 s63, s63, 7                 ; cb2
    s_lshl_b32 s60, s62, 17
    s_lshl_b32 s39, s63, 7
    s_add_u32 s60, s60, s39
    s_mov_b32 s61, 0x2000
    v_lshl_add_u32 v7, v{TR}, 10, v{TC}
    v_lshrrev_b32 v5, 1, v4
    v_and_b32 v6, 1, v4
    v_lshlrev_b32 v6, 1, v6
    v_lshl_add_u32 v6, v5, 4, v6          ; 16(g>>1) + 2(g&1)
    v_lshl_add_u32 v{FA}, v{FA+2}, 2, v6
    v_lshlrev_b32 v{FA}, 7, v{FA}
    v_lshl_add_u32 v{FA}, v{FA+1}, 5, v{FA}
    v_lshl_add_u32 v6, v{FA+2}, 5, v6
    v_lshlrev_b32 v6, 1, v6
    s_lshl_b32 s39, s62, 8""")
    for r in range(4): A(f"buffer_load_dword v{BI+r}, v6, s[68:71], s39 offen offset:{8*r}")
    tloop(16, "t2", km, mflags)
    A(f"""s_mul_i32 s56, s62, {8*HS}
    s_add_u32 s56, s56, {W_H}
    s_add_u32 s57, s56, {HS}
    s_add_u32 s58, s56, {2*HS}
    s_add_u32 s59, s56, {3*HS}
    s_mov_b32 s39, {4*HS}
    v_lshlrev_b32 v7, 8, v{FA+1}
    v_lshl_add_u32 v7, v4, 5, v7
    v_bfe_u32 v5, v1, 2, 1
    v_lshl_add_u32 v7, v5, 7, v7         ; b*256 + (q4&1)*128 + g*32
    v_bfe_u32 v5, v1, 3, 1
    v_mad_u32_u24 v5, v5, s39, v7
    s_lshl_b32 s62, s62, 3
    s_add_u32 s62, s62, s63
    s_mul_i32 s62, s62, {GS}
    s_add_u32 s62, s62, {W_G}
    s_waitcnt vmcnt(0)""")
    frags(128)
    prwait("wm", m2at, 16)
    hloads = [f"buffer_load_dwordx4 v[{F+4*t}:{F+4*t+3}], v5, s[44:47], s{56+t//2} offen offset:{16*(t%2)} sc1" for t in range(8)]
    poll(hloads, F, 32, TT, TT+1, psleep, mode=2 if "L" in abl else 1 if "S" in abl else 0, grp=0, local=True)
    strip(F, 32)
    for s_ in (16, 8):
        for i in range(s_): A(f"v_add_f32 v{F+i}, v{F+i}, v{F+s_+i}")
    for j in range(0, 8, 2): rbf2(F+j, F+j+1)
    for r in range(4): A(f"v_lshlrev_b32 v{F+8+r}, 16, v{BI+r}\nv_and_b32 v{F+12+r}, 0xffff0000, v{BI+r}")
    for j in range(8): A(f"v_add_f32 v{F+j}, v{F+j}, v{F+8+j}")
    for j in range(0, 8, 2): rbf2(F+j, F+j+1)
    cg = -2.0 * 1.4426950408889634 * 0.7978845608028654
    for ins in ("v_mul_f32 v{t}, v{x}, v{x}", f"v_mul_f32 v{{t}}, {f2u(0.044715):#x}, v{{t}}", "v_add_f32 v{t}, 1.0, v{t}", "v_mul_f32 v{t}, v{t}, v{x}",
                f"v_mul_f32 v{{t}}, {f2u(cg):#x}, v{{t}}", "v_exp_f32 v{t}, v{t}", "v_add_f32 v{t}, 1.0, v{t}", "v_rcp_f32 v{t}, v{t}", "v_mul_f32 v{x}, v{x}, v{t}"):
        for j in range(8): A(ins.format(t=F+8+j, x=F+j))
    for r in range(4): A(f"v_cvt_pk_bf16_f32 v{A0+r}, v{F+2*r}, v{F+2*r+1}")
    amask()
    gemv(62, "S" in abl or "G" in abl)
    stamp(2)
    A("s_branch L_tr")
    A("L_H1:")
    A(f"""v_mov_b32 v{TT}, -1
    v_mov_b32 v{TT+1}, 0
    v_lshlrev_b32 v7, 2, v1
    ds_write_b32 v7, v{TT} offset:{L_Q}
    s_mov_b64 exec, 0xff
    ds_write_b32 v7, v{TT} offset:{L_ML}
    ds_write_b32 v7, v{TT+1} offset:{L_WF}
    s_mov_b64 exec, -1
    s_waitcnt lgkmcnt(0)
    s_load_dword s6, s[32:33], {W_EP}
    s_barrier""")
    srd(40, 8, 4096)
    srdws()
    A("s_cmp_lg_u32 s3, 1\ns_cbranch_scc1 L_wo")
    caddr(FA)
    A("s_lshl_b32 s39, s35, 4\ns_add_u32 s39, s39, s73\ns_waitcnt lgkmcnt(0)")
    tags()
    cval()
    for j in range(4): A(f"v_mov_b32 v{PUB+j}, s7")
    A(f"s_mov_b64 exec, 1\nbuffer_store_dwordx4 v[{PUB}:{PUB+3}], off, s[44:47], s39\ns_mov_b64 exec, -1")
    G = F
    A(f"""v_mov_b32 v{PUB}, s4
    v_mov_b32 v{PUB+1}, 1
    ds_write_b64 v{TT+1}, v[{PUB}:{PUB+1}] offset:{L_TG}
    s_mul_i32 s60, s36, {8*QS}
    s_lshl_b32 s39, s37, 8
    s_add_u32 s60, s60, s39
    s_add_u32 s60, s60, {W_Q}
    s_add_u32 s61, s60, {QS}
    s_mov_b32 s39, {2*QS}
    v_lshlrev_b32 v5, 4, v3
    v_mad_u32_u24 v7, v4, s39, v5
    v_bfe_u32 v5, v1, 2, 2
    v_and_b32 v6, 3, v1
    v_lshl_add_u32 v6, v5, 4, v6
    v_lshl_add_u32 v6, v4, 2, v6
    v_lshlrev_b32 v6, 1, v6""")
    prwait("qw", qat, 4)
    poll([f"buffer_load_dwordx4 v[{G+4*t}:{G+4*t+3}], v7, s[44:47], s{60+t} offen sc1" for t in range(2)], G, 8, TT, TT+1, 8, mode=1 if "P" in abl else 0, local=True)
    strip(G, 8)
    tred([G, G+4])
    A(f"""v_cvt_pk_bf16_f32 v{G}, v{G}, v{G+4}
    v_mov_b32 v{G+1}, 0xfffefffe
    v_pk_min_u16 v{G}, v{G}, v{G+1}
    ds_write_b16 v6, v{G} offset:{L_Q}
    ds_write_b16_d16_hi v6, v{G} offset:{L_Q+128}""")
    stamp(1)
    A(cload(BI, FA))
    census("c1", BI, FA)
    if "m" in abl: A("s_branch L_ml2")
    A(f"""s_lshl_b32 s63, s37, 5
    s_add_u32 s63, s63, s36
    s_mul_i32 s63, s63, {MLS}
    s_add_u32 s63, s63, {W_ML}
    s_lshl_b32 s39, s38, {mlw}
    s_add_u32 s66, s63, s39""")
    A(f"v_and_b32 v6, 16, v2\ns_mov_b64 exec, {(1 << (1 << (mlw - 4))) - 1:#x}")
    ldswait("mw", f"ds_read_b128 v[{XR}:{XR+3}], v6 offset:{L_ML}", f"v_max_u32 v{TT}, v{XR+1}, v{XR+3}\nv_cmp_eq_u32 vcc, -1, v{TT}", 16)
    for j in range(4): A(f"v_bfi_b32 v{PUB+j}, v{FF}, s5, v{XR+j}")
    lstore(f"buffer_store_dwordx4 v[{PUB}:{PUB+3}], v2, s[44:47], s66 offen")
    A(f"""s_mov_b64 exec, 0xff
    v_and_b32 v6, 3, v1
    v_lshlrev_b32 v6, 3, v6
    v_lshrrev_b32 v{TT}, 2, v1
    v_lshl_add_u32 v6, v{TT}, {mlw}, v6""")
    prwait("mg", mlat, 16)
    poll([f"buffer_load_dwordx2 v[{XR}:{XR+1}], v6, s[44:47], s63 offen sc1"], XR, 2, TT, TT+1, psleep, base_exec="0xff", local=True)
    strip(XR, 2)
    A(f"""v_max_f32_dpp v{TT}, v{XR}, v{XR} quad_perm:[1,0,3,2] row_mask:0xf bank_mask:0xf
    v_max_f32_dpp v{TT}, v{TT}, v{TT} quad_perm:[2,3,0,1] row_mask:0xf bank_mask:0xf
    v_max_f32_dpp v{TT}, v{TT}, v{TT} row_half_mirror row_mask:0xf bank_mask:0xf
    v_sub_f32 v{XR}, v{XR}, v{TT}
    v_mul_f32 v{XR}, {LOG2E:#x}, v{XR}
    v_exp_f32 v{XR}, v{XR}
    v_mul_f32 v{TT}, v{XR}, v{XR+1}
    v_add_f32_dpp v{TT}, v{TT}, v{TT} quad_perm:[1,0,3,2] row_mask:0xf bank_mask:0xf
    v_add_f32_dpp v{TT}, v{TT}, v{TT} quad_perm:[2,3,0,1] row_mask:0xf bank_mask:0xf
    v_add_f32_dpp v{TT}, v{TT}, v{TT} row_half_mirror row_mask:0xf bank_mask:0xf
    v_rcp_f32 v{TT}, v{TT}
    v_mul_f32 v{XR}, v{XR}, v{TT}
    v_and_b32 v6, 3, v1
    v_lshlrev_b32 v6, 2, v6
    s_lshl_b32 s39, s38, 2
    s_lshl_b32 s64, 0xf, s39
    s_mov_b32 s65, 0
    s_mov_b64 exec, s[64:65]
    ds_write_b32 v6, v{XR} offset:{L_C}
    s_mov_b64 exec, -1""")
    A("L_ml2:")
    stamp(2)
    if "g" in abl or "A" in abl: A("s_branch L_tr")
    A(f"""s_and_b32 s39, s35, 6
    s_cmp_lg_u32 s39, 0
    s_cbranch_scc1 L_tr""")
    srd(68, 26, 1024)
    A(f"""s_lshl_b32 s67, s34, 1
    s_add_u32 s67, s67, s38          ; cq
    s_lshl_b32 s58, s67, 6
    s_lshl_b32 s39, s37, 10
    s_add_u32 s59, s58, s39
    s_mul_i32 s60, s34, {GS}
    s_lshl_b32 s39, s37, 8
    s_add_u32 s60, s60, s39
    s_lshl_b32 s39, s38, 7
    s_add_u32 s60, s60, s39
    s_add_u32 s60, s60, {W_G}
    s_add_u32 s61, s60, {48*GS}
    v_and_b32 v6, 7, v1
    v_lshlrev_b32 v5, 3, v6
    buffer_load_dwordx2 v[{XR}:{XR+1}], v5, s[68:71], s58 offen
    buffer_load_dwordx2 v[{XR+2}:{XR+3}], v5, s[40:43], s59 offen
    v_lshrrev_b32 v7, 3, v1
    v_lshlrev_b32 v5, 4, v6
    s_mov_b32 s39, {8*GS}
    v_mad_u32_u24 v7, v7, s39, v5""")
    gloads = [f"buffer_load_dwordx4 v[{G+4*t}:{G+4*t+3}], v7, s[44:47], s{60+t} offen sc1" for t in range(2)]
    poll(gloads, G, 8, TT, TT+1, psleep, mode=2 if "L" in abl or "G" in abl else 1 if "S" in abl else 0)
    strip(G, 8)
    for i in range(4): A(f"v_add_f32_dpp v{G+i}, v{G+4+i}, v{G+i} quad_perm:[0,1,2,3] row_mask:0xe bank_mask:0xf")
    for i in range(4): A(f"v_add_f32_dpp v{G+i}, v{G+i}, v{G+i} row_ror:8 row_mask:0xf bank_mask:0xf")
    tred([G])
    A(f"""v_bfe_u32 v5, v1, 2, 1
    v_and_b32 v7, 3, v1
    v_lshl_add_u32 v7, v5, 4, v7
    v_lshl_add_u32 v7, v4, 2, v7
    v_lshlrev_b32 v7, 2, v7
    ds_write_b32 v7, v{G} offset:{L_GT}
    v_lshlrev_b32 v7, 4, v6
    s_waitcnt lgkmcnt(0)
    ds_read_b128 v[{G}:{G+3}], v7 offset:{L_GT}
    s_waitcnt lgkmcnt(0)""")
    rbf2(G, G+1); rbf2(G+2, G+3)
    unpack(G+4, XR, 2)
    for i in range(4): A(f"v_add_f32 v{G+i}, v{G+i}, v{G+4+i}")
    rbf2(G, G+1); rbf2(G+2, G+3)
    for r in range(4):
        A(f"""v_mul_f32 v{TT}, {LOG2E ^ 0x80000000:#x}, v{G+r}
        v_exp_f32 v{TT}, v{TT}
        v_add_f32 v{TT}, 1.0, v{TT}
        v_rcp_f32 v{TT}, v{TT}
        v_mul_f32 v{G+r}, v{G+r}, v{TT}""")
    rbf2(G, G+1); rbf2(G+2, G+3)
    unpack(G+4, XR+2, 2)
    A(f"""v_lshlrev_b32 v6, 5, v6
    ds_write_b128 v6, v[{G}:{G+3}] offset:{L_G}
    ds_write_b128 v6, v[{G+4}:{G+7}] offset:{L_G+16}
    s_branch L_tr""")
    A("L_wo:")
    srd(48, 16, 0 if "o" in abl else 0x400000)
    A(f"""s_and_b32 s56, s3, 1
    s_lshl_b32 s60, s36, 17
    s_lshl_b32 s39, s56, 10
    s_add_u32 s60, s60, s39
    s_mul_i32 s39, s56, {PITCH}
    s_add_u32 m0, s39, {L_WO}
    s_mov_b32 s64, 64""")
    prwait("ws", woat, 4)
    stamp(1)
    if "w" in abl: A("s_branch L_wo2")
    A("L_wo1:")
    A(f"""s_waitcnt vmcnt({kw-1})
    buffer_load_dwordx4 v2, s[48:51], s60 offen {woflags} lds
    s_add_u32 s60, s60, 0x800
    s_add_u32 m0, m0, {2*PITCH}
    s_sub_u32 s64, s64, 1
    s_cmp_lg_u32 s64, 0
    s_cbranch_scc1 L_wo1""")
    A("L_wo2:")
    ldswait("wq", f"ds_read_b32 v{TT+1}, v7 offset:{L_Q}", f"v_cmp_eq_u32 vcc, -1, v{TT+1}", 4)
    A(f"""v_mov_b32 v{TT}, 0
    ds_read_b32 v{TT}, v{TT} offset:{L_TG}
    s_waitcnt lgkmcnt(0)
    v_readfirstlane_b32 s5, v{TT}
    s_lshl_b32 s39, s56, 2
    s_and_b32 s5, s5, 0xff
    v_mov_b32 v{TT}, s39
    s_waitcnt vmcnt(0)
    ds_write_b32 v{TT}, v{FF} offset:{L_WF}""")
    stamp(2)
    A("L_tr:")
    stamp(3)
    wowaitf("wf")
    stamp(4)
    A(f"""v_bfe_u32 v{TT}, v1, 2, 2
    v_lshl_add_u32 v{TT}, v4, 3, v{TT}
    v_and_b32 v7, 3, v1
    v_lshlrev_b32 v7, {5 if u4 else 3}, v7
    s_mov_b32 s39, {PITCH}
    v_mad_u32_u24 v7, v{TT}, s39, v7
    s_lshl_b32 s39, s3, 8
    s_add_u32 s39, s39, {L_WO}
    v_add_u32 v7, s39, v7
    v_add_u32 v6, {64*PITCH}, v7""")
    for cb in range(8):
        for ks in range(4):
            r = W + 4 * (cb * 4 + ks)
            off = (ks % 2) * 32 * PITCH + ((cb >> 2) * 128 + (cb & 3) * 8 if u4 else cb * 32)
            A(f"ds_read_b64_tr_b16 v[{r}:{r+1}], v{7 if ks < 2 else 6} offset:{off}")
            A(f"ds_read_b64_tr_b16 v[{r+2}:{r+3}], v{7 if ks < 2 else 6} offset:{off+4*PITCH}")
    OA = 72
    CC = 88
    DD = 92
    UU = 44
    A(f"""v_and_b32 v6, 3, v1
    v_lshlrev_b32 v6, 8, v6
    v_lshl_add_u32 v6, v4, 4, v6
    v_mov_b32 v5, 0
    v_lshlrev_b32 v7, 2, v1
    s_lshl_b32 s59, s37, 5
    s_add_u32 s59, s59, s36
    s_lshl_b32 s59, s59, 1
    s_add_u32 s59, s59, s38
    s_mul_i32 s59, s59, {US}
    s_lshl_b32 s39, s3, 9
    s_add_u32 s59, s59, s39
    s_add_u32 s59, s59, {W_U}
    s_waitcnt lgkmcnt(0)""")
    stamp(6)
    A("s_barrier")
    for ks in range(4):
        A(f"ds_read_b128 v[{OA+4*ks}:{OA+4*ks+3}], v6 offset:{L_O+ks*64}")
    A(f"ds_read_b128 v[{CC}:{CC+3}], v5 offset:{L_C}")
    for ks in range(4):
        A(f"s_waitcnt lgkmcnt({4-ks})")
        for cb in range(8):
            r = W + 4 * (cb * 4 + ks)
            d = DD + 4 * cb
            A(f"v_mfma_f32_16x16x32_bf16 v[{d}:{d+3}], v[{OA+4*ks}:{OA+4*ks+3}], v[{r}:{r+3}], {'0' if ks == 0 else f'v[{d}:{d+3}]'}")
    A("s_waitcnt lgkmcnt(0)")
    if u4:
        for r in range(4):
            for cb in range(8):
                A(f"v_{'mul' if r == 0 else 'fmac'}_f32_dpp v{UU+cb%4}, v{DD+4*cb+r}, v{CC+r} quad_perm:[0,1,2,3] row_mask:{0x5 << (cb//4):#x} bank_mask:0xf")
        for j in range(4): A(f"v_add_u32 v{PUB+j}, 0x80, v{UU+j}")
        for j in range(4): A(f"v_bfi_b32 v{PUB+j}, v{FF}, s5, v{PUB+j}")
        if "U" not in abl: A(f"s_mov_b32 exec_hi, 0\nbuffer_store_dwordx4 v[{PUB}:{PUB+3}], v2, s[44:47], s59 offen {usf}")
    else:
        for r in range(4):
            for cb in range(8):
                A(f"v_{'mul' if r == 0 else 'fmac'}_f32_dpp v{UU+cb//4+2*(cb%4)}, v{DD+4*cb+r}, v{CC+r} quad_perm:[0,1,2,3] row_mask:{1<<(cb%4):#x} bank_mask:0xf")
        for j in range(2):
            for gq in range(1, 4):
                A(f"v_mov_b32_dpp v{UU+j}, v{UU+j+2*gq} quad_perm:[0,1,2,3] row_mask:{1<<gq:#x} bank_mask:0xf")
        tagv(PUB, UU, FF); tagv(PUB+1, UU+1, FF)
        if "U" not in abl: A(f"""buffer_store_dword v{PUB}, v7, s[44:47], s59 offen sc1
        buffer_store_dword v{PUB+1}, v7, s[44:47], s59 offen offset:256 sc1""")
    if stamps:
        stamp(7)
        A(f"s_cmp_lg_u32 s3, {hst}\ns_cbranch_scc1 L_end")
        A("s_lshl_b32 s90, s74, 4\ns_add_u32 s90, s90, s75\ns_mov_b32 s91, 0")
        write_stamps(8, 8)
    A("L_end:")
    A("s_endpgm")
    E.raw(f""".section .rodata,"a"
.p2align 6
.amdhsa_kernel {KN}
  .amdhsa_next_free_vgpr 256
  .amdhsa_next_free_sgpr 102
  .amdhsa_accum_offset 256
  .amdhsa_group_segment_fixed_size 0
  .amdhsa_kernarg_size 104
  .amdhsa_user_sgpr_count 2
  .amdhsa_user_sgpr_kernarg_segment_ptr 1
  .amdhsa_system_sgpr_workgroup_id_x 1
  .amdhsa_float_denorm_mode_32 3
.end_amdhsa_kernel""")
    return E.text()

if __name__ == "__main__":
    kw_ = {}
    out = sys.argv[1]
    for a in sys.argv[2:]:
        kk, v = a.split("=")
        kw_[kk] = int(v) if (v.lstrip("-").isdigit() and kk != "abl") else v.replace("+", " ")
    open(out, "w").write(gen(**kw_))
```

```python
import sys, struct
from emit import Emit
KN = "recurrent_scan__mha_block_cached__mixer_channel_mlp__decode_kernel"
HEADER = open("recurrent_scan__mha_block_cached__mixer_channel_mlp__decode.s.ref").read().split("; Override launch")[0]

L_Q  = 0x000
L_WF = 0x100
L_PR = 0x110
L_TG = 0x108
L_KB = 0x120
L_GT = 0x140
L_O  = 0x800
L_ML = 0xC00
L_C  = 0xC40
L_G  = 0xC80
L_T  = 0x1000
L_WO = 0x5000
PITCH = 1040
LDS_BYTES = L_WO + 128 * PITCH
W_EP = 0x0
W_C  = 0x1000
LOG2E = 0x3fb8aa3b
SCALE = 0x3db504f3
POLL_LIMIT = 0x20000
def f2u(x): return struct.unpack("<I", struct.pack("<f", x))[0]

def gen(pst=0, k=6, kp=6, NS=48, npro=48, dt=2, kq=16, kqb=4, kw=3, km=8, kvflags="nt", wflags="nt", woflags="nt", mflags="nt", stamps=0, hst=2, abl="",
        sprio=3, hprio=0, fsleep=2, gap=40, hx=0, hk=0, QS=1024, HS=1024, GS=1024, US=2048, pad=0x40000, psleep=32, idle=3, MLS=256, mlw=7, ks="0:5,176:6", u4=1, lf="nt", cre=3, force=0, c2=4, cpos=1, perm=0, ulf="sc1", usf="sc1", osf="", fp=1, fmax=16, fthr=9, fs2=0, esf="", diag=0, ctl=0, cP=32, cS=2, c0=80, c1=236, c9=250, cmid=160, kb=2, m0=16, gn=4, cD=2, csl=1, cfl="", cstr=128, tau0=232, m1=-1, tA=0, ga=1, gsm=1, pstep=3, pub0=2, glf="nt", cs=8, gi=0, gx=0, gq=8, gws=0, gstr=32, dcal=8, gsk=16, gcm=1, cx=0, rdp=2, wd=0, wst=0, wb=0x2000,
        qat=28, woat=40, m2at=56, mlat=166):
    sched = sorted((int(x.split(':')[0]), int(x.split(':')[1])) for x in ks.split(','))
    kp = sched[0][1]
    def up(x): return (x + pad - 1) // pad * pad
    W_H = up(wb); W_G = up(W_H + 112 * HS); W_ML = up(W_G + 112 * GS); W_U = up(W_ML + 128 * MLS); W_Q = up(W_U + 256 * US); W_GX = up(W_Q + 256 * QS); W_END = up(W_GX + 8 * 16 * gstr)
    assert W_END <= 0x20000000
    E = Emit()
    A = E
    E.raw(HEADER.rstrip())
    E.raw(f"; @launch grid=(256,1,1) block=(512,1,1) lds={LDS_BYTES}")
    E.raw('.amdgcn_target "amdgcn-amd-amdhsa--gfx950"\n.text')
    E.raw(f".globl {KN}\n.p2align 8\n.type {KN},@function\n{KN}:")

    def srd(r, lo, size):
        A(f"s_mov_b32 s{r}, s{lo}\ns_mov_b32 s{r+1}, s{lo+1}\ns_mov_b32 s{r+2}, {size:#x}\ns_mov_b32 s{r+3}, 0x20000")
    def srdws(): srd(44, 32, W_END)
    def swapadd(v, t, sw, op="add_f32", A=A):
        A(f"v_mov_b32 v{t}, v{v}\nv_permlane{sw}_swap_b32 v{v}, v{t}\nv_{op} v{v}, v{v}, v{t}")
    def allred(v, t, op="add_f32", A=A):
        for kk in (8, 4, 2, 1):
            A(f"v_{op}_dpp v{v}, v{v}, v{v} row_ror:{kk} row_mask:0xf bank_mask:0xf")
        swapadd(v, t, 16, op, A); swapadd(v, t, 32, op, A)
    def red16x(v, t):
        for p in ("row_ror:4", "row_ror:8"):
            A(f"v_add_f32_dpp v{v}, v{v}, v{v} {p} row_mask:0xf bank_mask:0xf")
        swapadd(v, t, 16); swapadd(v, t, 32)
    def rbf(v):
        A(f"v_cvt_pk_bf16_f32 v{v}, v{v}, v{v}\nv_and_b32 v{v}, 0xffff0000, v{v}")
    def rbf2(a, b, A=A):
        A(f"v_cvt_pk_bf16_f32 v{b}, v{a}, v{b}\nv_lshlrev_b32 v{a}, 16, v{b}\nv_and_b32 v{b}, 0xffff0000, v{b}")
    def unpack(dst, src, n):
        for i in range(n):
            A(f"v_lshlrev_b32 v{dst+2*i}, 16, v{src+i}\nv_and_b32 v{dst+2*i+1}, 0xffff0000, v{src+i}")
    def ln_stats(f, n, mb, rd, t, red):
        A(f"v_add_f32 v{mb}, v{f}, v{f+1}\nv_add_f32 v{t+1}, v{f+2}, v{f+3}")
        for j in range(4, n, 2): A(f"v_add_f32 v{mb}, v{mb}, v{f+j}\nv_add_f32 v{t+1}, v{t+1}, v{f+j+1}")
        A(f"v_add_f32 v{mb}, v{mb}, v{t+1}")
        red(mb, t)
        A(f"v_mul_f32 v{mb}, 0x3b000000, v{mb}")
        A(f"v_sub_f32 v{t+1}, v{f}, v{mb}\nv_sub_f32 v{t+2}, v{f+1}, v{mb}\nv_mul_f32 v{rd}, v{t+1}, v{t+1}\nv_mul_f32 v{t}, v{t+2}, v{t+2}")
        for j in range(2, n, 2):
            A(f"v_sub_f32 v{t+1}, v{f+j}, v{mb}\nv_sub_f32 v{t+2}, v{f+j+1}, v{mb}\nv_fmac_f32 v{rd}, v{t+1}, v{t+1}\nv_fmac_f32 v{t}, v{t+2}, v{t+2}")
        A(f"v_add_f32 v{rd}, v{rd}, v{t}")
        red(rd, t)
        A(f"v_mul_f32 v{rd}, 0x3b000000, v{rd}")
        rbf2(mb, rd)
        A(f"v_add_f32 v{rd}, 0x3727c5ac, v{rd}")
        rbf(rd)
        A(f"v_sqrt_f32 v{rd}, v{rd}")
        rbf(rd)
        A(f"v_rcp_f32 v{rd}, v{rd}")
    def ln_apply(f, n, mb, rd, pack=None):
        for j in range(n): A(f"v_sub_f32 v{f+j}, v{f+j}, v{mb}")
        for j in range(0, n, 2): rbf2(f+j, f+j+1)
        for j in range(n): A(f"v_mul_f32 v{f+j}, v{f+j}, v{rd}")
        if pack is not None:
            for j in range(0, n, 2): A(f"v_cvt_pk_bf16_f32 v{pack+j//2}, v{f+j}, v{f+j+1}")
        else:
            for j in range(0, n, 2): rbf2(f+j, f+j+1)
    def masks(mk, t):
        A(f"""v_and_b32 v{t}, 1, v1
        v_lshlrev_b32 v{t}, 4, v{t}
        s_mov_b32 s39, 0xffff
        v_lshlrev_b32_e64 v{t}, v{t}, s39
        v_bfe_u32 v{t+1}, v1, 1, 2""")
        for kk in range(4):
            A(f"v_cmp_eq_u32 vcc, {kk}, v{t+1}\nv_cndmask_b32 v{mk+kk}, 0, v{t}, vcc")
    def stamp(i):
        if stamps: A(f"s_memrealtime s[{80+2*i}:{81+2*i}]")
    def write_stamps(base, n):
        if not stamps: return
        A("s_waitcnt lgkmcnt(0)")
        A("s_mov_b32 s76, s32\ns_mov_b32 s77, s33\ns_mov_b32 s78, 0x20000000\ns_mov_b32 s79, 0x20000")
        A(f"s_lshl_b32 s39, s2, 7\ns_add_u32 s39, s39, {0x10000000 + base*8}")
        A("s_mov_b64 exec, 1\nv_mov_b32 v20, 0")
        for i in range(n):
            A(f"v_mov_b32 v22, s{80+2*i}\nv_mov_b32 v23, s{81+2*i}\nbuffer_store_dwordx2 v[22:23], v20, s[76:79], s39 offen offset:{i*8}\ns_nop 1")
    def tags():
        A("s_add_u32 s4, s6, 1\ns_and_b32 s5, s4, 0xff")
    def check(d, n, a0, a1, grp):
        A(f"v_xor_b32 v{a0}, s5, v{d}\nv_xor_b32 v{a1}, s5, v{d+1}")
        for i in range(2, n):
            a = a0 if i % 2 == 0 else a1
            A(f"v_bitop3_b32 v{a}, v{d+i}, v{a}, s5 bitop3:0xde")
        A(f"v_or_b32 v{a0}, v{a0}, v{a1}\nv_and_b32 v{a0}, 0xff, v{a0}")
        for p in ("quad_perm:[1,0,3,2]", "quad_perm:[2,3,0,1]", "row_half_mirror")[:grp]:
            A(f"v_or_b32_dpp v{a0}, v{a0}, v{a0} {p} row_mask:0xf bank_mask:0xf")
        A(f"v_cmp_ne_u32 vcc, 0, v{a0}")
    lab = [0]
    def poll(loads, d, n, a0, a1, sleep, base_exec="-1", first_issued=False, mode=0, grp=3, local=False):
        if mode:
            if mode == 1:
                for l in loads: A(l)
            A("s_waitcnt vmcnt(0)")
            return
        lab[0] += 1
        L = f"L_pl{lab[0]}"
        A(f"s_mov_b32 s72, {POLL_LIMIT}")
        if not first_issued:
            for l in loads: A(l.replace("sc1", lf) if local else l)
        A(f"{L}:")
        A("s_waitcnt vmcnt(0)")
        check(d, n, a0, a1, grp)
        A(f"s_cbranch_vccz {L}d")
        if sleep: A(f"s_sleep {sleep}")
        A("s_mov_b64 exec, vcc")
        for l in loads: A(l)
        A(f"s_mov_b64 exec, {base_exec}\ns_sub_u32 s72, s72, 1\ns_cbranch_scc0 {L}\ns_waitcnt vmcnt(0)")
        A(f"{L}d:")
    def tred(ds):
        for d in ds: A(f"v_permlane32_swap_b32 v{d}, v{d+2}\nv_permlane32_swap_b32 v{d+1}, v{d+3}")
        for d in ds: A(f"v_add_f32 v{d}, v{d}, v{d+2}\nv_add_f32 v{d+1}, v{d+1}, v{d+3}")
        for d in ds: A(f"v_permlane16_swap_b32 v{d}, v{d+1}")
        for d in ds: A(f"v_add_f32 v{d}, v{d}, v{d+1}")
    def cval():
        A("s_getreg_b32 s7, hwreg(HW_REG_XCC_ID)\ns_and_b32 s7, s7, 15\ns_lshl_b32 s7, s7, 8\ns_or_b32 s7, s7, s5")
    def cload(d, a):
        return f"buffer_load_dwordx2 v[{d}:{d+1}], v{a}, s[44:47], s73 offen {lf}"
    def caddr(a):
        A(f"v_and_b32 v{a}, 0x1f0, v2\ns_lshl_b32 s73, s34, 9\ns_add_u32 s73, s73, {W_C}")
    def census(nm, d, a):
        A(f"s_mov_b32 s72, {cre}\ns_mov_b32 s74, 1")
        A(f"L_{nm}:")
        A(f"""s_waitcnt vmcnt(0)
        v_xor_b32 v{d}, s7, v{d}
        v_bitop3_b32 v{d}, v{d+1}, v{d}, s7 bitop3:0xde
        v_cmp_ne_u32 vcc, 0, v{d}
        s_cbranch_vccz L_{nm}d
        s_sleep 8
        {cload(d, a)}
        s_sub_u32 s72, s72, 1
        s_cbranch_scc0 L_{nm}
        s_waitcnt vmcnt(0)
        s_mov_b32 s74, 0""")
        A(f"L_{nm}d:")
        if stamps: A("s_and_b32 s75, s72, 15")
        if force: A(f"s_mov_b32 s74, {force - 1}")
        if diag and nm == "c1":
            A(f"s_cmp_eq_u32 s74, 1\ns_cbranch_scc1 L_dg\ns_mov_b32 s72, 40")
            A("L_dg0:")
            A("s_sleep 100\ns_sub_u32 s72, s72, 1\ns_cbranch_scc0 L_dg0")
            A("L_dg:")
    def lstore(st_):
        lab[0] += 1
        L = f"L_st{lab[0]}"
        A(f"s_cmp_eq_u32 s74, 0\ns_cbranch_scc1 {L}\n{st_}\ns_branch {L}d")
        A(f"{L}:\n{st_} sc1")
        A(f"{L}d:")
    def strip(d, n):
        for i in range(n): A(f"v_and_b32 v{d+i}, 0xffffff00, v{d+i}")
    def tagv(dst, src, ff):
        A(f"v_add_u32 v{dst}, 0x80, v{src}\nv_bfi_b32 v{dst}, v{ff}, s5, v{dst}")

    A("""s_cmp_ge_u32 s2, 256
    s_cbranch_scc1 L_end""")
    if perm == 1: A("s_lshr_b32 s3, s2, 3\ns_and_b32 s2, s2, 7\ns_lshl_b32 s2, s2, 5\ns_or_b32 s2, s2, s3")
    if perm == 2: A("s_cmp_lt_u32 s2, 2\ns_cselect_b32 s3, 1, 0\ns_xor_b32 s2, s2, s3")
    if perm == 3: A("s_lshr_b32 s3, s2, 7\ns_xor_b32 s2, s2, s3")
    stamp(0)
    A("""s_load_dwordx16 s[8:23], s[0:1], 0
    s_load_dwordx8 s[24:31], s[0:1], 64
    s_load_dwordx2 s[32:33], s[0:1], 96
    v_lshrrev_b32 v2, 6, v0
    v_and_b32 v1, 63, v0
    s_and_b32 s34, s2, 7
    v_readfirstlane_b32 s3, v2
    s_lshr_b32 s35, s2, 3
    s_bfe_u32 s36, s35, 0x20001
    s_lshl_b32 s39, s34, 2
    s_add_u32 s36, s36, s39          ; h
    s_xor_b32 s36, s36, HXX
    s_lshr_b32 s37, s35, 3           ; b
    s_and_b32 s38, s35, 1            ; sp
    s_cmp_lt_u32 s3, 4
    s_cbranch_scc1 L_H""".replace("s_xor_b32 s36, s36, HXX", f"s_xor_b32 s36, s36, {hx}" if hx else ""))
    if hk: A(f"s_xor_b32 s36, s36, {hk}")

    T = 8
    Q = 24
    MK = 28
    S = 32
    AO = 40
    ACC = 48
    TMP = 52
    RB = 64
    if sprio: A(f"s_setprio {sprio}")
    A(f"""s_sub_u32 s56, s3, 4
    s_lshl_b32 s57, s37, 5
    s_add_u32 s57, s57, s36
    s_lshl_b32 s57, s57, 20
    s_lshl_b32 s58, s38, 19
    s_add_u32 s57, s57, s58
    s_lshl_b32 s58, s56, 10
    s_add_u32 s57, s57, s58
    s_mov_b32 s59, s57
    v_lshlrev_b32 v2, 4, v1
    s_waitcnt lgkmcnt(0)""")
    srd(40, 10, 0x8000000)
    st = dict(ii=0, ci=0, landed=0, cnt=0)
    def slot(i): return RB + 4 * (i % NS)
    def kat(ii): return [kk for (a, kk) in sched if ii >= a][-1]
    def cact(ii): return ctl and ii >= c0 + 4 and kat(ii) < 8
    def kcur(): return kat(st["ii"] + 3 * wd) + (kb if cact(st["ii"]) else 0)
    def issue():
        kk = kcur()
        ii = st["ii"]
        if ii >= 256 or ii - st["ci"] >= NS: return False
        if cact(ii):
            if ii % rdp == 0: A("s_waitcnt lgkmcnt(0)\nv_readfirstlane_b32 s64, v62")
            A(f"s_cmp_gt_u32 s64, {ii}\ns_cbranch_scc1 L_wk{ii}\ns_waitcnt vmcnt({kat(ii)-1})")
            A(f"L_wk{ii}:")
        if ii - (kk - 1) > st["landed"]:
            A(f"s_waitcnt vmcnt({kk-1})"); st["landed"] = ii - (kk - 1)
        if cact(ii): pass
        elif kat(ii) < kk:
            for w_ in (1, 2, 3):
                if kat(ii + w_ * wd) != kat(ii + w_ * wd - 1): A(f"s_cmp_ge_u32 s56, {w_}\ns_cselect_b64 vcc, -1, 0")
            A(f"s_cbranch_vccnz L_wk{ii}\ns_waitcnt vmcnt({kat(ii)-1})")
            A(f"L_wk{ii}:")
        r = slot(ii)
        A(f"buffer_load_dwordx4 v[{r}:{r+3}], v2, s[{40 if ii < 128 else 48}:{43 if ii < 128 else 51}], s59 offen {kvflags}")
        if ii == 127: A("s_mov_b32 s59, s57")
        elif ii < 255: A("s_add_u32 s59, s59, 4096")
        if cact(ii + 1) and (ii + 1) % rdp == 0: A(f"ds_read_b32 v62, v7 offset:{L_KB}")
        if ii in (qat, woat, m2at, mlat) or (ctl and ii >= c0): A(f"v_mov_b32 v6, {ii}\nds_write_b32 v7, v6 offset:{L_PR}")
        st["ii"] += 1; st["cnt"] = 0
        return True
    def landed(i):
        if i >= st["landed"]:
            A(f"s_waitcnt vmcnt({st['ii'] - i - 1})"); st["landed"] = i + 1
    def consumed(i):
        st["ci"] = i + 1
        if i < kcur() or st["ii"] - st["ci"] <= kcur() + dt or i % 2 == 1: issue()
        if st["ii"] - st["ci"] < kcur() + dt: issue()
    def AH(text):
        for t in text.strip().split("\n"):
            A(t); st["cnt"] += 1
            if st["cnt"] >= gap: issue()
    for i in range(npro):
        issue()
        if pst and i in (11, 23, 35): stamp({11: 5, 23: 6, 35: 7}[i])
        if i == kp - 1:
            A("s_barrier")
            srd(48, 12, 0x8000000)
            masks(MK, TMP)
            A(f"""s_mov_b32 s60, 0xaaaaaaaa
            s_mov_b32 s61, 0xaaaaaaaa
            s_mov_b32 s62, 0xcccccccc
            s_mov_b32 s63, 0xcccccccc
            s_mov_b32 s65, {SCALE:#x}
            s_mov_b32 s66, {LOG2E:#x}
            v_and_b32 v3, 15, v1
            v_lshlrev_b32 v3, 4, v3
            s_lshl_b32 s39, s56, 2
            v_mov_b32 v7, s39
            s_mov_b32 s72, {POLL_LIMIT}""")
    stamp(1)
    A("L_QW:")
    A(f"""ds_read_b128 v[{Q}:{Q+3}], v3 offset:{L_Q}
    s_waitcnt lgkmcnt(0)
    v_max3_u32 v{TMP}, v{Q}, v{Q+1}, v{Q+2}
    v_max_u32 v{TMP}, v{TMP}, v{Q+3}
    v_cmp_eq_u32 vcc, -1, v{TMP}
    s_cbranch_vccz L_QD
    s_sleep 1
    s_sub_u32 s72, s72, 1
    s_cbranch_scc0 L_QW""")
    A("L_QD:")
    A(f"v_mov_b32 v5, 0\nds_read_b32 v5, v5 offset:{L_TG}")
    stamp(2)
    for g in range(8):
        pend = None
        for c in range(16):
            i = 16 * g + c
            r = slot(i)
            landed(i)
            A(f"v_dot2_f32_bf16 v{T+c}, v{r}, v{Q}, 0")
            for kk in range(1, 4):
                A(f"v_dot2_f32_bf16 v{T+c}, v{r+kk}, v{Q+kk}, v{T+c}")
            if pend: A(pend)
            consumed(i)
            if c < 8: pend = f"v_add_f32_dpp v{T+c}, v{T+c}, v{T+c} row_ror:8 row_mask:0xf bank_mask:0x3"
            else:     pend = f"v_add_f32_dpp v{T+c-8}, v{T+c}, v{T+c} row_ror:8 row_mask:0xf bank_mask:0xc"
        A(pend)
        for i in range(4): A(f"v_add_f32_dpp v{T+i}, v{T+i}, v{T+i} row_half_mirror row_mask:0xf bank_mask:0x5")
        for i in range(4): A(f"v_add_f32_dpp v{T+i}, v{T+i+4}, v{T+i+4} row_half_mirror row_mask:0xf bank_mask:0xa")
        for i in range(4): A(f"v_add_f32_dpp v{T+i}, v{T+i}, v{T+i} quad_perm:[2,3,0,1] row_mask:0xf bank_mask:0xf")
        for i in range(2): A(f"v_cndmask_b32 v{T+i}, v{T+i}, v{T+i+2}, s[62:63]")
        for i in range(2): A(f"v_add_f32_dpp v{T+i}, v{T+i}, v{T+i} quad_perm:[1,0,3,2] row_mask:0xf bank_mask:0xf")
        A(f"v_cndmask_b32 v{S+g}, v{T}, v{T+1}, s[60:61]")
    stamp(3)
    st["cnt"] = 20
    for j in range(0, 8, 2): rbf2(S+j, S+j+1, AH)
    for j in range(8): AH(f"v_mul_f32 v{S+j}, s65, v{S+j}")
    for j in range(0, 8, 2): rbf2(S+j, S+j+1, AH)
    M = TMP + 2; Lr = TMP + 3; M2 = TMP + 4
    AH(f"""v_max3_f32 v{M}, v{S}, v{S+1}, v{S+2}
    v_max3_f32 v{M}, v{M}, v{S+3}, v{S+4}
    v_max3_f32 v{M}, v{M}, v{S+5}, v{S+6}
    v_max_f32 v{M}, v{M}, v{S+7}""")
    allred(M, TMP, "max_f32", AH)
    AH(f"v_mul_f32 v{M2}, s66, v{M}")
    for j in range(8): AH(f"v_fma_f32 v{S+j}, v{S+j}, s66, -v{M2}")
    for j in range(8): AH(f"v_exp_f32 v{S+j}, v{S+j}")
    AH(f"v_add_f32 v{Lr}, v{S}, v{S+1}")
    for j in range(2, 8): AH(f"v_add_f32 v{Lr}, v{Lr}, v{S+j}")
    for j in range(8): AH(f"v_cvt_pk_bf16_f32 v{S+j}, v{S+j}, v{S+j}")
    allred(Lr, TMP, "add_f32", AH)
    AH(f"""v_min_u32 v{Lr}, -2, v{Lr}
    s_lshl_b32 s39, s56, 3
    v_mov_b32 v{TMP}, s39
    ds_write_b64 v{TMP}, v[{M}:{Lr}] offset:{L_ML}""")
    AH(f"""v_and_b32 v3, 15, v1
    v_lshlrev_b32 v3, 4, v3
    v_lshrrev_b32 v4, 4, v1
    v_lshl_add_u32 v3, v4, 3, v3
    s_lshl_b32 s39, s56, 8
    v_add_u32 v3, s39, v3""")
    def aprep(i):
        g, c = divmod(i, 16)
        for kk in range(4):
            A(f"v_and_b32_dpp v{AO+4*(i%2)+kk}, v{S+g}, v{MK+kk} row_newbcast:{c} row_mask:0xf bank_mask:0xf")
    aprep(0)
    for i in range(128):
        r = slot(128 + i); a = AO + 4 * (i % 2)
        landed(128 + i)
        A(f"v_mfma_f32_16x16x32_bf16 v[{ACC}:{ACC+3}], v[{a}:{a+3}], v[{r}:{r+3}], {'0' if i == 0 else f'v[{ACC}:{ACC+3}]'}")
        if i < 127: aprep(i + 1)
        consumed(128 + i)
    stamp(4)
    A(f"""v_cvt_pk_bf16_f32 v{TMP}, v{ACC}, v{ACC+1}
    v_cvt_pk_bf16_f32 v{TMP+1}, v{ACC+2}, v{ACC+3}
    s_mov_b32 exec_hi, 0
    ds_write_b64 v3, v[{TMP}:{TMP+1}] offset:{L_O}
    s_mov_b64 exec, -1
    s_waitcnt lgkmcnt(0)
    s_barrier
    s_cmp_lg_u32 s56, 0
    s_cbranch_scc1 {'L_wst' if wst else 'L_end'}""")
    if not pst: stamp(5); stamp(6)
    A(f"""s_and_b32 s39, s35, 6
    s_cmp_lg_u32 s39, 0
    s_cbranch_scc1 L_fend""")
    if "h" in abl: A("s_bitcmp1_b32 s34, 1\ns_cbranch_scc1 L_fend")
    if "i" in abl: A("s_and_b32 s39, s34, 6\ns_cbranch_scc1 L_fend")
    U = 8
    srdws()
    A(f"""v_readfirstlane_b32 s4, v5
    s_lshl_b32 s67, s34, 1
    s_and_b32 s5, s4, 0xff
    s_add_u32 s67, s67, s38          ; cq
    s_mul_i32 s70, s37, {64*US}
    s_lshl_b32 s39, s67, 7
    s_add_u32 s70, s70, s39
    s_add_u32 s70, s70, {W_U}
    v_lshrrev_b32 v3, 3, v1
    s_mov_b32 s39, {US}
    v_mul_u32_u24 v3, s39, v3
    v_and_b32 v4, 7, v1
    v_lshl_add_u32 v3, v4, 4, v3""")
    for t in range(1, 8): A(f"s_add_u32 s{56+t}, s70, {t*8*US}")
    uloads = [f"buffer_load_dwordx4 v[{U+4*t}:{U+4*t+3}], v3, s[44:47], s{70 if t == 0 else 56+t} offen {ulf}" for t in range(8)]
    for l in uloads: A(l)
    if u4:
        A(f"""v_lshrrev_b32 v5, 4, v1
        v_and_b32 v6, 4, v1
        v_add_u32 v5, v5, v6
        v_and_b32 v6, 3, v1
        v_lshl_add_u32 v4, v5, 2, v6
        v_lshlrev_b32 v4, 1, v4
        v_lshlrev_b32 v6, 2, v6
        v_lshl_add_u32 v5, v5, 5, v6
        ds_read_b32 v44, v5 offset:{L_G}
        ds_read_b32 v45, v5 offset:{L_G+16}""")
    else:
        A(f"""v_lshlrev_b32 v5, 5, v4
        ds_read_b128 v[44:47], v5 offset:{L_G}
        ds_read_b128 v[48:51], v5 offset:{L_G+16}
        v_lshlrev_b32 v4, 3, v4""")
    A(f"""s_lshl_b32 s71, s37, 10
    s_lshl_b32 s39, s67, 6
    s_add_u32 s71, s71, s39""")
    srd(48, 28, 4096)
    if fp:
        X = 64
        A(f"s_mov_b32 s68, 0xff\ns_mov_b32 s69, 0xff\ns_mov_b32 s72, {POLL_LIMIT}\ns_waitcnt vmcnt(0)")
        A("L_fp:")
        for t in range(8):
            A(f"s_bitcmp1_b32 s68, {t}\ns_cbranch_scc0 L_fp{t}")
            for i in range(4): A(f"v_xor_b32 v{X+4*t+i}, s5, v{U+4*t+i}")
            A(f"""v_or3_b32 v40, v{X+4*t}, v{X+4*t+1}, v{X+4*t+2}
            v_bitop3_b32 v40, v40, v{X+4*t+3}, s69 bitop3:0xa8
            v_or_b32_dpp v40, v40, v40 quad_perm:[1,0,3,2] row_mask:0xf bank_mask:0xf
            v_cmp_ne_u32 vcc, 0, v40
            s_bitset0_b32 s68, {t}
            s_cbranch_vccz L_fp{t}
            s_mov_b64 exec, vcc
            {uloads[t]}
            s_mov_b64 exec, -1
            s_bitset1_b32 s68, {t}""")
            A(f"L_fp{t}:")
        A(f"""s_bcnt1_i32_b32 s39, s68
        s_cbranch_scc0 L_fpd
        s_cmp_lt_u32 s39, {fthr}
        s_cbranch_scc1 L_fpn
        s_waitcnt vmcnt(0)""")
        A("L_fpn:")
        if fs2: A(f"s_sleep {fs2}")
        A(f"""s_waitcnt vmcnt({fmax})
        s_sub_u32 s72, s72, 1
        s_cbranch_scc0 L_fp""")
        A("L_fpd:")
        if not pst: stamp(6)
        U = X
        for s_ in (16, 8, 4):
            for i in range(0, s_, 2): A(f"v_pk_add_f32 v[{U+i}:{U+i+1}], v[{U+i}:{U+i+1}], v[{U+s_+i}:{U+s_+i+1}]")
    else:
        poll(uloads, U, 32, 40, 41, fsleep, first_issued=True, mode=2 if "F" in abl else 0)
        if not pst: stamp(6)
        strip(U, 32)
        for s_ in (16, 8, 4):
            for i in range(s_): A(f"v_add_f32 v{U+i}, v{U+i}, v{U+s_+i}")
    if u4:
        tred([U])
        A(f"v_add_f32_dpp v{U}, v{U}, v{U} row_ror:8 row_mask:0xf bank_mask:0xf\ns_waitcnt lgkmcnt(0)")
        rbf(U)
        A(f"v_mul_f32 v{U}, v{U}, v44")
        rbf(U)
        A(f"""v_add_f32 v{U}, v{U}, v45
        v_cvt_pk_bf16_f32 v{U}, v{U}, v{U}
        s_mov_b32 exec_lo, 0x00ff00ff
        s_mov_b32 exec_hi, 0x00ff00ff
        buffer_store_short v{U}, v4, s[48:51], s71 offen {osf}""")
    else:
        for i in range(4): A(f"v_add_f32_dpp v{U+i}, v{U+i}, v{U+i} row_ror:8 row_mask:0xf bank_mask:0xf")
        for sw in (16, 32):
            for i in range(4): A(f"v_mov_b32 v{U+4+i}, v{U+i}")
            for i in range(4): A(f"v_permlane{sw}_swap_b32 v{U+i}, v{U+4+i}")
            for i in range(4): A(f"v_add_f32 v{U+i}, v{U+i}, v{U+4+i}")
        A("s_waitcnt lgkmcnt(0)")
        rbf2(U, U+1); rbf2(U+2, U+3)
        for i in range(4): A(f"v_mul_f32 v{U+i}, v{U+i}, v{44+i}")
        rbf2(U, U+1); rbf2(U+2, U+3)
        for i in range(4): A(f"v_add_f32 v{U+i}, v{U+i}, v{48+i}")
        A(f"""v_cvt_pk_bf16_f32 v{U}, v{U}, v{U+1}
        v_cvt_pk_bf16_f32 v{U+1}, v{U+2}, v{U+3}
        s_mov_b64 exec, 0xff
        buffer_store_dwordx2 v[{U}:{U+1}], v4, s[48:51], s71 offen""")
    A(f"""s_cmp_lg_u32 s2, 0
    s_cbranch_scc1 L_fend
    v_mov_b32 v41, s4
    s_mov_b64 exec, 1
    buffer_store_dword v41, off, s[44:47], 0 offset:{W_EP} {esf}""")
    A("L_fend:")
    if not pst: stamp(7)
    write_stamps(0, 8)
    A("s_endpgm")

    if wst:
        A("L_wst:")
        A(("" if wst == 2 else "s_mov_b32 s80, s86\ns_mov_b32 s81, s87\n") + "s_mov_b32 s82, s88\ns_mov_b32 s83, s89\ns_lshl_b32 s56, s56, 4\ns_add_u32 s32, s32, s56\ns_addc_u32 s33, s33, 0")
        write_stamps(8, 2)
        A("s_endpgm")
    W = 128
    XR = 8
    MB = 24; RD = 25; TT = 26
    FF = 29
    TR = 30
    TC = 31
    FA = 32
    BI = 36
    A0 = 40
    HACC = 52
    PUB = 68
    F = 72
    AP = 104
    A("L_H:")
    if hprio: A(f"s_setprio {hprio}")
    A(f"""v_lshlrev_b32 v2, 4, v1             ; lane*16
    v_and_b32 v3, 15, v1                  ; n / m
    v_lshrrev_b32 v4, 4, v1               ; g
    v_mov_b32 v{FF}, 0xff
    s_cmp_lg_u32 s3, 0
    s_cbranch_scc1 L_H1""")
    def tissue(fl):
        A(f"buffer_load_dwordx4 v7, s[48:51], s60 offen {fl} lds\ns_add_u32 s60, s60, s61\ns_add_u32 m0, m0, 0x400")
    def tloop(n, nm, depth, fl):
        if n <= 0: return
        A(f"s_mov_b32 s64, {n}")
        A(f"L_{nm}:")
        A(f"s_waitcnt vmcnt({depth-1})")
        tissue(fl)
        A(f"s_sub_u32 s64, s64, 1\ns_cmp_lg_u32 s64, 0\ns_cbranch_scc1 L_{nm}")
    def asel(sreg):
        for r in range(4): A(f"v_mov_b32 v{A0+r}, v{AP+r}")
        for t in range(1, 4):
            A(f"s_cmp_eq_u32 s{sreg}, {t}\ns_cselect_b64 vcc, -1, 0")
            for r in range(4): A(f"v_cndmask_b32 v{A0+r}, v{A0+r}, v{AP+4*t+r}, vcc")
    def amask():
        for ks in range(4):
            A(f"s_mov_b32 vcc_lo, {0x000f000f << (4*ks):#x}\ns_mov_b32 vcc_hi, {0x000f000f << (4*ks):#x}")
            for r in range(4): A(f"v_cndmask_b32 v{XR+4*ks+r}, 0, v{A0+r}, vcc")
    def frags(second):
        for ks in range(4):
            for cb in range(4):
                r = W + 4 * (4*ks + cb)
                A(f"ds_read_b64_tr_b16 v[{r}:{r+1}], v{FA} offset:{L_T+ks*4096+cb*8}")
                A(f"ds_read_b64_tr_b16 v[{r+2}:{r+3}], v{FA} offset:{L_T+ks*4096+cb*8+second}")
        A("s_waitcnt lgkmcnt(0)")
    def gemv(soff, drop, local=False, pre=None):
        for ks in range(4):
            for cb in range(4):
                r = W + 4 * (4*ks + cb); d = HACC + 4*cb; a = XR + 4*ks
                A(f"v_mfma_f32_16x16x32_bf16 v[{d}:{d+3}], v[{a}:{a+3}], v[{r}:{r+3}], {'0' if ks == 0 else f'v[{d}:{d+3}]'}")
        tred([HACC + 4*cb for cb in range(4)])
        for cb in range(4): tagv(PUB+cb, HACC+4*cb, FF)
        st_ = f"buffer_store_dwordx4 v[{PUB}:{PUB+3}], v2, s[44:47], s{soff} offen"
        if pre: pre()
        if drop: return
        if local: lstore(st_)
        else: A(st_ + " sc1")
    def ldswait(nm, rd, cmp, sl=8):
        A(f"s_mov_b32 s72, {POLL_LIMIT}")
        A(f"L_{nm}:")
        A(f"""{rd}
        s_waitcnt lgkmcnt(0)
        {cmp}
        s_cbranch_vccz L_{nm}d
        s_sleep {sl}
        s_sub_u32 s72, s72, 1
        s_cbranch_scc0 L_{nm}""")
        A(f"L_{nm}d:")
    def prwait(nm, at, sl=8):
        A(f"v_mov_b32 v{TT}, 0")
        ldswait(nm, f"ds_read_b32 v{TT+1}, v{TT} offset:{L_PR}", f"v_cmp_gt_u32 vcc, {at}, v{TT+1}", sl)
    def wowaitf(nm):
        A(f"v_and_b32 v{TT}, 1, v1\nv_lshlrev_b32 v{TT}, 2, v{TT}")
        ldswait(nm, f"ds_read_b32 v{TT+1}, v{TT} offset:{L_WF}", f"v_cmp_eq_u32 vcc, 0, v{TT+1}")
    CV = FA + 2
    cq = 32 // cP
    def ctl_init():
        if gws: srd(76, 32, W_END)
        else: srd(76, 30, 256)
        A(f"""s_mul_i32 s96, s35, {cP}
        s_lshr_b32 s96, s96, 5
        s_add_u32 s96, s96, {c0}
        s_add_u32 s97, s35, 1
        s_lshl_b32 s98, s34, 9
        s_add_u32 s98, s98, {W_C}
        s_lshl_b32 s101, s35, 4
        s_add_u32 s101, s101, s98
        s_mul_i32 s60, s34, {cq * gq // 8}
        s_xor_b32 s60, s60, s35
        s_and_b32 s60, s60, {gq * cq - 1}
        s_mul_i32 s61, s34, {gstr}
        s_add_u32 s61, s61, {W_GX if gws else 0}
        s_mov_b32 s62, {W_GX if gws else 0}
        s_mov_b32 s39, {gstr}
        v_mul_u32_u24 v{CV+1}, s39, v1
        v_mov_b32 v{CV}, 0
        v_mov_b32 v41, 0""")
    def red32(v, d):
        for p_ in ("quad_perm:[1,0,3,2]", "quad_perm:[2,3,0,1]", "row_half_mirror", "row_mirror"):
            for r in v: A(f"v_add_u32_dpp v{r}, v{r}, v{r} {p_} row_mask:0xf bank_mask:0xf")
        for r, dd in zip(v, d): A(f"v_readlane_b32 s{dd}, v{r}, 0\nv_readlane_b32 s39, v{r}, 16\ns_add_u32 s{dd}, s{dd}, s39")
    def ctl_loop(nm, upto):
        A(f"v_mov_b32 v{TT}, 0\nv_and_b32 v{TT+2}, 3, v1\nv_lshlrev_b32 v{TT+2}, 2, v{TT+2}\ns_cmp_eq_u32 s74, 0\ns_cbranch_scc1 L_{nm}x\ns_mov_b32 exec_hi, 0")
        A(f"L_{nm}:")
        A(f"""s_cmp_gt_u32 s96, {upto}
        s_cbranch_scc1 L_{nm}x
        v_add_u32 v{CV}, 1, v{CV}
        s_sub_u32 s39, s96, {c0 - gq}
        s_lshr_b32 s39, s39, {gq.bit_length()-1}
        v_mov_b32 v40, s39""")
        ldswait(nm + "w", f"ds_read_b32 v{TT+1}, v{TT} offset:{L_PR}", f"v_cmp_gt_u32 vcc, s96, v{TT+1}", csl)
        A(f"""s_mov_b32 exec_lo, 1
        buffer_store_dword v{CV}, off, s[44:47], s101 offset:12
        s_mov_b32 exec_lo, -1
        buffer_load_dwordx2 v[36:37], v2, s[44:47], s98 offen offset:8 {lf}""")
        if gx:
            A(f"""s_cmp_lg_u32 s60, 0
            s_cbranch_scc1 L_{nm}n
            s_mov_b32 exec_lo, 0xff
            buffer_load_dwordx2 v[38:39], v{CV+1}, s[76:79], s62 offen sc1
            s_mov_b32 exec_lo, 1
            buffer_store_dwordx2 v[40:41], off, s[76:79], s61 sc1
            s_mov_b32 exec_lo, -1
            s_waitcnt vmcnt(2)
            s_branch L_{nm}m""")
            A(f"L_{nm}n:")
        A("s_waitcnt vmcnt(0)")
        A(f"L_{nm}m:")
        A(f"""v_readfirstlane_b32 s99, v{TT+1}
        ds_read_b32 v{TT+1}, v{TT} offset:{L_PR}
        s_sub_u32 s99, s99, s96
        s_add_u32 s96, s96, {cP}
        s_mul_i32 s99, s99, {cq}
        s_add_u32 s99, s99, s97
        s_add_u32 s97, s97, 32""")
        red32([36, 37], [100, 63])
        A(f"""s_sub_i32 s99, s63, s99
        s_mul_i32 s99, s99, {gn}
        s_add_i32 s100, s100, s99
        s_ashr_i32 s100, s100, 3
        s_add_i32 s100, s100, {(m0 if nm == "ca" or m1 < 0 else m1) + cD}
        s_max_i32 s100, s100, 0
        s_waitcnt lgkmcnt(0)
        v_add_u32 v{TT+1}, s100, v{TT+1}
        ds_write_b32 v{TT+2}, v{TT+1} offset:{L_KB}""")
        if gx:
            A(f"""s_cmp_lg_u32 s60, 0
            s_cbranch_scc1 L_{nm}
            s_cmp_lt_u32 s96, {c0 + cP + gsk}
            s_cbranch_scc1 L_{nm}
            s_cmp_gt_u32 s96, {c1 + cP}
            s_cbranch_scc1 L_{nm}
            s_waitcnt vmcnt(1)""")
            for p_ in ("quad_perm:[1,0,3,2]", "quad_perm:[2,3,0,1]", "row_half_mirror"):
                for r in (38, 39): A(f"v_add_u32_dpp v{r}, v{r}, v{r} {p_} row_mask:0xf bank_mask:0xf")
            A(f"""v_readfirstlane_b32 s99, v38
            v_readfirstlane_b32 s100, v39
            s_mul_i32 s99, s99, {cq * gq}
            s_add_i32 s99, s99, {dcal * cq * 8}
            s_lshl_b32 s63, s63, 3
            s_sub_i32 s99, s99, s63
            v_mov_b32 v41, s99
            s_ashr_i32 s100, s100, 3
            s_mul_i32 s100, s100, {gcm}
            s_sub_i32 s99, s99, s100
            s_mul_i32 s99, s99, {gx}
            s_ashr_i32 s99, s99, {3 + (cP // gq).bit_length() - 1}
            v_mov_b32 v38, s99
            s_mov_b32 exec_lo, 1
            buffer_store_dword v38, off, s[44:47], s101 offset:8
            s_mov_b32 exec_lo, -1""")
        A(f"s_branch L_{nm}")
        A(f"L_{nm}x:")
        A("s_mov_b64 exec, -1")
    def ctl2_init():
        A(f"""s_mov_b32 s96, {c0}
        s_mov_b32 s97, 0
        s_mov_b32 s98, {tau0 * cP}
        s_mov_b32 s101, 0
        s_mov_b32 s67, 0
        s_mul_i32 s61, s34, {gstr}
        s_add_u32 s61, s61, {W_GX}
        s_mov_b32 s62, {W_GX - ga * 8 * gstr}
        s_mov_b32 s39, {gstr}
        v_mul_u32_u24 v{CV+1}, s39, v1
        v_mov_b32 v38, -1
        v_mov_b32 v40, s5""")
        if tA: A(f"s_lshl_b32 s97, s80, 4\ns_add_u32 s97, s97, {tA * 16}\ns_or_b32 s97, s97, 1")
    def ctl2_loop(nm, upto):
        A(f"v_mov_b32 v{TT}, 0\nv_and_b32 v{TT+2}, 3, v1\nv_lshlrev_b32 v{TT+2}, 2, v{TT+2}\ns_mov_b64 exec, 0xff")
        A(f"L_{nm}:")
        A(f"""s_cmp_gt_u32 s96, {upto}
        s_cbranch_scc1 L_{nm}x""")
        ldswait(nm + "w", f"ds_read_b32 v{TT+1}, v{TT} offset:{L_PR}\ns_memrealtime s[64:65]", f"v_cmp_gt_u32 vcc, s96, v{TT+1}", csl)
        A(f"""v_readfirstlane_b32 s99, v{TT+1}
        s_lshl_b32 s64, s64, 4
        s_sub_u32 s99, s99, s96
        s_mul_i32 s99, s99, {tau0}
        s_sub_u32 s64, s64, s99
        s_sub_u32 s63, s96, {c0}
        s_and_b32 s39, s63, {cP - 1}
        s_cbranch_scc1 L_{nm}c""")
        if tA: A(f"s_branch L_{nm}c")
        A(f"""s_waitcnt vmcnt(0)
        v_cmp_ne_u32 vcc, s5, v38
        v_subrev_u32 v39, s64, v39
        v_add_u32_dpp v39, v39, v39 quad_perm:[1,0,3,2] row_mask:0xf bank_mask:0xf
        v_add_u32_dpp v39, v39, v39 quad_perm:[2,3,0,1] row_mask:0xf bank_mask:0xf
        v_add_u32_dpp v39, v39, v39 row_half_mirror row_mask:0xf bank_mask:0xf
        v_readfirstlane_b32 s99, v39
        s_cbranch_vccnz L_{nm}k
        s_ashr_i32 s99, s99, 3
        s_add_u32 s99, s99, s64
        s_cmp_eq_u32 s97, 0
        s_cbranch_scc1 L_{nm}f
        s_sub_u32 s100, s99, s101
        s_sub_u32 s100, s100, s98
        s_ashr_i32 s100, s100, {gsm}
        s_add_u32 s98, s98, s100""")
        A(f"L_{nm}f:")
        A(f"""s_mul_i32 s97, s98, {ga + 1}
        s_add_u32 s97, s97, s99
        s_or_b32 s97, s97, 1
        s_sub_u32 s101, s99, s98""")
        A(f"L_{nm}k:")
        A(f"""s_add_u32 s101, s101, s98
        s_lshr_b32 s63, s63, {cP.bit_length() - 1}
        s_mul_i32 s63, s63, {pstep}
        s_add_u32 s63, s63, {pub0}
        s_and_b32 s63, s63, 31
        s_cmp_lg_u32 s63, s35
        s_cbranch_scc1 L_{nm}l
        v_mov_b32 v41, s64
        s_mov_b64 exec, 1
        buffer_store_dwordx2 v[40:41], off, s[44:47], s61 sc1
        s_mov_b64 exec, 0xff""")
        A(f"L_{nm}l:")
        A(f"""s_add_u32 s61, s61, {8 * gstr}
        s_cmp_lt_u32 s62, {W_GX}
        s_cbranch_scc1 L_{nm}q
        buffer_load_dwordx2 v[38:39], v{CV+1}, s[44:47], s62 offen {glf}""")
        A(f"L_{nm}q:")
        A(f"s_add_u32 s62, s62, {8 * gstr}")
        A(f"L_{nm}c:")
        A(f"""s_add_u32 s96, s96, {cs}
        s_cmp_eq_u32 s97, 0
        s_cbranch_scc1 L_{nm}
        s_sub_u32 s100, s64, s97              ; 16 * lag
        s_lshr_b32 s39, s98, {(cP // cs).bit_length() - 1}
        s_add_u32 s97, s97, s39""")
        if gi: A(f"""s_mul_i32 s39, s100, {gi}
        s_add_i32 s67, s67, s39
        s_min_i32 s67, s67, {(cs - m0) << 12}
        s_max_i32 s67, s67, {-m0 << 12}""")
        A(f"""s_mul_i32 s100, s100, {gn}
        s_add_i32 s100, s100, s67
        s_ashr_i32 s100, s100, 12
        s_add_i32 s100, s100, {m0 + cD}
        s_max_i32 s100, s100, 0
        v_add_u32 v{TT+1}, s100, v{TT+1}
        ds_write_b32 v{TT+2}, v{TT+1} offset:{L_KB}
        s_branch L_{nm}""")
        A(f"L_{nm}x:")
        A("s_mov_b64 exec, -1")
    if ctl == 2: ctl_init, ctl_loop = ctl2_init, ctl2_loop
    A(f"""s_lshl_b32 s57, s36, 2
    s_add_u32 s57, s57, s37
    s_lshl_b32 s57, s57, 1
    s_add_u32 s57, s57, s38
    s_mov_b32 m0, {L_T}
    s_lshl_b32 s60, s37, 20
    s_lshl_b32 s39, s36, 8
    s_add_u32 s60, s60, s39
    s_lshl_b32 s39, s38, 7
    s_add_u32 s60, s60, s39
    s_mov_b32 s61, {8*8192}
    v_lshrrev_b32 v{TR}, 3, v1
    v_and_b32 v{TC}, 7, v1
    v_lshlrev_b32 v{TC}, 4, v{TC}
    v_lshl_add_u32 v7, v{TR}, 13, v{TC}
    v_and_b32 v{FA+1}, 3, v1              ; b / c
    v_lshlrev_b32 v5, 10, v{FA+1}
    v_bfe_u32 v{FA+2}, v1, 2, 2           ; q4 / r
    v_lshl_add_u32 v5, v{FA+2}, 6, v5
    v_lshl_add_u32 v5, v4, 4, v5
    s_waitcnt lgkmcnt(0)""")
    srd(40, 8, 4096)
    srd(48, 14, 0 if "q" in abl else 0x400000)
    for t in range(4): A(f"buffer_load_dwordx4 v[{XR+4*t}:{XR+4*t+3}], v5, s[40:43], 0 offen offset:{t*256}")
    kq0 = min(kq, kqb)
    for i in range(kq0): tissue(wflags)
    A("s_barrier")
    for i in range(kq - kq0): tissue(wflags)
    srdws()
    A(f"""s_mul_i32 s57, s57, {QS}
    s_add_u32 s57, s57, {W_Q}
    v_lshl_add_u32 v{FA}, v4, 3, v{FA+2}
    v_lshlrev_b32 v{FA}, 7, v{FA}
    v_lshl_add_u32 v{FA}, v{FA+1}, 5, v{FA}
    s_waitcnt vmcnt({kq})""")
    unpack(F, XR, 16)
    ln_stats(F, 32, MB, RD, TT, red16x)
    ln_apply(F, 32, MB, RD, pack=AP)
    tloop(16 - kq, "tq", kq, wflags)
    caddr(6)
    if cpos == 0: A(cload(BI, 6))
    asel(37)
    amask()
    A(f"v_mov_b32 v{TT}, 0")
    ldswait("tg", f"ds_read_b64 v[{PUB}:{PUB+1}], v{TT} offset:{L_TG}", f"v_cmp_eq_u32 vcc, 0, v{PUB+1}", 2)
    A(f"v_readfirstlane_b32 s5, v{PUB}\ns_waitcnt vmcnt({1-cpos})")
    if cpos == 1: A(cload(BI, 6))
    A("s_and_b32 s5, s5, 0xff")
    cval()
    frags(512)
    gemv(57, "P" in abl, True, lambda: census("c0", BI, 6))
    stamp(1)
    if "A" in abl: A("s_branch L_tr")
    A(f"""s_mov_b32 m0, {L_T}
    s_cmp_eq_u32 s34, 7
    s_cbranch_scc1 L_tr
    s_cmp_ge_u32 s37, 2
    s_cbranch_scc1 L_m2
    s_lshl_b32 s62, s34, 4
    s_add_u32 s62, s62, s35
    s_and_b32 s63, s62, 3
    s_mul_i32 s60, s63, {128*3584}
    s_lshr_b32 s39, s62, 2
    s_lshl_b32 s39, s39, 7
    s_add_u32 s60, s60, s39
    s_mov_b32 s61, {8*3584}
    s_mov_b32 s39, 3584
    v_mad_u32_u24 v7, v{TR}, s39, v{TC}""")
    srd(48, 20, 0 if "1" in abl else 512*1792*2)
    for i in range(km): tissue(mflags)
    unpack(F, AP, 16)
    ln_stats(F, 32, MB, RD, TT, red16x)
    asel(63)
    unpack(F, A0, 4)
    ln_apply(F, 8, MB, RD, pack=A0)
    amask()
    tloop(16 - km, "t1", km, mflags)
    A(f"""s_mul_i32 s62, s62, {HS}
    s_add_u32 s62, s62, {W_H}
    s_waitcnt vmcnt(0)""")
    frags(512)
    gemv(62, "S" in abl, True)
    stamp(2)
    A("s_branch L_tr")
    A("L_m2:")
    srd(48, 24, 0 if "2" in abl else 1792*1024)
    srd(68, 22, 1792*2)
    A(f"""s_lshl_b32 s62, s34, 1
    s_and_b32 s39, s37, 1
    s_add_u32 s62, s62, s39               ; ks2
    s_add_u32 s63, s35, {c2}
    s_and_b32 s63, s63, 7                 ; cb2
    s_lshl_b32 s60, s62, 17
    s_lshl_b32 s39, s63, 7
    s_add_u32 s60, s60, s39
    s_mov_b32 s61, 0x2000
    v_lshl_add_u32 v7, v{TR}, 10, v{TC}
    v_lshrrev_b32 v5, 1, v4
    v_and_b32 v6, 1, v4
    v_lshlrev_b32 v6, 1, v6
    v_lshl_add_u32 v6, v5, 4, v6          ; 16(g>>1) + 2(g&1)
    v_lshl_add_u32 v{FA}, v{FA+2}, 2, v6
    v_lshlrev_b32 v{FA}, 7, v{FA}
    v_lshl_add_u32 v{FA}, v{FA+1}, 5, v{FA}
    v_lshl_add_u32 v6, v{FA+2}, 5, v6
    v_lshlrev_b32 v6, 1, v6
    s_lshl_b32 s39, s62, 8""")
    for r in range(4): A(f"buffer_load_dword v{BI+r}, v6, s[68:71], s39 offen offset:{8*r}")
    tloop(16, "t2", km, mflags)
    A(f"""s_mul_i32 s56, s62, {8*HS}
    s_add_u32 s56, s56, {W_H}
    s_add_u32 s57, s56, {HS}
    s_add_u32 s58, s56, {2*HS}
    s_add_u32 s59, s56, {3*HS}
    s_mov_b32 s39, {4*HS}
    v_lshlrev_b32 v7, 8, v{FA+1}
    v_lshl_add_u32 v7, v4, 5, v7
    v_bfe_u32 v5, v1, 2, 1
    v_lshl_add_u32 v7, v5, 7, v7         ; b*256 + (q4&1)*128 + g*32
    v_bfe_u32 v5, v1, 3, 1
    v_mad_u32_u24 v5, v5, s39, v7
    s_lshl_b32 s62, s62, 3
    s_add_u32 s62, s62, s63
    s_mul_i32 s62, s62, {GS}
    s_add_u32 s62, s62, {W_G}
    s_waitcnt vmcnt(0)""")
    frags(128)
    prwait("wm", m2at, 16)
    hloads = [f"buffer_load_dwordx4 v[{F+4*t}:{F+4*t+3}], v5, s[44:47], s{56+t//2} offen offset:{16*(t%2)} sc1" for t in range(8)]
    poll(hloads, F, 32, TT, TT+1, psleep, mode=2 if "L" in abl else 1 if "S" in abl else 0, grp=0, local=True)
    strip(F, 32)
    for s_ in (16, 8):
        for i in range(s_): A(f"v_add_f32 v{F+i}, v{F+i}, v{F+s_+i}")
    for j in range(0, 8, 2): rbf2(F+j, F+j+1)
    for r in range(4): A(f"v_lshlrev_b32 v{F+8+r}, 16, v{BI+r}\nv_and_b32 v{F+12+r}, 0xffff0000, v{BI+r}")
    for j in range(8): A(f"v_add_f32 v{F+j}, v{F+j}, v{F+8+j}")
    for j in range(0, 8, 2): rbf2(F+j, F+j+1)
    cg = -2.0 * 1.4426950408889634 * 0.7978845608028654
    for ins in ("v_mul_f32 v{t}, v{x}, v{x}", f"v_mul_f32 v{{t}}, {f2u(0.044715):#x}, v{{t}}", "v_add_f32 v{t}, 1.0, v{t}", "v_mul_f32 v{t}, v{t}, v{x}",
                f"v_mul_f32 v{{t}}, {f2u(cg):#x}, v{{t}}", "v_exp_f32 v{t}, v{t}", "v_add_f32 v{t}, 1.0, v{t}", "v_rcp_f32 v{t}, v{t}", "v_mul_f32 v{x}, v{x}, v{t}"):
        for j in range(8): A(ins.format(t=F+8+j, x=F+j))
    for r in range(4): A(f"v_cvt_pk_bf16_f32 v{A0+r}, v{F+2*r}, v{F+2*r+1}")
    amask()
    gemv(62, "S" in abl or "G" in abl)
    stamp(2)
    A("s_branch L_tr")
    A("L_H1:")
    A(f"""v_mov_b32 v{TT}, -1
    v_mov_b32 v{TT+1}, 0
    v_lshlrev_b32 v7, 2, v1
    ds_write_b32 v7, v{TT} offset:{L_Q}
    s_mov_b64 exec, 0xffff
    ds_write_b32 v7, v{TT} offset:{L_ML}
    ds_write_b32 v7, v{TT+1} offset:{L_WF}
    s_mov_b64 exec, -1
    s_waitcnt lgkmcnt(0)
    s_load_dword s6, s[32:33], {W_EP}
    s_barrier""")
    srd(40, 8, 4096)
    srdws()
    A("s_cmp_lg_u32 s3, 1\ns_cbranch_scc1 L_wo")
    caddr(FA)
    A("s_lshl_b32 s39, s35, 4\ns_add_u32 s39, s39, s73\ns_waitcnt lgkmcnt(0)")
    tags()
    cval()
    for j in range(4): A(f"v_mov_b32 v{PUB+j}, {'s7' if j < 2 else 0}")
    A(f"s_mov_b64 exec, 1\nbuffer_store_dwordx4 v[{PUB}:{PUB+3}], off, s[44:47], s39")
    if gws:
        A(f"s_cmp_lg_u32 s35, 0\ns_cbranch_scc1 L_gi\ns_mul_i32 s39, s34, {gstr}\ns_add_u32 s39, s39, {W_GX}\nbuffer_store_dwordx2 v[{PUB+2}:{PUB+3}], off, s[44:47], s39 sc1")
        A("L_gi:")
    A("s_mov_b64 exec, -1")
    G = F
    A(f"""v_mov_b32 v{PUB}, s4
    v_mov_b32 v{PUB+1}, 1
    ds_write_b64 v{TT+1}, v[{PUB}:{PUB+1}] offset:{L_TG}
    s_mul_i32 s60, s36, {8*QS}
    s_lshl_b32 s39, s37, 8
    s_add_u32 s60, s60, s39
    s_add_u32 s60, s60, {W_Q}
    s_add_u32 s61, s60, {QS}
    s_mov_b32 s39, {2*QS}
    v_lshlrev_b32 v5, 4, v3
    v_mad_u32_u24 v7, v4, s39, v5
    v_bfe_u32 v5, v1, 2, 2
    v_and_b32 v6, 3, v1
    v_lshl_add_u32 v6, v5, 4, v6
    v_lshl_add_u32 v6, v4, 2, v6
    v_lshlrev_b32 v6, 1, v6""")
    prwait("qw", qat, 4)
    poll([f"buffer_load_dwordx4 v[{G+4*t}:{G+4*t+3}], v7, s[44:47], s{60+t} offen sc1" for t in range(2)], G, 8, TT, TT+1, 8, mode=1 if "P" in abl else 0, local=True)
    strip(G, 8)
    tred([G, G+4])
    A(f"""v_cvt_pk_bf16_f32 v{G}, v{G}, v{G+4}
    v_mov_b32 v{G+1}, 0xfffefffe
    v_pk_min_u16 v{G}, v{G}, v{G+1}
    ds_write_b16 v6, v{G} offset:{L_Q}
    ds_write_b16_d16_hi v6, v{G} offset:{L_Q+128}""")
    stamp(1)
    A(cload(BI, FA))
    census("c1", BI, FA)
    if "m" in abl: A("s_branch L_ml2")
    A(f"""s_lshl_b32 s63, s37, 5
    s_add_u32 s63, s63, s36
    s_mul_i32 s63, s63, {MLS}
    s_add_u32 s63, s63, {W_ML}
    s_lshl_b32 s39, s38, {mlw}
    s_add_u32 s66, s63, s39""")
    A(f"v_and_b32 v6, 16, v2\ns_mov_b64 exec, {(1 << (1 << (mlw - 4))) - 1:#x}")
    ldswait("mw", f"ds_read_b128 v[{XR}:{XR+3}], v6 offset:{L_ML}", f"v_max_u32 v{TT}, v{XR+1}, v{XR+3}\nv_cmp_eq_u32 vcc, -1, v{TT}", 16)
    for j in range(4): A(f"v_bfi_b32 v{PUB+j}, v{FF}, s5, v{XR+j}")
    lstore(f"buffer_store_dwordx4 v[{PUB}:{PUB+3}], v2, s[44:47], s66 offen")
    A(f"""s_mov_b64 exec, 0xff
    v_and_b32 v6, 3, v1
    v_lshlrev_b32 v6, 3, v6
    v_lshrrev_b32 v{TT}, 2, v1
    v_lshl_add_u32 v6, v{TT}, {mlw}, v6""")
    prwait("mg", mlat, 16)
    poll([f"buffer_load_dwordx2 v[{XR}:{XR+1}], v6, s[44:47], s63 offen sc1"], XR, 2, TT, TT+1, psleep, base_exec="0xff", local=True)
    strip(XR, 2)
    A(f"""v_max_f32_dpp v{TT}, v{XR}, v{XR} quad_perm:[1,0,3,2] row_mask:0xf bank_mask:0xf
    v_max_f32_dpp v{TT}, v{TT}, v{TT} quad_perm:[2,3,0,1] row_mask:0xf bank_mask:0xf
    v_max_f32_dpp v{TT}, v{TT}, v{TT} row_half_mirror row_mask:0xf bank_mask:0xf
    v_sub_f32 v{XR}, v{XR}, v{TT}
    v_mul_f32 v{XR}, {LOG2E:#x}, v{XR}
    v_exp_f32 v{XR}, v{XR}
    v_mul_f32 v{TT}, v{XR}, v{XR+1}
    v_add_f32_dpp v{TT}, v{TT}, v{TT} quad_perm:[1,0,3,2] row_mask:0xf bank_mask:0xf
    v_add_f32_dpp v{TT}, v{TT}, v{TT} quad_perm:[2,3,0,1] row_mask:0xf bank_mask:0xf
    v_add_f32_dpp v{TT}, v{TT}, v{TT} row_half_mirror row_mask:0xf bank_mask:0xf
    v_rcp_f32 v{TT}, v{TT}
    v_mul_f32 v{XR}, v{XR}, v{TT}
    v_and_b32 v6, 3, v1
    v_lshlrev_b32 v6, 2, v6
    s_lshl_b32 s39, s38, 2
    s_lshl_b32 s64, 0xf, s39
    s_mov_b32 s65, 0
    s_mov_b64 exec, s[64:65]
    ds_write_b32 v6, v{XR} offset:{L_C}
    s_mov_b64 exec, -1""")
    A("L_ml2:")
    stamp(2)
    if "g" in abl or "A" in abl: A("s_branch L_tr")
    A(f"""s_and_b32 s39, s35, 6
    s_cmp_lg_u32 s39, 0
    s_cbranch_scc1 L_tr""")
    srd(68, 26, 1024)
    A(f"""s_lshl_b32 s67, s34, 1
    s_add_u32 s67, s67, s38          ; cq
    s_lshl_b32 s58, s67, 6
    s_lshl_b32 s39, s37, 10
    s_add_u32 s59, s58, s39
    s_mul_i32 s60, s34, {GS}
    s_lshl_b32 s39, s37, 8
    s_add_u32 s60, s60, s39
    s_lshl_b32 s39, s38, 7
    s_add_u32 s60, s60, s39
    s_add_u32 s60, s60, {W_G}
    s_add_u32 s61, s60, {48*GS}
    v_and_b32 v6, 7, v1
    v_lshlrev_b32 v5, 3, v6
    buffer_load_dwordx2 v[{XR}:{XR+1}], v5, s[68:71], s58 offen
    buffer_load_dwordx2 v[{XR+2}:{XR+3}], v5, s[40:43], s59 offen
    v_lshrrev_b32 v7, 3, v1
    v_lshlrev_b32 v5, 4, v6
    s_mov_b32 s39, {8*GS}
    v_mad_u32_u24 v7, v7, s39, v5""")
    gloads = [f"buffer_load_dwordx4 v[{G+4*t}:{G+4*t+3}], v7, s[44:47], s{60+t} offen sc1" for t in range(2)]
    poll(gloads, G, 8, TT, TT+1, psleep, mode=2 if "L" in abl or "G" in abl else 1 if "S" in abl else 0)
    strip(G, 8)
    for i in range(4): A(f"v_add_f32_dpp v{G+i}, v{G+4+i}, v{G+i} quad_perm:[0,1,2,3] row_mask:0xe bank_mask:0xf")
    for i in range(4): A(f"v_add_f32_dpp v{G+i}, v{G+i}, v{G+i} row_ror:8 row_mask:0xf bank_mask:0xf")
    tred([G])
    A(f"""v_bfe_u32 v5, v1, 2, 1
    v_and_b32 v7, 3, v1
    v_lshl_add_u32 v7, v5, 4, v7
    v_lshl_add_u32 v7, v4, 2, v7
    v_lshlrev_b32 v7, 2, v7
    ds_write_b32 v7, v{G} offset:{L_GT}
    v_lshlrev_b32 v7, 4, v6
    s_waitcnt lgkmcnt(0)
    ds_read_b128 v[{G}:{G+3}], v7 offset:{L_GT}
    s_waitcnt lgkmcnt(0)""")
    rbf2(G, G+1); rbf2(G+2, G+3)
    unpack(G+4, XR, 2)
    for i in range(4): A(f"v_add_f32 v{G+i}, v{G+i}, v{G+4+i}")
    rbf2(G, G+1); rbf2(G+2, G+3)
    for r in range(4):
        A(f"""v_mul_f32 v{TT}, {LOG2E ^ 0x80000000:#x}, v{G+r}
        v_exp_f32 v{TT}, v{TT}
        v_add_f32 v{TT}, 1.0, v{TT}
        v_rcp_f32 v{TT}, v{TT}
        v_mul_f32 v{G+r}, v{G+r}, v{TT}""")
    rbf2(G, G+1); rbf2(G+2, G+3)
    unpack(G+4, XR+2, 2)
    A(f"""v_lshlrev_b32 v6, 5, v6
    ds_write_b128 v6, v[{G}:{G+3}] offset:{L_G}
    ds_write_b128 v6, v[{G+4}:{G+7}] offset:{L_G+16}
    s_branch L_tr""")
    A("L_wo:")
    srd(48, 16, 0 if "o" in abl else 0x400000)
    A(f"""s_and_b32 s56, s3, 1
    s_lshl_b32 s60, s36, 17
    s_lshl_b32 s39, s56, 10
    s_add_u32 s60, s60, s39
    s_mul_i32 s39, s56, {PITCH}
    s_add_u32 m0, s39, {L_WO}
    s_mov_b32 s64, 64""")
    prwait("ws", woat, 4)
    stamp(1)
    if "w" in abl: A("s_branch L_wo2")
    A("L_wo1:")
    A(f"""s_waitcnt vmcnt({kw-1})
    buffer_load_dwordx4 v2, s[48:51], s60 offen {woflags} lds
    s_add_u32 s60, s60, 0x800
    s_add_u32 m0, m0, {2*PITCH}
    s_sub_u32 s64, s64, 1
    s_cmp_lg_u32 s64, 0
    s_cbranch_scc1 L_wo1""")
    A("L_wo2:")
    ldswait("wq", f"ds_read_b32 v{TT+1}, v7 offset:{L_Q}", f"v_cmp_eq_u32 vcc, -1, v{TT+1}", 4)
    A(f"""v_mov_b32 v{TT}, 0
    ds_read_b32 v{TT}, v{TT} offset:{L_TG}
    s_waitcnt lgkmcnt(0)
    v_readfirstlane_b32 s5, v{TT}
    s_lshl_b32 s39, s56, 2
    s_and_b32 s5, s5, 0xff
    v_mov_b32 v{TT}, s39
    s_waitcnt vmcnt(0)
    ds_write_b32 v{TT}, v{FF} offset:{L_WF}""")
    stamp(2)
    A("L_tr:")
    if ctl:
        ctl_init()
        A("s_cmp_lg_u32 s3, 0\ns_cbranch_scc1 L_tr2")
        ctl_loop("ca", cmid)
        A("L_tr2:")
    stamp(3)
    wowaitf("wf")
    stamp(4)
    A(f"""v_bfe_u32 v{TT}, v1, 2, 2
    v_lshl_add_u32 v{TT}, v4, 3, v{TT}
    v_and_b32 v7, 3, v1
    v_lshlrev_b32 v7, {5 if u4 else 3}, v7
    s_mov_b32 s39, {PITCH}
    v_mad_u32_u24 v7, v{TT}, s39, v7
    s_lshl_b32 s39, s3, 8
    s_add_u32 s39, s39, {L_WO}
    v_add_u32 v7, s39, v7
    v_add_u32 v6, {64*PITCH}, v7""")
    for cb in range(8):
        for ks in range(4):
            r = W + 4 * (cb * 4 + ks)
            off = (ks % 2) * 32 * PITCH + ((cb >> 2) * 128 + (cb & 3) * 8 if u4 else cb * 32)
            A(f"ds_read_b64_tr_b16 v[{r}:{r+1}], v{7 if ks < 2 else 6} offset:{off}")
            A(f"ds_read_b64_tr_b16 v[{r+2}:{r+3}], v{7 if ks < 2 else 6} offset:{off+4*PITCH}")
    OA = 72
    CC = 88
    DD = 92
    UU = 44
    A(f"""v_and_b32 v6, 3, v1
    v_lshlrev_b32 v6, 8, v6
    v_lshl_add_u32 v6, v4, 4, v6
    v_mov_b32 v5, 0
    v_lshlrev_b32 v7, 2, v1
    s_lshl_b32 s59, s37, 5
    s_add_u32 s59, s59, s36
    s_lshl_b32 s59, s59, 1
    s_add_u32 s59, s59, s38
    s_mul_i32 s59, s59, {US}
    s_lshl_b32 s39, s3, 9
    s_add_u32 s59, s59, s39
    s_add_u32 s59, s59, {W_U}
    s_waitcnt lgkmcnt(0)""")
    if ctl:
        A("s_cmp_lg_u32 s3, 0\ns_cbranch_scc1 L_tr3")
        ctl_loop("cb", c9)
        A("L_tr3:")
    stamp(6)
    A("s_barrier")
    for ks in range(4):
        A(f"ds_read_b128 v[{OA+4*ks}:{OA+4*ks+3}], v6 offset:{L_O+ks*64}")
    A(f"ds_read_b128 v[{CC}:{CC+3}], v5 offset:{L_C}")
    for ks in range(4):
        A(f"s_waitcnt lgkmcnt({4-ks})")
        for cb in range(8):
            r = W + 4 * (cb * 4 + ks)
            d = DD + 4 * cb
            A(f"v_mfma_f32_16x16x32_bf16 v[{d}:{d+3}], v[{OA+4*ks}:{OA+4*ks+3}], v[{r}:{r+3}], {'0' if ks == 0 else f'v[{d}:{d+3}]'}")
    A("s_waitcnt lgkmcnt(0)")
    if u4:
        for r in range(4):
            for cb in range(8):
                A(f"v_{'mul' if r == 0 else 'fmac'}_f32_dpp v{UU+cb%4}, v{DD+4*cb+r}, v{CC+r} quad_perm:[0,1,2,3] row_mask:{0x5 << (cb//4):#x} bank_mask:0xf")
        for j in range(4): A(f"v_add_u32 v{PUB+j}, 0x80, v{UU+j}")
        for j in range(4): A(f"v_bfi_b32 v{PUB+j}, v{FF}, s5, v{PUB+j}")
        if "h" in abl: A("s_bitcmp1_b32 s3, 0\ns_cbranch_scc1 L_end")
        if "i" in abl: A("s_cmp_lg_u32 s3, 0\ns_cbranch_scc1 L_end")
        if "U" not in abl: A(f"s_mov_b32 exec_hi, 0\nbuffer_store_dwordx4 v[{PUB}:{PUB+3}], v2, s[44:47], s59 offen {usf}")
    else:
        for r in range(4):
            for cb in range(8):
                A(f"v_{'mul' if r == 0 else 'fmac'}_f32_dpp v{UU+cb//4+2*(cb%4)}, v{DD+4*cb+r}, v{CC+r} quad_perm:[0,1,2,3] row_mask:{1<<(cb%4):#x} bank_mask:0xf")
        for j in range(2):
            for gq in range(1, 4):
                A(f"v_mov_b32_dpp v{UU+j}, v{UU+j+2*gq} quad_perm:[0,1,2,3] row_mask:{1<<gq:#x} bank_mask:0xf")
        tagv(PUB, UU, FF); tagv(PUB+1, UU+1, FF)
        if "U" not in abl: A(f"""buffer_store_dword v{PUB}, v7, s[44:47], s59 offen sc1
        buffer_store_dword v{PUB+1}, v7, s[44:47], s59 offen offset:256 sc1""")
    if stamps:
        stamp(7)
        A(f"s_cmp_lg_u32 s3, {hst}\ns_cbranch_scc1 L_end")
        A("s_lshl_b32 s90, s74, 4\ns_add_u32 s90, s90, s75\ns_mov_b32 s91, 0")
        write_stamps(8, 8)
    A("L_end:")
    A("s_endpgm")
    E.raw(f""".section .rodata,"a"
.p2align 6
.amdhsa_kernel {KN}
  .amdhsa_next_free_vgpr 256
  .amdhsa_next_free_sgpr 102
  .amdhsa_accum_offset 256
  .amdhsa_group_segment_fixed_size 0
  .amdhsa_kernarg_size 104
  .amdhsa_user_sgpr_count 2
  .amdhsa_user_sgpr_kernarg_segment_ptr 1
  .amdhsa_system_sgpr_workgroup_id_x 1
  .amdhsa_float_denorm_mode_32 3
.end_amdhsa_kernel""")
    return E.text()

if __name__ == "__main__":
    kw_ = {}
    out = sys.argv[1]
    for a in sys.argv[2:]:
        kk, v = a.split("=")
        kw_[kk] = int(v) if (v.lstrip("-").isdigit() and kk != "abl") else v.replace("+", " ")
    open(out, "w").write(gen(**kw_))
```

```python
import re

RE_V = re.compile(r'(?<![\w.])v\[(\d+):(\d+)\]|(?<![\w.\[])v(\d+)(?![\w\[])')
RE_S = re.compile(r'(?<![\w.])s\[(\d+):(\d+)\]|(?<![\w.\[])s(\d+)(?![\w\[])')
TRANS = ("v_exp_f32", "v_log_f32", "v_rcp_f32", "v_rsq_f32", "v_sqrt_f32", "v_sin_f32", "v_cos_f32")

def regs(rx, text):
    out = set()
    for m in rx.finditer(text):
        if m.group(1) is not None:
            out.update(range(int(m.group(1)), int(m.group(2)) + 1))
        else:
            out.add(int(m.group(3)))
    return out

def split_ops(rest):
    ops, depth, cur = [], 0, ""
    for ch in rest:
        if ch == "[": depth += 1
        if ch == "]": depth -= 1
        if ch == "," and depth == 0:
            ops.append(cur.strip()); cur = ""
        else:
            cur += ch
    if cur.strip(): ops.append(cur.strip())
    return ops

class Ins:
    def __init__(self, text):
        self.text = text
        t = text.split(";")[0].strip()
        parts = t.split(None, 1)
        self.op = parts[0]
        rest = parts[1] if len(parts) > 1 else ""
        ops = split_ops(rest)
        self.ops = ops
        op = self.op
        self.valu = op.startswith("v_") and not op.startswith(("v_mfma", "v_smfmac"))
        self.mfma = op.startswith(("v_mfma", "v_smfmac"))
        self.vmem = op.startswith(("buffer_", "global_", "flat_"))
        self.ds = op.startswith("ds_")
        self.salu = op.startswith("s_")
        self.dpp = "_dpp" in op or "row_" in rest or "quad_perm" in rest
        self.trans = op.replace("_e32", "").replace("_e64", "") in TRANS
        self.dot = op.startswith("v_dot")
        self.perml = op.startswith("v_permlane")
        self.rdlane = op.startswith(("v_readlane", "v_readfirstlane"))
        self.vw, self.vr, self.sw, self.sr = set(), set(), set(), set()
        self.wvcc = self.rvcc = self.wexec = self.wm0 = False
        self.srcc = set(); self.srcab = set()
        self.ldsdma = self.vmem and (" lds" in (" " + rest) or "load_lds" in op)
        self.wide_store_data = set()
        def V(x): return regs(RE_V, x)
        def S(x): return regs(RE_S, x)
        if self.mfma:
            self.vw = V(ops[0]); self.srcab = V(ops[1]) | V(ops[2]); self.srcc = V(ops[3])
            if op.startswith("v_smfmac"): self.srcab |= self.srcc; self.srcc = set(self.vw)
            self.vr = self.srcab | self.srcc
            self.passes = 8 if "32x32" in op else 4
        elif self.valu:
            if op.startswith("v_cmp"):
                if ops[0] == "vcc": self.wvcc = True
                else: self.sw = S(ops[0])
                if op.startswith("v_cmpx"): self.wexec = True
                for o in ops[1:]: self.vr |= V(o); self.sr |= S(o)
            elif self.rdlane:
                self.sw = S(ops[0])
                for o in ops[1:]: self.vr |= V(o); self.sr |= S(o)
            elif self.perml and "swap" in op:
                self.vw = V(ops[0]) | V(ops[1]); self.vr = set(self.vw)
            else:
                self.vw = V(ops[0])
                for o in ops[1:]:
                    self.vr |= V(o); self.sr |= S(o)
                    if o.split()[0] == "vcc": self.rvcc = True
                if op.startswith(("v_fmac", "v_dot2c", "v_mac", "v_writelane")) or self.dpp: self.vr |= self.vw
                if "_co_" in op: self.wvcc = True
        elif self.vmem:
            allv = set(); alls = set()
            for o in ops: allv |= V(o); alls |= S(o)
            self.sr = alls
            if "store" in op or "atomic" in op:
                self.vr = allv
                if "x4" in op or "x3" in op:
                    self.wide_store_data = V(ops[0]) if op.startswith("buffer") else V(ops[1])
            elif self.ldsdma:
                self.vr = allv
            else:
                self.lw = V(ops[0]); self.vr = set()
                for o in ops[1:]: self.vr |= V(o)
                self.vr_or_w = self.lw
        elif self.ds:
            if op.startswith(("ds_read", "ds_bpermute", "ds_swizzle", "ds_permute")):
                self.lw = V(ops[0])
                for o in ops[1:]: self.vr |= V(o)
            else:
                for o in ops: self.vr |= V(o)
        elif self.salu:
            if ops and ops[0] == "m0" and not op.startswith("s_cmp"): self.wm0 = True
        if not hasattr(self, "lw"): self.lw = set()
        self.slots = 1
        if op == "s_nop": self.slots = int(ops[0], 0) + 1

def need(p, c):
    n = 0
    if p.valu:
        if (p.vw & c.vr):
            if c.valu and c.dpp: n = max(n, 2)
            if c.mfma: n = max(n, 2) if not p.dot else max(n, 3)
            if c.perml: n = max(n, 2)
            if c.rdlane: n = max(n, 1)
            if p.trans and c.valu and not c.trans: n = max(n, 1)
        if p.dot and (p.vw & (c.vr | c.vw)):
            same = c.dot and c.op == p.op
            if same:
                ab = set()
                for o in c.ops[1:3]: ab |= regs(RE_V, o)
                if p.vw & ab: n = max(n, 3)
            else:
                n = max(n, 3)
        if p.sw & c.sr:
            if c.vmem: n = max(n, 5)
            elif c.rdlane: n = max(n, 4)
            elif c.valu: n = max(n, 2)
        if p.wvcc and c.valu and c.rvcc: n = max(n, 2)
        if p.wexec:
            if c.valu and c.dpp: n = max(n, 5)
            if c.rdlane or c.perml or c.mfma: n = max(n, 4)
    if p.mfma:
        big = 12 if p.passes == 8 else 8
        if c.mfma:
            if p.vw & c.srcab: n = max(n, big)
            if p.vw & c.srcc and not (p.vw == c.srcc and p.passes == c.passes): n = max(n, 10 if p.passes == 8 else 6)
            if (p.vw & c.vw) and not (p.vw & c.srcc): n = max(n, big)
        else:
            if p.vw & (c.vr | c.vw | c.lw): n = max(n, big)
            if c.valu and (p.srcc & c.vw): n = max(n, 7 if p.passes == 8 else 3)
    if p.wide_store_data and (p.wide_store_data & (c.vw | c.lw)): n = max(n, 2)
    if p.wm0 and c.ldsdma: n = max(n, 1)
    return n

class Emit:
    def __init__(self):
        self.lines = []
        self.hist = []
        self.nops = 0
    def raw(self, s):
        self.lines.append(s)
    def flush(self, n=None):
        worst = 0; dist = 0
        for p in reversed(self.hist):
            w = 0
            if p.mfma: w = 12 if p.passes == 8 else 8
            elif p.valu: w = 5 if (p.sw or p.wexec) else (3 if p.dot else 2)
            elif p.wide_store_data: w = 2
            elif p.wm0: w = 1
            worst = max(worst, w - dist)
            dist += p.slots
            if dist > 12: break
        if worst > 0:
            self._nop(worst)
        self.hist = []
    def _nop(self, n):
        self.nops += n
        i = Ins(f"s_nop {n-1}")
        self.lines.append(f"    s_nop {n-1}")
        self.hist.append(i)
    def label(self, name):
        self.flush()
        self.lines.append(f"{name}:")
    def __call__(self, text):
        for t in text.strip().split("\n"):
            t = t.strip()
            if not t or t.startswith(";"):
                if t: self.lines.append("    " + t)
                continue
            if t.endswith(":"):
                self.label(t[:-1]); continue
            c = Ins(t)
            if c.op.startswith(("s_cbranch", "s_branch")):
                self.hist.append(Ins("s_nop 0"))
                hist = self.hist
                self.flush()
                self.lines.append("    " + t)
                continue
            dist = 0; worst = 0
            for p in reversed(self.hist):
                worst = max(worst, need(p, c) - dist)
                dist += p.slots
                if dist > 12: break
            if worst > 0: self._nop(worst)
            self.lines.append("    " + t)
            self.hist.append(c)
            if len(self.hist) > 32: self.hist = self.hist[-16:]
    def text(self):
        return "\n".join(self.lines) + "\n"
```

```python
import sys, struct
from emit import Emit
KN = "recurrent_scan__mha_block_cached__mixer_channel_mlp__decode_kernel"
HEADER = open("recurrent_scan__mha_block_cached__mixer_channel_mlp__decode.s.ref").read().split("; Override launch")[0]

L_Q  = 0x000
L_WF = 0x100
L_PR = 0x110
L_TG = 0x108
L_KB = 0x120
L_GT = 0x140
L_O  = 0x800
L_ML = 0xC00
L_C  = 0xC40
L_G  = 0xC80
L_T  = 0x1000
L_WO = 0x5000
PITCH = 1040
LDS_BYTES = L_WO + 128 * PITCH
W_EP = 0x0
W_C  = 0x1000
LOG2E = 0x3fb8aa3b
SCALE = 0x3db504f3
POLL_LIMIT = 0x20000
def f2u(x): return struct.unpack("<I", struct.pack("<f", x))[0]

def gen(pst=0, k=6, kp=6, NS=48, npro=48, dt=2, kq=16, kqb=4, kw=3, km=8, kvflags="nt", wflags="nt", woflags="nt", mflags="nt", stamps=0, hst=2, abl="",
        sprio=3, hprio=0, fsleep=2, gap=40, hx=0, hk=0, QS=1024, HS=1024, GS=1024, US=2048, pad=0x40000, psleep=32, idle=3, MLS=256, mlw=7, ks="0:5,176:6", u4=1, lf="nt", cre=3, force=0, c2=4, cpos=1, perm=0, ulf="sc1", usf="sc1", osf="", fp=1, fmax=16, fthr=9, fs2=0, esf="", diag=0, ctl=0, cP=32, cS=2, c0=80, c1=236, c9=250, cmid=160, kb=2, m0=16, gn=4, cD=2, csl=1, cfl="", cstr=128, tau0=232, tl=0, pk=0, dry=0, tprio=0, wu=0, wuf="", fb=0, fq=0, nb=0, bs=3, fe=1, sm=0, tmo=0, csf="", wbat=0, wbf="sc1", wbm=31, m1=-1, tA=0, ga=1, gsm=1, pstep=3, pub0=2, glf="nt", cs=8, gi=0, gx=0, gq=8, gws=0, gstr=32, dcal=8, gsk=16, gcm=1, cx=0, rdp=2, wd=0, wst=0, wb=0x2000,
        qat=28, woat=40, m2at=56, mlat=166):
    sched = sorted((int(x.split(':')[0]), int(x.split(':')[1])) for x in ks.split(','))
    kp = sched[0][1]
    def up(x): return (x + pad - 1) // pad * pad
    W_H = up(wb); W_G = up(W_H + 112 * HS); W_ML = up(W_G + 112 * GS); W_U = up(W_ML + 128 * MLS); W_Q = up(W_U + 256 * US); W_GX = up(W_Q + 256 * QS); W_END = up(W_GX + 8 * 16 * gstr)
    assert W_END <= 0x20000000
    E = Emit()
    A = E
    E.raw(HEADER.rstrip())
    E.raw(f"; @launch grid=(256,1,1) block=(512,1,1) lds={LDS_BYTES}")
    E.raw('.amdgcn_target "amdgcn-amd-amdhsa--gfx950"\n.text')
    E.raw(f".globl {KN}\n.p2align 8\n.type {KN},@function\n{KN}:")

    def srd(r, lo, size):
        A(f"s_mov_b32 s{r}, s{lo}\ns_mov_b32 s{r+1}, s{lo+1}\ns_mov_b32 s{r+2}, {size:#x}\ns_mov_b32 s{r+3}, 0x20000")
    def srdws(): srd(44, 32, W_END)
    def swapadd(v, t, sw, op="add_f32", A=A):
        A(f"v_mov_b32 v{t}, v{v}\nv_permlane{sw}_swap_b32 v{v}, v{t}\nv_{op} v{v}, v{v}, v{t}")
    def allred(v, t, op="add_f32", A=A):
        for kk in (8, 4, 2, 1):
            A(f"v_{op}_dpp v{v}, v{v}, v{v} row_ror:{kk} row_mask:0xf bank_mask:0xf")
        swapadd(v, t, 16, op, A); swapadd(v, t, 32, op, A)
    def red16x(v, t):
        for p in ("row_ror:4", "row_ror:8"):
            A(f"v_add_f32_dpp v{v}, v{v}, v{v} {p} row_mask:0xf bank_mask:0xf")
        swapadd(v, t, 16); swapadd(v, t, 32)
    def rbf(v):
        A(f"v_cvt_pk_bf16_f32 v{v}, v{v}, v{v}\nv_and_b32 v{v}, 0xffff0000, v{v}")
    def rbf2(a, b, A=A):
        A(f"v_cvt_pk_bf16_f32 v{b}, v{a}, v{b}\nv_lshlrev_b32 v{a}, 16, v{b}\nv_and_b32 v{b}, 0xffff0000, v{b}")
    def unpack(dst, src, n):
        for i in range(n):
            A(f"v_lshlrev_b32 v{dst+2*i}, 16, v{src+i}\nv_and_b32 v{dst+2*i+1}, 0xffff0000, v{src+i}")
    def ln_stats(f, n, mb, rd, t, red):
        A(f"v_add_f32 v{mb}, v{f}, v{f+1}\nv_add_f32 v{t+1}, v{f+2}, v{f+3}")
        for j in range(4, n, 2): A(f"v_add_f32 v{mb}, v{mb}, v{f+j}\nv_add_f32 v{t+1}, v{t+1}, v{f+j+1}")
        A(f"v_add_f32 v{mb}, v{mb}, v{t+1}")
        red(mb, t)
        A(f"v_mul_f32 v{mb}, 0x3b000000, v{mb}")
        A(f"v_sub_f32 v{t+1}, v{f}, v{mb}\nv_sub_f32 v{t+2}, v{f+1}, v{mb}\nv_mul_f32 v{rd}, v{t+1}, v{t+1}\nv_mul_f32 v{t}, v{t+2}, v{t+2}")
        for j in range(2, n, 2):
            A(f"v_sub_f32 v{t+1}, v{f+j}, v{mb}\nv_sub_f32 v{t+2}, v{f+j+1}, v{mb}\nv_fmac_f32 v{rd}, v{t+1}, v{t+1}\nv_fmac_f32 v{t}, v{t+2}, v{t+2}")
        A(f"v_add_f32 v{rd}, v{rd}, v{t}")
        red(rd, t)
        A(f"v_mul_f32 v{rd}, 0x3b000000, v{rd}")
        rbf2(mb, rd)
        A(f"v_add_f32 v{rd}, 0x3727c5ac, v{rd}")
        rbf(rd)
        A(f"v_sqrt_f32 v{rd}, v{rd}")
        rbf(rd)
        A(f"v_rcp_f32 v{rd}, v{rd}")
    def ln_apply(f, n, mb, rd, pack=None):
        for j in range(n): A(f"v_sub_f32 v{f+j}, v{f+j}, v{mb}")
        for j in range(0, n, 2): rbf2(f+j, f+j+1)
        for j in range(n): A(f"v_mul_f32 v{f+j}, v{f+j}, v{rd}")
        if pack is not None:
            for j in range(0, n, 2): A(f"v_cvt_pk_bf16_f32 v{pack+j//2}, v{f+j}, v{f+j+1}")
        else:
            for j in range(0, n, 2): rbf2(f+j, f+j+1)
    def masks(mk, t):
        A(f"""v_and_b32 v{t}, 1, v1
        v_lshlrev_b32 v{t}, 4, v{t}
        s_mov_b32 s39, 0xffff
        v_lshlrev_b32_e64 v{t}, v{t}, s39
        v_bfe_u32 v{t+1}, v1, 1, 2""")
        for kk in range(4):
            A(f"v_cmp_eq_u32 vcc, {kk}, v{t+1}\nv_cndmask_b32 v{mk+kk}, 0, v{t}, vcc")
    def stamp(i):
        if stamps: A(f"s_memrealtime s[{80+2*i}:{81+2*i}]")
    def write_stamps(base, n):
        if not stamps: return
        A("s_waitcnt lgkmcnt(0)")
        A("s_mov_b32 s76, s32\ns_mov_b32 s77, s33\ns_mov_b32 s78, 0x20000000\ns_mov_b32 s79, 0x20000")
        A(f"s_lshl_b32 s39, s2, 7\ns_add_u32 s39, s39, {0x10000000 + base*8}")
        A("s_mov_b64 exec, 1\nv_mov_b32 v20, 0")
        for i in range(n):
            A(f"v_mov_b32 v22, s{80+2*i}\nv_mov_b32 v23, s{81+2*i}\nbuffer_store_dwordx2 v[22:23], v20, s[76:79], s39 offen offset:{i*8}\ns_nop 1")
    def tags():
        A("s_add_u32 s4, s6, 1\ns_and_b32 s5, s4, 0xff")
    def check(d, n, a0, a1, grp):
        A(f"v_xor_b32 v{a0}, s5, v{d}\nv_xor_b32 v{a1}, s5, v{d+1}")
        for i in range(2, n):
            a = a0 if i % 2 == 0 else a1
            A(f"v_bitop3_b32 v{a}, v{d+i}, v{a}, s5 bitop3:0xde")
        A(f"v_or_b32 v{a0}, v{a0}, v{a1}\nv_and_b32 v{a0}, 0xff, v{a0}")
        for p in ("quad_perm:[1,0,3,2]", "quad_perm:[2,3,0,1]", "row_half_mirror")[:grp]:
            A(f"v_or_b32_dpp v{a0}, v{a0}, v{a0} {p} row_mask:0xf bank_mask:0xf")
        A(f"v_cmp_ne_u32 vcc, 0, v{a0}")
    lab = [0]
    tid = [0]
    def tmark(nm):
        if not tmo: return
        tid[0] += 1
        sys.stderr.write(f"timeout id {tid[0]} = {nm}\n")
        A(f"v_mov_b32 v0, {4*tid[0]}\nglobal_store_dword v0, v0, s[30:31] sc1")
    def poll(loads, d, n, a0, a1, sleep, base_exec="-1", first_issued=False, mode=0, grp=3, local=False):
        if mode:
            if mode == 1:
                for l in loads: A(l)
            A("s_waitcnt vmcnt(0)")
            return
        lab[0] += 1
        L = f"L_pl{lab[0]}"
        A(f"s_mov_b32 s72, {POLL_LIMIT}")
        if not first_issued:
            for l in loads: A(l.replace("sc1", lf) if local else l)
        A(f"{L}:")
        A("s_waitcnt vmcnt(0)")
        check(d, n, a0, a1, grp)
        A(f"s_cbranch_vccz {L}d")
        if sleep: A(f"s_sleep {sleep}")
        A("s_mov_b64 exec, vcc")
        for l in loads: A(l)
        A(f"s_mov_b64 exec, {base_exec}\ns_sub_u32 s72, s72, 1\ns_cbranch_scc0 {L}\ns_waitcnt vmcnt(0)")
        tmark(L + " " + loads[0])
        A(f"{L}d:")
    def tred(ds):
        for d in ds: A(f"v_permlane32_swap_b32 v{d}, v{d+2}\nv_permlane32_swap_b32 v{d+1}, v{d+3}")
        for d in ds: A(f"v_add_f32 v{d}, v{d}, v{d+2}\nv_add_f32 v{d+1}, v{d+1}, v{d+3}")
        for d in ds: A(f"v_permlane16_swap_b32 v{d}, v{d+1}")
        for d in ds: A(f"v_add_f32 v{d}, v{d}, v{d+1}")
    def cval():
        A("s_getreg_b32 s7, hwreg(HW_REG_XCC_ID)\ns_and_b32 s7, s7, 15\ns_lshl_b32 s7, s7, 8\ns_or_b32 s7, s7, s5")
    def cload(d, a):
        return f"buffer_load_dwordx2 v[{d}:{d+1}], v{a}, s[44:47], s73 offen {lf}"
    def caddr(a):
        A(f"v_and_b32 v{a}, 0x1f0, v2\ns_lshl_b32 s73, s34, 9\ns_add_u32 s73, s73, {W_C}")
    def census(nm, d, a):
        A(f"s_mov_b32 s72, {cre}\ns_mov_b32 s74, 1")
        A(f"L_{nm}:")
        A(f"""s_waitcnt vmcnt(0)
        v_xor_b32 v{d}, s7, v{d}
        v_bitop3_b32 v{d}, v{d+1}, v{d}, s7 bitop3:0xde
        v_cmp_ne_u32 vcc, 0, v{d}
        s_cbranch_vccz L_{nm}d
        s_sleep 8
        {cload(d, a)}
        s_sub_u32 s72, s72, 1
        s_cbranch_scc0 L_{nm}
        s_waitcnt vmcnt(0)
        s_mov_b32 s74, 0""")
        A(f"L_{nm}d:")
        if stamps: A("s_and_b32 s75, s72, 15")
        if force: A(f"s_mov_b32 s74, {force - 1}")
        if diag == 1 and nm == "c1":
            A(f"s_cmp_eq_u32 s74, 1\ns_cbranch_scc1 L_dg\ns_mov_b32 s72, 40")
            A("L_dg0:")
            A("s_sleep 100\ns_sub_u32 s72, s72, 1\ns_cbranch_scc0 L_dg0")
            A("L_dg:")
    def lstore(st_):
        lab[0] += 1
        L = f"L_st{lab[0]}"
        A(f"s_cmp_eq_u32 s74, 0\ns_cbranch_scc1 {L}\n{st_}\ns_branch {L}d")
        A(f"{L}:\n{st_} sc1")
        A(f"{L}d:")
    def strip(d, n):
        for i in range(n): A(f"v_and_b32 v{d+i}, 0xffffff00, v{d+i}")
    def tagv(dst, src, ff):
        A(f"v_add_u32 v{dst}, 0x80, v{src}\nv_bfi_b32 v{dst}, v{ff}, s5, v{dst}")

    A("""s_cmp_ge_u32 s2, 256
    s_cbranch_scc1 L_end""")
    if perm == 1: A("s_lshr_b32 s3, s2, 3\ns_and_b32 s2, s2, 7\ns_lshl_b32 s2, s2, 5\ns_or_b32 s2, s2, s3")
    if perm == 2: A("s_cmp_lt_u32 s2, 2\ns_cselect_b32 s3, 1, 0\ns_xor_b32 s2, s2, s3")
    if perm == 3: A("s_lshr_b32 s3, s2, 7\ns_xor_b32 s2, s2, s3")
    stamp(0)
    if diag >= 2: A("s_memrealtime s[80:81]")
    A("""s_load_dwordx16 s[8:23], s[0:1], 0
    s_load_dwordx8 s[24:31], s[0:1], 64
    s_load_dwordx2 s[32:33], s[0:1], 96
    v_lshrrev_b32 v2, 6, v0
    v_and_b32 v1, 63, v0
    s_and_b32 s34, s2, 7
    v_readfirstlane_b32 s3, v2
    s_lshr_b32 s35, s2, 3
    s_bfe_u32 s36, s35, 0x20001
    s_lshl_b32 s39, s34, 2
    s_add_u32 s36, s36, s39          ; h
    s_xor_b32 s36, s36, HXX
    s_lshr_b32 s37, s35, 3           ; b
    s_and_b32 s38, s35, 1            ; sp
    s_cmp_lt_u32 s3, 4
    s_cbranch_scc1 L_H""".replace("s_xor_b32 s36, s36, HXX", f"s_xor_b32 s36, s36, {hx}" if hx else ""))
    if hk: A(f"s_xor_b32 s36, s36, {hk}")

    T = 8
    Q = 24
    MK = 28
    S = 32
    AO = 40
    ACC = 48
    TMP = 52
    RB = 64
    if sprio: A(f"s_setprio {sprio}")
    A(f"""s_sub_u32 s56, s3, 4
    s_lshl_b32 s57, s37, 5
    s_add_u32 s57, s57, s36
    s_lshl_b32 s57, s57, 20
    s_lshl_b32 s58, s38, 19
    s_add_u32 s57, s57, s58
    s_lshl_b32 s58, s56, 10
    s_add_u32 s57, s57, s58
    s_mov_b32 s59, s57
    v_lshlrev_b32 v2, 4, v1
    s_waitcnt lgkmcnt(0)""")
    if pst == 2: stamp(5)
    srd(40, 10, 0x8000000)
    st = dict(ii=0, ci=0, landed=0, cnt=0)
    def slot(i): return RB + 4 * (i % NS)
    def kat(ii): return [kk for (a, kk) in sched if ii >= a][-1]
    def cact(ii): return ctl and ii >= c0 + 4 and kat(ii) < 8
    def kcur(): return kat(st["ii"] + 3 * wd) + (kb if cact(st["ii"]) else 0)
    def issue():
        kk = kcur()
        ii = st["ii"]
        if ii >= 256 or ii - st["ci"] >= NS: return False
        if cact(ii):
            if ii % rdp == 0: A("s_waitcnt lgkmcnt(0)\nv_readfirstlane_b32 s64, v62")
            A(f"s_cmp_gt_u32 s64, {ii}\ns_cbranch_scc1 L_wk{ii}\ns_waitcnt vmcnt({kat(ii)-1})")
            A(f"L_wk{ii}:")
        if ii - (kk - 1) > st["landed"]:
            A(f"s_waitcnt vmcnt({kk-1})"); st["landed"] = ii - (kk - 1)
        if cact(ii): pass
        elif kat(ii) < kk:
            for w_ in (1, 2, 3):
                if kat(ii + w_ * wd) != kat(ii + w_ * wd - 1): A(f"s_cmp_ge_u32 s56, {w_}\ns_cselect_b64 vcc, -1, 0")
            A(f"s_cbranch_vccnz L_wk{ii}\ns_waitcnt vmcnt({kat(ii)-1})")
            A(f"L_wk{ii}:")
        r = slot(ii)
        A(f"buffer_load_dwordx4 v[{r}:{r+3}], v2, s[{40 if ii < 128 else 48}:{43 if ii < 128 else 51}], s59 offen {kvflags}")
        if ii == 127: A("s_mov_b32 s59, s57")
        elif ii < 255: A("s_add_u32 s59, s59, 4096")
        if cact(ii + 1) and (ii + 1) % rdp == 0: A(f"ds_read_b32 v62, v7 offset:{L_KB}")
        if ii in (qat, woat, m2at, mlat) or (ctl and ii >= c0): A(f"v_mov_b32 v6, {ii}\nds_write_b32 v7, v6 offset:{L_PR}")
        st["ii"] += 1; st["cnt"] = 0
        return True
    def landed(i):
        if i >= st["landed"]:
            A(f"s_waitcnt vmcnt({st['ii'] - i - 1})"); st["landed"] = i + 1
    def consumed(i):
        st["ci"] = i + 1
        if i < kcur() or st["ii"] - st["ci"] <= kcur() + dt or i % 2 == 1: issue()
        if st["ii"] - st["ci"] < kcur() + dt: issue()
    def AH(text):
        for t in text.strip().split("\n"):
            A(t); st["cnt"] += 1
            if st["cnt"] >= gap: issue()
    for i in range(npro):
        issue()
        if pst == 1 and i in (11, 23, 35): stamp({11: 5, 23: 6, 35: 7}[i])
        if pst == 2 and i in (kp, 2*kp): stamp({kp: 6, 2*kp: 7}[i])
        if i == kp - 1:
            A("s_barrier")
            srd(48, 12, 0x8000000)
            masks(MK, TMP)
            A(f"""s_mov_b32 s60, 0xaaaaaaaa
            s_mov_b32 s61, 0xaaaaaaaa
            s_mov_b32 s62, 0xcccccccc
            s_mov_b32 s63, 0xcccccccc
            s_mov_b32 s65, {SCALE:#x}
            s_mov_b32 s66, {LOG2E:#x}
            v_and_b32 v3, 15, v1
            v_lshlrev_b32 v3, 4, v3
            s_lshl_b32 s39, s56, 2
            v_mov_b32 v7, s39
            s_mov_b32 s72, {POLL_LIMIT}""")
    stamp(1)
    A("L_QW:")
    A(f"""ds_read_b128 v[{Q}:{Q+3}], v3 offset:{L_Q}
    s_waitcnt lgkmcnt(0)
    v_max3_u32 v{TMP}, v{Q}, v{Q+1}, v{Q+2}
    v_max_u32 v{TMP}, v{TMP}, v{Q+3}
    v_cmp_eq_u32 vcc, -1, v{TMP}
    s_cbranch_vccz L_QD
    s_sleep 1
    s_sub_u32 s72, s72, 1
    s_cbranch_scc0 L_QW""")
    tmark("QW")
    A("L_QD:")
    A(f"v_mov_b32 v5, 0\nds_read_b32 v5, v5 offset:{L_TG}")
    stamp(2)
    for g in range(8):
        pend = None
        for c in range(16):
            i = 16 * g + c
            r = slot(i)
            landed(i)
            A(f"v_dot2_f32_bf16 v{T+c}, v{r}, v{Q}, 0")
            for kk in range(1, 4):
                A(f"v_dot2_f32_bf16 v{T+c}, v{r+kk}, v{Q+kk}, v{T+c}")
            if pend: A(pend)
            consumed(i)
            if c < 8: pend = f"v_add_f32_dpp v{T+c}, v{T+c}, v{T+c} row_ror:8 row_mask:0xf bank_mask:0x3"
            else:     pend = f"v_add_f32_dpp v{T+c-8}, v{T+c}, v{T+c} row_ror:8 row_mask:0xf bank_mask:0xc"
        A(pend)
        for i in range(4): A(f"v_add_f32_dpp v{T+i}, v{T+i}, v{T+i} row_half_mirror row_mask:0xf bank_mask:0x5")
        for i in range(4): A(f"v_add_f32_dpp v{T+i}, v{T+i+4}, v{T+i+4} row_half_mirror row_mask:0xf bank_mask:0xa")
        for i in range(4): A(f"v_add_f32_dpp v{T+i}, v{T+i}, v{T+i} quad_perm:[2,3,0,1] row_mask:0xf bank_mask:0xf")
        for i in range(2): A(f"v_cndmask_b32 v{T+i}, v{T+i}, v{T+i+2}, s[62:63]")
        for i in range(2): A(f"v_add_f32_dpp v{T+i}, v{T+i}, v{T+i} quad_perm:[1,0,3,2] row_mask:0xf bank_mask:0xf")
        A(f"v_cndmask_b32 v{S+g}, v{T}, v{T+1}, s[60:61]")
    stamp(3)
    st["cnt"] = 20
    for j in range(0, 8, 2): rbf2(S+j, S+j+1, AH)
    for j in range(8): AH(f"v_mul_f32 v{S+j}, s65, v{S+j}")
    for j in range(0, 8, 2): rbf2(S+j, S+j+1, AH)
    M = TMP + 2; Lr = TMP + 3; M2 = TMP + 4
    AH(f"""v_max3_f32 v{M}, v{S}, v{S+1}, v{S+2}
    v_max3_f32 v{M}, v{M}, v{S+3}, v{S+4}
    v_max3_f32 v{M}, v{M}, v{S+5}, v{S+6}
    v_max_f32 v{M}, v{M}, v{S+7}""")
    allred(M, TMP, "max_f32", AH)
    AH(f"v_mul_f32 v{M2}, s66, v{M}")
    for j in range(8): AH(f"v_fma_f32 v{S+j}, v{S+j}, s66, -v{M2}")
    for j in range(8): AH(f"v_exp_f32 v{S+j}, v{S+j}")
    AH(f"v_add_f32 v{Lr}, v{S}, v{S+1}")
    for j in range(2, 8): AH(f"v_add_f32 v{Lr}, v{Lr}, v{S+j}")
    for j in range(8): AH(f"v_cvt_pk_bf16_f32 v{S+j}, v{S+j}, v{S+j}")
    allred(Lr, TMP, "add_f32", AH)
    AH(f"""v_min_u32 v{Lr}, -2, v{Lr}
    s_lshl_b32 s39, s56, 3
    v_mov_b32 v{TMP}, s39
    ds_write_b64 v{TMP}, v[{M}:{Lr}] offset:{L_ML}""")
    if sm:
        AH(f"""v_and_b32 v3, 14, v1
        v_lshlrev_b32 v3, 4, v3
        v_and_b32 v4, 1, v1
        v_lshl_add_u32 v3, v4, 3, v3
        v_lshrrev_b32 v4, 4, v1
        v_lshl_add_u32 v3, v4, 2, v3
        s_lshl_b32 s39, s56, 8
        s_add_u32 s39, s39, {L_O}
        v_add_u32 v3, s39, v3""")
    else: AH(f"""v_and_b32 v3, 15, v1
    v_lshlrev_b32 v3, 4, v3
    v_lshrrev_b32 v4, 4, v1
    v_lshl_add_u32 v3, v4, 3, v3
    s_lshl_b32 s39, s56, 8
    v_add_u32 v3, s39, v3""")
    def aprep(i):
        g, c = divmod(i, 16)
        for kk in range(4):
            A(f"v_and_b32_dpp v{AO+4*(i%2)+kk}, v{S+g}, v{MK+kk} row_newbcast:{c} row_mask:0xf bank_mask:0xf")
    FU = 128; FX = 160
    fset = [f"s_mov_b32 s44, s32\ns_mov_b32 s45, s33\ns_mov_b32 s46, {W_END:#x}\ns_mov_b32 s47, 0x20000\ns_mov_b32 s40, s28\ns_mov_b32 s41, s29\ns_mov_b32 s42, 4096\ns_waitcnt lgkmcnt(0)\nv_readfirstlane_b32 s4, v5",
        f"""s_lshl_b32 s67, s34, 1
        s_and_b32 s5, s4, 0xff
        s_add_u32 s67, s67, s38
        s_mul_i32 s8, s37, {64*US}
        s_lshl_b32 s39, s67, 7
        s_add_u32 s8, s8, s39
        s_add_u32 s8, s8, {W_U}
        v_lshrrev_b32 v8, 3, v1
        s_mov_b32 s39, {US}
        v_mul_u32_u24 v8, s39, v8
        v_and_b32 v9, 7, v1
        v_lshl_add_u32 v8, v9, 4, v8""",
        "\n".join(f"s_add_u32 s{8+t}, s8, {t*8*US}" for t in range(1, 8)),
        f"""v_lshrrev_b32 v10, 4, v1
        v_and_b32 v11, 4, v1
        v_add_u32 v10, v10, v11
        v_and_b32 v11, 3, v1
        v_lshl_add_u32 v9, v10, 2, v11
        v_lshlrev_b32 v9, 1, v9
        v_lshlrev_b32 v11, 2, v11
        v_lshl_add_u32 v10, v10, 5, v11""",
        f"""s_lshl_b32 s71, s37, 10
        s_lshl_b32 s39, s67, 6
        s_add_u32 s71, s71, s39
        s_mov_b32 s68, 0xff
        s_mov_b32 s69, 0xff
        s_mov_b32 s72, {POLL_LIMIT}
        s_and_b32 s39, s35, 6
        s_or_b32 s39, s39, s56
        s_cselect_b64 vcc, 0, -1""",
        ] + ["\n".join(f"v_not_b32 v{FU+8*j+i}, s5" for i in range(8)) for j in range(4)]
    fqloads = [f"buffer_load_dwordx4 v[{FU+4*t}:{FU+4*t+3}], v8, s[44:47], s{8+t} offen {ulf}" for t in range(8)]
    aprep(0)
    for i in range(128):
        r = slot(128 + i); a = AO + 4 * (i % 2)
        if fq and fe >= 2 and i == 129 - fe:
            assert st["ii"] == 256
            A("s_cbranch_vccz L_nf")
            for l in fqloads: A(l)
            for j in range(i, 128):
                A(f"s_waitcnt vmcnt({8 + 127 - j})")
                A(f"v_mfma_f32_16x16x32_bf16 v[{ACC}:{ACC+3}], v[{AO+4*(j%2)}:{AO+4*(j%2)+3}], v[{slot(128+j)}:{slot(128+j)+3}], v[{ACC}:{ACC+3}]")
                if j < 127: aprep(j + 1)
            A("s_branch L_nj")
            A("L_nf:")
        landed(128 + i)
        A(f"v_mfma_f32_16x16x32_bf16 v[{ACC}:{ACC+3}], v[{a}:{a+3}], v[{r}:{r+3}], {'0' if i == 0 else f'v[{ACC}:{ACC+3}]'}")
        if i < 127: aprep(i + 1)
        consumed(128 + i)
        if fq and 100 <= i < 100 + len(fset): A(fset[i - 100])
    if fq and fe >= 2: A("L_nj:")
    stamp(4)
    A(f"""v_cvt_pk_bf16_f32 v{TMP}, v{ACC}, v{ACC+1}
    v_cvt_pk_bf16_f32 v{TMP+1}, v{ACC+2}, v{ACC+3}
    s_mov_b32 exec_hi, 0
    {f"ds_write2_b32 v3, v{TMP}, v{TMP+1} offset1:4" if sm else f"ds_write_b64 v3, v[{TMP}:{TMP+1}] offset:{L_O}"}
    s_mov_b64 exec, -1""")
    if fq and fe == 1:
        A("s_cbranch_vccz L_nf")
        for l in fqloads: A(l)
        A("L_nf:")
    A(f"""s_waitcnt lgkmcnt(0)
    s_barrier
    s_cmp_lg_u32 s56, 0
    s_cbranch_scc1 {'L_wst' if wst else 'L_end'}""")
    if not pst: stamp(5); stamp(6)
    A(f"""s_and_b32 s39, s35, 6
    s_cmp_lg_u32 s39, 0
    s_cbranch_scc1 L_fend""")
    if "h" in abl: A("s_bitcmp1_b32 s34, 1\ns_cbranch_scc1 L_fend")
    if "i" in abl: A("s_and_b32 s39, s34, 6\ns_cbranch_scc1 L_fend")
    VO = 4; SO = 48
    if fq:
        U = FU; VO = 9; SO = 40
        uloads = fqloads
        if not fe:
            for l in uloads: A(l)
        A(f"ds_read_b32 v44, v10 offset:{L_G}\nds_read_b32 v45, v10 offset:{L_G+16}")
        for r in range(nb):
            if bs: A(f"s_sleep {bs}")
            for l in uloads: A(l)
    else:
        U = 8
        srdws()
        A(f"""v_readfirstlane_b32 s4, v5
        s_lshl_b32 s67, s34, 1
        s_and_b32 s5, s4, 0xff
        s_add_u32 s67, s67, s38          ; cq
        s_mul_i32 s70, s37, {64*US}
        s_lshl_b32 s39, s67, 7
        s_add_u32 s70, s70, s39
        s_add_u32 s70, s70, {W_U}
        v_lshrrev_b32 v3, 3, v1
        s_mov_b32 s39, {US}
        v_mul_u32_u24 v3, s39, v3
        v_and_b32 v4, 7, v1
        v_lshl_add_u32 v3, v4, 4, v3""")
        for t in range(1, 8): A(f"s_add_u32 s{56+t}, s70, {t*8*US}")
        uloads = [f"buffer_load_dwordx4 v[{U+4*t}:{U+4*t+3}], v3, s[44:47], s{70 if t == 0 else 56+t} offen {ulf}" for t in range(8)]
        for l in uloads: A(l)
        if u4:
            A(f"""v_lshrrev_b32 v5, 4, v1
            v_and_b32 v6, 4, v1
            v_add_u32 v5, v5, v6
            v_and_b32 v6, 3, v1
            v_lshl_add_u32 v4, v5, 2, v6
            v_lshlrev_b32 v4, 1, v4
            v_lshlrev_b32 v6, 2, v6
            v_lshl_add_u32 v5, v5, 5, v6
            ds_read_b32 v44, v5 offset:{L_G}
            ds_read_b32 v45, v5 offset:{L_G+16}""")
        else:
            A(f"""v_lshlrev_b32 v5, 5, v4
            ds_read_b128 v[44:47], v5 offset:{L_G}
            ds_read_b128 v[48:51], v5 offset:{L_G+16}
            v_lshlrev_b32 v4, 3, v4""")
        A(f"""s_lshl_b32 s71, s37, 10
        s_lshl_b32 s39, s67, 6
        s_add_u32 s71, s71, s39""")
        srd(48, 28, 4096)
    if fp:
        X = FX if fq else 64
        if not fq: A(f"s_mov_b32 s68, 0xff\ns_mov_b32 s69, 0xff\ns_mov_b32 s72, {POLL_LIMIT}\ns_waitcnt vmcnt(0)")
        elif fq == 2: A(f"s_waitcnt vmcnt({8*nb})")
        def fchk(t):
            for i in range(4): A(f"v_xor_b32 v{X+4*t+i}, s5, v{U+4*t+i}")
            A(f"""v_or3_b32 v40, v{X+4*t}, v{X+4*t+1}, v{X+4*t+2}
            v_bitop3_b32 v40, v40, v{X+4*t+3}, s69 bitop3:0xa8
            v_or_b32_dpp v40, v40, v40 quad_perm:[1,0,3,2] row_mask:0xf bank_mask:0xf
            v_cmp_ne_u32 vcc, 0, v40""")
        def padd(d, a_):
            for i in (0, 2): A(f"v_pk_add_f32 v[{X+4*d+i}:{X+4*d+i+1}], v[{X+4*d+i}:{X+4*d+i+1}], v[{X+4*a_+i}:{X+4*a_+i+1}]")
        A("L_fp:")
        for t in range(8):
            A(f"s_bitcmp1_b32 s68, {t}\ns_cbranch_scc0 L_fp{t}")
            if tl == 3:
                A(f"s_bitset0_b32 s68, {t}")
                A(f"L_fc{t}:")
                fchk(t)
                A(f"""s_cbranch_vccz L_fo{t}
                s_mov_b64 exec, vcc
                {uloads[t]}
                s_mov_b64 exec, -1
                s_waitcnt vmcnt({fmax})
                s_sub_u32 s72, s72, 1
                s_cbranch_scc1 L_fpd
                s_cmp_eq_u32 s68, 0
                s_cbranch_scc1 L_fc{t}
                s_bitset1_b32 s68, {t}""")
                A(f"L_fo{t}:")
                A(f"s_cmp_eq_u32 s68, 0\ns_cbranch_scc1 L_fpd")
                A(f"L_fp{t}:")
                continue
            fchk(t)
            A(f"""s_bitset0_b32 s68, {t}
            s_cbranch_vccz L_fp{t}
            s_mov_b64 exec, vcc
            {uloads[t]}
            s_mov_b64 exec, -1""")
            if tl: A(f"s_cmp_eq_u32 s68, 0\ns_cbranch_scc1 L_ft{t}")
            A(f"s_bitset1_b32 s68, {t}")
            A(f"L_fp{t}:")
        if tl == 3: A("s_branch L_fp")
        else: A(f"""s_bcnt1_i32_b32 s39, s68
        s_cbranch_scc0 L_fpd
        s_cmp_lt_u32 s39, {fthr}
        s_cbranch_scc1 L_fpn
        s_waitcnt vmcnt(0)""")
        A("L_fpn:")
        if fs2: A(f"s_sleep {fs2}")
        if tl != 3: A(f"""s_waitcnt vmcnt({fmax})
        s_sub_u32 s72, s72, 1
        s_cbranch_scc0 L_fp""")
        tmark("fp")
        if tl in (1, 2):
            A("s_branch L_fpd")
            tree = [(0,4),(1,5),(2,6),(3,7),(0,2),(1,3),(0,1)]
            for t in range(8):
                late = [(t & 3, (t & 3) + 4), (t & 1, (t & 1) + 2), (0, 1)]
                A(f"L_ft{t}:")
                if tl == 2:
                    for e in tree:
                        if e not in late: padd(*e)
                A(f"L_fu{t}:")
                fchk(t)
                A(f"""s_cbranch_vccz {'L_fpd' if tl == 1 else f'L_fv{t}'}
                s_mov_b64 exec, vcc
                {uloads[t]}
                s_mov_b64 exec, -1
                s_waitcnt vmcnt({fmax})
                s_sub_u32 s72, s72, 1
                s_cbranch_scc0 L_fu{t}""")
                if tl == 1: A("s_branch L_fpd")
                else:
                    A(f"L_fv{t}:")
                    if not pst: stamp(6)
                    for e in late[:2]: padd(*e)
                    A("s_branch L_fpe")
        A("L_fpd:")
        if not pst: stamp(6)
        U = X
        for s_ in (16, 8, 4):
            if s_ == 4 and tl == 2: A("L_fpe:")
            for i in range(0, s_, 2): A(f"v_pk_add_f32 v[{U+i}:{U+i+1}], v[{U+i}:{U+i+1}], v[{U+s_+i}:{U+s_+i+1}]")
    else:
        poll(uloads, U, 32, 40, 41, fsleep, first_issued=True, mode=2 if "F" in abl else 0)
        if not pst: stamp(6)
        strip(U, 32)
        for s_ in (16, 8, 4):
            for i in range(s_): A(f"v_add_f32 v{U+i}, v{U+i}, v{U+s_+i}")
    if u4:
        tred([U])
        A(f"v_add_f32_dpp v{U}, v{U}, v{U} row_ror:8 row_mask:0xf bank_mask:0xf\ns_waitcnt lgkmcnt(0)")
        rbf(U)
        A(f"v_mul_f32 v{U}, v{U}, v44")
        rbf(U)
        A(f"""v_add_f32 v{U}, v{U}, v45
        v_cvt_pk_bf16_f32 v{U}, v{U}, v{U}
        s_mov_b32 exec_lo, 0x00ff00ff
        s_mov_b32 exec_hi, 0x00ff00ff
        buffer_store_short v{U}, v{VO}, s[{SO}:{SO+3}], s71 offen {osf}""")
    else:
        for i in range(4): A(f"v_add_f32_dpp v{U+i}, v{U+i}, v{U+i} row_ror:8 row_mask:0xf bank_mask:0xf")
        for sw in (16, 32):
            for i in range(4): A(f"v_mov_b32 v{U+4+i}, v{U+i}")
            for i in range(4): A(f"v_permlane{sw}_swap_b32 v{U+i}, v{U+4+i}")
            for i in range(4): A(f"v_add_f32 v{U+i}, v{U+i}, v{U+4+i}")
        A("s_waitcnt lgkmcnt(0)")
        rbf2(U, U+1); rbf2(U+2, U+3)
        for i in range(4): A(f"v_mul_f32 v{U+i}, v{U+i}, v{44+i}")
        rbf2(U, U+1); rbf2(U+2, U+3)
        for i in range(4): A(f"v_add_f32 v{U+i}, v{U+i}, v{48+i}")
        A(f"""v_cvt_pk_bf16_f32 v{U}, v{U}, v{U+1}
        v_cvt_pk_bf16_f32 v{U+1}, v{U+2}, v{U+3}
        s_mov_b64 exec, 0xff
        buffer_store_dwordx2 v[{U}:{U+1}], v4, s[48:51], s71 offen""")
    A(f"""s_cmp_lg_u32 s2, 0
    s_cbranch_scc1 L_fend
    v_mov_b32 v41, s4
    s_mov_b64 exec, 1
    buffer_store_dword v41, off, s[44:47], 0 offset:{W_EP} {esf}""")
    if diag >= 2:
        A("L_dg2:")
        A(f"s_memrealtime s[82:83]\ns_waitcnt lgkmcnt(0)\ns_sub_u32 s82, s82, s80\ns_cmp_lt_u32 s82, {diag}\ns_cbranch_scc1 L_dg2")
    A("L_fend:")
    if not pst: stamp(7)
    write_stamps(0, 8)
    A("s_endpgm")

    if wst:
        A("L_wst:")
        A(("" if wst == 2 else "s_mov_b32 s80, s86\ns_mov_b32 s81, s87\n") + "s_mov_b32 s82, s88\ns_mov_b32 s83, s89\ns_lshl_b32 s56, s56, 4\ns_add_u32 s32, s32, s56\ns_addc_u32 s33, s33, 0")
        write_stamps(8, 2)
        A("s_endpgm")
    W = 128
    XR = 8
    MB = 24; RD = 25; TT = 26
    FF = 29
    TR = 30
    TC = 31
    FA = 32
    BI = 36
    A0 = 40
    HACC = 52
    PUB = 68
    F = 72
    AP = 104
    A("L_H:")
    if hprio: A(f"s_setprio {hprio}")
    A(f"""v_lshlrev_b32 v2, 4, v1             ; lane*16
    v_and_b32 v3, 15, v1                  ; n / m
    v_lshrrev_b32 v4, 4, v1               ; g
    v_mov_b32 v{FF}, 0xff
    s_cmp_lg_u32 s3, 0
    s_cbranch_scc1 L_H1""")
    def tissue(fl):
        A(f"buffer_load_dwordx4 v7, s[48:51], s60 offen {fl} lds\ns_add_u32 s60, s60, s61\ns_add_u32 m0, m0, 0x400")
    def tloop(n, nm, depth, fl):
        if n <= 0: return
        A(f"s_mov_b32 s64, {n}")
        A(f"L_{nm}:")
        A(f"s_waitcnt vmcnt({depth-1})")
        tissue(fl)
        A(f"s_sub_u32 s64, s64, 1\ns_cmp_lg_u32 s64, 0\ns_cbranch_scc1 L_{nm}")
    def asel(sreg):
        for r in range(4): A(f"v_mov_b32 v{A0+r}, v{AP+r}")
        for t in range(1, 4):
            A(f"s_cmp_eq_u32 s{sreg}, {t}\ns_cselect_b64 vcc, -1, 0")
            for r in range(4): A(f"v_cndmask_b32 v{A0+r}, v{A0+r}, v{AP+4*t+r}, vcc")
    def amask():
        for ks in range(4):
            A(f"s_mov_b32 vcc_lo, {0x000f000f << (4*ks):#x}\ns_mov_b32 vcc_hi, {0x000f000f << (4*ks):#x}")
            for r in range(4): A(f"v_cndmask_b32 v{XR+4*ks+r}, 0, v{A0+r}, vcc")
    def frags(second):
        for ks in range(4):
            for cb in range(4):
                r = W + 4 * (4*ks + cb)
                A(f"ds_read_b64_tr_b16 v[{r}:{r+1}], v{FA} offset:{L_T+ks*4096+cb*8}")
                A(f"ds_read_b64_tr_b16 v[{r+2}:{r+3}], v{FA} offset:{L_T+ks*4096+cb*8+second}")
        A("s_waitcnt lgkmcnt(0)")
    def gemv(soff, drop, local=False, pre=None):
        for ks in range(4):
            for cb in range(4):
                r = W + 4 * (4*ks + cb); d = HACC + 4*cb; a = XR + 4*ks
                A(f"v_mfma_f32_16x16x32_bf16 v[{d}:{d+3}], v[{a}:{a+3}], v[{r}:{r+3}], {'0' if ks == 0 else f'v[{d}:{d+3}]'}")
        tred([HACC + 4*cb for cb in range(4)])
        for cb in range(4): tagv(PUB+cb, HACC+4*cb, FF)
        st_ = f"buffer_store_dwordx4 v[{PUB}:{PUB+3}], v2, s[44:47], s{soff} offen"
        if pre: pre()
        if drop: return
        if local: lstore(st_)
        else: A(st_ + " sc1")
    def ldswait(nm, rd, cmp, sl=8):
        A(f"s_mov_b32 s72, {POLL_LIMIT}")
        A(f"L_{nm}:")
        A(f"""{rd}
        s_waitcnt lgkmcnt(0)
        {cmp}
        s_cbranch_vccz L_{nm}d
        s_sleep {sl}
        s_sub_u32 s72, s72, 1
        s_cbranch_scc0 L_{nm}""")
        tmark(nm)
        A(f"L_{nm}d:")
    def prwait(nm, at, sl=8):
        A(f"v_mov_b32 v{TT}, 0")
        ldswait(nm, f"ds_read_b32 v{TT+1}, v{TT} offset:{L_PR}", f"v_cmp_gt_u32 vcc, {at}, v{TT+1}", sl)
    def wowaitf(nm):
        A(f"v_and_b32 v{TT}, 1, v1\nv_lshlrev_b32 v{TT}, 2, v{TT}")
        ldswait(nm, f"ds_read_b32 v{TT+1}, v{TT} offset:{L_WF}", f"v_cmp_eq_u32 vcc, 0, v{TT+1}")
    CV = FA + 2
    cq = 32 // cP
    def ctl_init():
        if gws: srd(76, 32, W_END)
        else: srd(76, 30, 256)
        A(f"""s_mul_i32 s96, s35, {cP}
        s_lshr_b32 s96, s96, 5
        s_add_u32 s96, s96, {c0}
        s_add_u32 s97, s35, 1
        s_lshl_b32 s98, s34, 9
        s_add_u32 s98, s98, {W_C}
        s_lshl_b32 s101, s35, 4
        s_add_u32 s101, s101, s98
        s_mul_i32 s60, s34, {cq * gq // 8}
        s_xor_b32 s60, s60, s35
        s_and_b32 s60, s60, {gq * cq - 1}
        s_mul_i32 s61, s34, {gstr}
        s_add_u32 s61, s61, {W_GX if gws else 0}
        s_mov_b32 s62, {W_GX if gws else 0}
        s_mov_b32 s39, {gstr}
        v_mul_u32_u24 v{CV+1}, s39, v1
        v_mov_b32 v{CV}, 0
        v_mov_b32 v41, 0""")
        if fb: A(f"s_and_b32 s39, s35, 6\ns_cselect_b32 s39, 0, {fb}\ns_sub_u32 s97, s97, s39")
    def red32(v, d):
        for p_ in ("quad_perm:[1,0,3,2]", "quad_perm:[2,3,0,1]", "row_half_mirror", "row_mirror"):
            for r in v: A(f"v_add_u32_dpp v{r}, v{r}, v{r} {p_} row_mask:0xf bank_mask:0xf")
        for r, dd in zip(v, d): A(f"v_readlane_b32 s{dd}, v{r}, 0\nv_readlane_b32 s39, v{r}, 16\ns_add_u32 s{dd}, s{dd}, s39")
    def ctl_loop(nm, upto):
        A(f"v_mov_b32 v{TT}, 0\nv_and_b32 v{TT+2}, 3, v1\nv_lshlrev_b32 v{TT+2}, 2, v{TT+2}\ns_cmp_eq_u32 s74, 0\ns_cbranch_scc1 L_{nm}x\ns_mov_b32 exec_hi, 0")
        A(f"L_{nm}:")
        A(f"""s_cmp_gt_u32 s96, {upto}
        s_cbranch_scc1 L_{nm}x
        v_add_u32 v{CV}, 1, v{CV}
        s_sub_u32 s39, s96, {c0 - gq}
        s_lshr_b32 s39, s39, {gq.bit_length()-1}
        v_mov_b32 v40, s39""")
        ldswait(nm + "w", f"ds_read_b32 v{TT+1}, v{TT} offset:{L_PR}", f"v_cmp_gt_u32 vcc, s96, v{TT+1}", csl)
        A(f"""s_mov_b32 exec_lo, 1
        buffer_store_dword v{CV}, off, s[44:47], s101 offset:12
        s_mov_b32 exec_lo, -1
        buffer_load_dwordx2 v[36:37], v2, s[44:47], s98 offen offset:8 {lf}""")
        if gx:
            A(f"""s_cmp_lg_u32 s60, 0
            s_cbranch_scc1 L_{nm}n
            s_mov_b32 exec_lo, 0xff
            buffer_load_dwordx2 v[38:39], v{CV+1}, s[76:79], s62 offen sc1
            s_mov_b32 exec_lo, 1
            buffer_store_dwordx2 v[40:41], off, s[76:79], s61 sc1
            s_mov_b32 exec_lo, -1
            s_waitcnt vmcnt(2)
            s_branch L_{nm}m""")
            A(f"L_{nm}n:")
        A("s_waitcnt vmcnt(0)")
        A(f"L_{nm}m:")
        A(f"""v_readfirstlane_b32 s99, v{TT+1}
        ds_read_b32 v{TT+1}, v{TT} offset:{L_PR}
        s_sub_u32 s99, s99, s96
        s_add_u32 s96, s96, {cP}
        s_mul_i32 s99, s99, {cq}
        s_add_u32 s99, s99, s97
        s_add_u32 s97, s97, 32""")
        red32([36, 37], [100, 63])
        A(f"""s_sub_i32 s99, s63, s99
        s_mul_i32 s99, s99, {gn}
        s_add_i32 s100, s100, s99
        s_ashr_i32 s100, s100, 3
        s_add_i32 s100, s100, {(m0 if nm == "ca" or m1 < 0 else m1) + cD}
        s_max_i32 s100, s100, 0
        s_waitcnt lgkmcnt(0)
        v_add_u32 v{TT+1}, s100, v{TT+1}
        ds_write_b32 v{TT+2}, v{TT+1} offset:{L_KB}""")
        if gx:
            A(f"""s_cmp_lg_u32 s60, 0
            s_cbranch_scc1 L_{nm}
            s_cmp_lt_u32 s96, {c0 + cP + gsk}
            s_cbranch_scc1 L_{nm}
            s_cmp_gt_u32 s96, {c1 + cP}
            s_cbranch_scc1 L_{nm}
            s_waitcnt vmcnt(1)""")
            for p_ in ("quad_perm:[1,0,3,2]", "quad_perm:[2,3,0,1]", "row_half_mirror"):
                for r in (38, 39): A(f"v_add_u32_dpp v{r}, v{r}, v{r} {p_} row_mask:0xf bank_mask:0xf")
            A(f"""v_readfirstlane_b32 s99, v38
            v_readfirstlane_b32 s100, v39
            s_mul_i32 s99, s99, {cq * gq}
            s_add_i32 s99, s99, {dcal * cq * 8}
            s_lshl_b32 s63, s63, 3
            s_sub_i32 s99, s99, s63
            v_mov_b32 v41, s99
            s_ashr_i32 s100, s100, 3
            s_mul_i32 s100, s100, {gcm}
            s_sub_i32 s99, s99, s100
            s_mul_i32 s99, s99, {gx}
            s_ashr_i32 s99, s99, {3 + (cP // gq).bit_length() - 1}
            v_mov_b32 v38, s99
            s_mov_b32 exec_lo, 1
            buffer_store_dword v38, off, s[44:47], s101 offset:8
            s_mov_b32 exec_lo, -1""")
        A(f"s_branch L_{nm}")
        A(f"L_{nm}x:")
        A("s_mov_b64 exec, -1")
    def ctl2_init():
        A(f"""s_mov_b32 s96, {c0}
        s_mov_b32 s97, 0
        s_mov_b32 s98, {tau0 * cP}
        s_mov_b32 s101, 0
        s_mov_b32 s67, 0
        s_mul_i32 s61, s34, {gstr}
        s_add_u32 s61, s61, {W_GX}
        s_mov_b32 s62, {W_GX - ga * 8 * gstr}
        s_mov_b32 s39, {gstr}
        v_mul_u32_u24 v{CV+1}, s39, v1
        v_mov_b32 v38, -1
        v_mov_b32 v40, s5""")
        if tA: A(f"s_lshl_b32 s97, s80, 4\ns_add_u32 s97, s97, {tA * 16}\ns_or_b32 s97, s97, 1")
    def ctl2_loop(nm, upto):
        A(f"v_mov_b32 v{TT}, 0\nv_and_b32 v{TT+2}, 3, v1\nv_lshlrev_b32 v{TT+2}, 2, v{TT+2}\ns_mov_b64 exec, 0xff")
        A(f"L_{nm}:")
        A(f"""s_cmp_gt_u32 s96, {upto}
        s_cbranch_scc1 L_{nm}x""")
        ldswait(nm + "w", f"ds_read_b32 v{TT+1}, v{TT} offset:{L_PR}\ns_memrealtime s[64:65]", f"v_cmp_gt_u32 vcc, s96, v{TT+1}", csl)
        A(f"""v_readfirstlane_b32 s99, v{TT+1}
        s_lshl_b32 s64, s64, 4
        s_sub_u32 s99, s99, s96
        s_mul_i32 s99, s99, {tau0}
        s_sub_u32 s64, s64, s99
        s_sub_u32 s63, s96, {c0}
        s_and_b32 s39, s63, {cP - 1}
        s_cbranch_scc1 L_{nm}c""")
        if tA: A(f"s_branch L_{nm}c")
        A(f"""s_waitcnt vmcnt(0)
        v_cmp_ne_u32 vcc, s5, v38
        v_subrev_u32 v39, s64, v39
        v_add_u32_dpp v39, v39, v39 quad_perm:[1,0,3,2] row_mask:0xf bank_mask:0xf
        v_add_u32_dpp v39, v39, v39 quad_perm:[2,3,0,1] row_mask:0xf bank_mask:0xf
        v_add_u32_dpp v39, v39, v39 row_half_mirror row_mask:0xf bank_mask:0xf
        v_readfirstlane_b32 s99, v39
        s_cbranch_vccnz L_{nm}k
        s_ashr_i32 s99, s99, 3
        s_add_u32 s99, s99, s64
        s_cmp_eq_u32 s97, 0
        s_cbranch_scc1 L_{nm}f
        s_sub_u32 s100, s99, s101
        s_sub_u32 s100, s100, s98
        s_ashr_i32 s100, s100, {gsm}
        s_add_u32 s98, s98, s100""")
        A(f"L_{nm}f:")
        A(f"""s_mul_i32 s97, s98, {ga + 1}
        s_add_u32 s97, s97, s99
        s_or_b32 s97, s97, 1
        s_sub_u32 s101, s99, s98""")
        A(f"L_{nm}k:")
        A(f"""s_add_u32 s101, s101, s98
        s_lshr_b32 s63, s63, {cP.bit_length() - 1}
        s_mul_i32 s63, s63, {pstep}
        s_add_u32 s63, s63, {pub0}
        s_and_b32 s63, s63, 31
        s_cmp_lg_u32 s63, s35
        s_cbranch_scc1 L_{nm}l
        v_mov_b32 v41, s64
        s_mov_b64 exec, 1
        buffer_store_dwordx2 v[40:41], off, s[44:47], s61 sc1
        s_mov_b64 exec, 0xff""")
        A(f"L_{nm}l:")
        A(f"""s_add_u32 s61, s61, {8 * gstr}
        s_cmp_lt_u32 s62, {W_GX}
        s_cbranch_scc1 L_{nm}q
        buffer_load_dwordx2 v[38:39], v{CV+1}, s[44:47], s62 offen {glf}""")
        A(f"L_{nm}q:")
        A(f"s_add_u32 s62, s62, {8 * gstr}")
        A(f"L_{nm}c:")
        A(f"""s_add_u32 s96, s96, {cs}
        s_cmp_eq_u32 s97, 0
        s_cbranch_scc1 L_{nm}
        s_sub_u32 s100, s64, s97              ; 16 * lag
        s_lshr_b32 s39, s98, {(cP // cs).bit_length() - 1}
        s_add_u32 s97, s97, s39""")
        if gi: A(f"""s_mul_i32 s39, s100, {gi}
        s_add_i32 s67, s67, s39
        s_min_i32 s67, s67, {(cs - m0) << 12}
        s_max_i32 s67, s67, {-m0 << 12}""")
        A(f"""s_mul_i32 s100, s100, {gn}
        s_add_i32 s100, s100, s67
        s_ashr_i32 s100, s100, 12
        s_add_i32 s100, s100, {m0 + cD}
        s_max_i32 s100, s100, 0
        v_add_u32 v{TT+1}, s100, v{TT+1}
        ds_write_b32 v{TT+2}, v{TT+1} offset:{L_KB}
        s_branch L_{nm}""")
        A(f"L_{nm}x:")
        A("s_mov_b64 exec, -1")
    if ctl == 2: ctl_init, ctl_loop = ctl2_init, ctl2_loop
    A(f"""s_lshl_b32 s57, s36, 2
    s_add_u32 s57, s57, s37
    s_lshl_b32 s57, s57, 1
    s_add_u32 s57, s57, s38
    s_mov_b32 m0, {L_T}
    s_lshl_b32 s60, s37, 20
    s_lshl_b32 s39, s36, 8
    s_add_u32 s60, s60, s39
    s_lshl_b32 s39, s38, 7
    s_add_u32 s60, s60, s39
    s_mov_b32 s61, {8*8192}
    v_lshrrev_b32 v{TR}, 3, v1
    v_and_b32 v{TC}, 7, v1
    v_lshlrev_b32 v{TC}, 4, v{TC}
    v_lshl_add_u32 v7, v{TR}, 13, v{TC}
    v_and_b32 v{FA+1}, 3, v1              ; b / c
    v_lshlrev_b32 v5, 10, v{FA+1}
    v_bfe_u32 v{FA+2}, v1, 2, 2           ; q4 / r
    v_lshl_add_u32 v5, v{FA+2}, 6, v5
    v_lshl_add_u32 v5, v4, 4, v5
    s_waitcnt lgkmcnt(0)""")
    srd(40, 8, 4096)
    srd(48, 14, 0 if "q" in abl else 0x400000)
    for t in range(4): A(f"buffer_load_dwordx4 v[{XR+4*t}:{XR+4*t+3}], v5, s[40:43], 0 offen offset:{t*256}")
    kq0 = min(kq, kqb)
    for i in range(kq0): tissue(wflags)
    A("s_barrier")
    for i in range(kq - kq0): tissue(wflags)
    srdws()
    A(f"""s_mul_i32 s57, s57, {QS}
    s_add_u32 s57, s57, {W_Q}
    v_lshl_add_u32 v{FA}, v4, 3, v{FA+2}
    v_lshlrev_b32 v{FA}, 7, v{FA}
    v_lshl_add_u32 v{FA}, v{FA+1}, 5, v{FA}
    s_waitcnt vmcnt({kq})""")
    unpack(F, XR, 16)
    ln_stats(F, 32, MB, RD, TT, red16x)
    ln_apply(F, 32, MB, RD, pack=AP)
    tloop(16 - kq, "tq", kq, wflags)
    caddr(6)
    if cpos == 0: A(cload(BI, 6))
    asel(37)
    amask()
    A(f"v_mov_b32 v{TT}, 0")
    ldswait("tg", f"ds_read_b64 v[{PUB}:{PUB+1}], v{TT} offset:{L_TG}", f"v_cmp_eq_u32 vcc, 0, v{PUB+1}", 2)
    A(f"v_readfirstlane_b32 s5, v{PUB}\ns_waitcnt vmcnt({1-cpos})")
    if cpos == 1: A(cload(BI, 6))
    A("s_and_b32 s5, s5, 0xff")
    cval()
    frags(512)
    gemv(57, "P" in abl, True, lambda: census("c0", BI, 6))
    stamp(1)
    if "A" in abl: A("s_branch L_tr")
    A(f"""s_mov_b32 m0, {L_T}
    s_cmp_eq_u32 s34, 7
    s_cbranch_scc1 L_tr
    s_cmp_ge_u32 s37, 2
    s_cbranch_scc1 L_m2
    s_lshl_b32 s62, s34, 4
    s_add_u32 s62, s62, s35
    s_and_b32 s63, s62, 3
    s_mul_i32 s60, s63, {128*3584}
    s_lshr_b32 s39, s62, 2
    s_lshl_b32 s39, s39, 7
    s_add_u32 s60, s60, s39
    s_mov_b32 s61, {8*3584}
    s_mov_b32 s39, 3584
    v_mad_u32_u24 v7, v{TR}, s39, v{TC}""")
    srd(48, 20, 0 if "1" in abl else 512*1792*2)
    for i in range(km): tissue(mflags)
    unpack(F, AP, 16)
    ln_stats(F, 32, MB, RD, TT, red16x)
    asel(63)
    unpack(F, A0, 4)
    ln_apply(F, 8, MB, RD, pack=A0)
    amask()
    tloop(16 - km, "t1", km, mflags)
    A(f"""s_mul_i32 s62, s62, {HS}
    s_add_u32 s62, s62, {W_H}
    s_waitcnt vmcnt(0)""")
    frags(512)
    gemv(62, "S" in abl, True)
    stamp(2)
    A("s_branch L_tr")
    A("L_m2:")
    srd(48, 24, 0 if "2" in abl else 1792*1024)
    srd(68, 22, 1792*2)
    A(f"""s_lshl_b32 s62, s34, 1
    s_and_b32 s39, s37, 1
    s_add_u32 s62, s62, s39               ; ks2
    s_add_u32 s63, s35, {c2}
    s_and_b32 s63, s63, 7                 ; cb2
    s_lshl_b32 s60, s62, 17
    s_lshl_b32 s39, s63, 7
    s_add_u32 s60, s60, s39
    s_mov_b32 s61, 0x2000
    v_lshl_add_u32 v7, v{TR}, 10, v{TC}
    v_lshrrev_b32 v5, 1, v4
    v_and_b32 v6, 1, v4
    v_lshlrev_b32 v6, 1, v6
    v_lshl_add_u32 v6, v5, 4, v6          ; 16(g>>1) + 2(g&1)
    v_lshl_add_u32 v{FA}, v{FA+2}, 2, v6
    v_lshlrev_b32 v{FA}, 7, v{FA}
    v_lshl_add_u32 v{FA}, v{FA+1}, 5, v{FA}
    v_lshl_add_u32 v6, v{FA+2}, 5, v6
    v_lshlrev_b32 v6, 1, v6
    s_lshl_b32 s39, s62, 8""")
    for r in range(4): A(f"buffer_load_dword v{BI+r}, v6, s[68:71], s39 offen offset:{8*r}")
    tloop(16, "t2", km, mflags)
    A(f"""s_mul_i32 s56, s62, {8*HS}
    s_add_u32 s56, s56, {W_H}
    s_add_u32 s57, s56, {HS}
    s_add_u32 s58, s56, {2*HS}
    s_add_u32 s59, s56, {3*HS}
    s_mov_b32 s39, {4*HS}
    v_lshlrev_b32 v7, 8, v{FA+1}
    v_lshl_add_u32 v7, v4, 5, v7
    v_bfe_u32 v5, v1, 2, 1
    v_lshl_add_u32 v7, v5, 7, v7         ; b*256 + (q4&1)*128 + g*32
    v_bfe_u32 v5, v1, 3, 1
    v_mad_u32_u24 v5, v5, s39, v7
    s_lshl_b32 s62, s62, 3
    s_add_u32 s62, s62, s63
    s_mul_i32 s62, s62, {GS}
    s_add_u32 s62, s62, {W_G}
    s_waitcnt vmcnt(0)""")
    frags(128)
    prwait("wm", m2at, 16)
    hloads = [f"buffer_load_dwordx4 v[{F+4*t}:{F+4*t+3}], v5, s[44:47], s{56+t//2} offen offset:{16*(t%2)} sc1" for t in range(8)]
    poll(hloads, F, 32, TT, TT+1, psleep, mode=2 if "L" in abl else 1 if "S" in abl else 0, grp=0, local=True)
    strip(F, 32)
    for s_ in (16, 8):
        for i in range(s_): A(f"v_add_f32 v{F+i}, v{F+i}, v{F+s_+i}")
    for j in range(0, 8, 2): rbf2(F+j, F+j+1)
    for r in range(4): A(f"v_lshlrev_b32 v{F+8+r}, 16, v{BI+r}\nv_and_b32 v{F+12+r}, 0xffff0000, v{BI+r}")
    for j in range(8): A(f"v_add_f32 v{F+j}, v{F+j}, v{F+8+j}")
    for j in range(0, 8, 2): rbf2(F+j, F+j+1)
    cg = -2.0 * 1.4426950408889634 * 0.7978845608028654
    for ins in ("v_mul_f32 v{t}, v{x}, v{x}", f"v_mul_f32 v{{t}}, {f2u(0.044715):#x}, v{{t}}", "v_add_f32 v{t}, 1.0, v{t}", "v_mul_f32 v{t}, v{t}, v{x}",
                f"v_mul_f32 v{{t}}, {f2u(cg):#x}, v{{t}}", "v_exp_f32 v{t}, v{t}", "v_add_f32 v{t}, 1.0, v{t}", "v_rcp_f32 v{t}, v{t}", "v_mul_f32 v{x}, v{x}, v{t}"):
        for j in range(8): A(ins.format(t=F+8+j, x=F+j))
    for r in range(4): A(f"v_cvt_pk_bf16_f32 v{A0+r}, v{F+2*r}, v{F+2*r+1}")
    amask()
    gemv(62, "S" in abl or "G" in abl)
    stamp(2)
    A("s_branch L_tr")
    A("L_H1:")
    A(f"""v_mov_b32 v{TT}, -1
    v_mov_b32 v{TT+1}, 0
    v_lshlrev_b32 v7, 2, v1
    ds_write_b32 v7, v{TT} offset:{L_Q}
    s_mov_b64 exec, 0xffff
    ds_write_b32 v7, v{TT} offset:{L_ML}
    ds_write_b32 v7, v{TT+1} offset:{L_WF}
    s_mov_b64 exec, -1
    s_waitcnt lgkmcnt(0)
    s_load_dword s6, s[32:33], {W_EP}
    s_barrier""")
    srd(40, 8, 4096)
    srdws()
    A("s_cmp_lg_u32 s3, 1\ns_cbranch_scc1 L_wo")
    caddr(FA)
    A("s_lshl_b32 s39, s35, 4\ns_add_u32 s39, s39, s73\ns_waitcnt lgkmcnt(0)")
    tags()
    cval()
    for j in range(4): A(f"v_mov_b32 v{PUB+j}, {'s7' if j < 2 else 0}")
    A(f"s_mov_b64 exec, 1\nbuffer_store_dwordx4 v[{PUB}:{PUB+3}], off, s[44:47], s39 {csf}")
    if gws:
        A(f"s_cmp_lg_u32 s35, 0\ns_cbranch_scc1 L_gi\ns_mul_i32 s39, s34, {gstr}\ns_add_u32 s39, s39, {W_GX}\nbuffer_store_dwordx2 v[{PUB+2}:{PUB+3}], off, s[44:47], s39 sc1")
        A("L_gi:")
    A("s_mov_b64 exec, -1")
    G = F
    A(f"""v_mov_b32 v{PUB}, s4
    v_mov_b32 v{PUB+1}, 1
    ds_write_b64 v{TT+1}, v[{PUB}:{PUB+1}] offset:{L_TG}
    s_mul_i32 s60, s36, {8*QS}
    s_lshl_b32 s39, s37, 8
    s_add_u32 s60, s60, s39
    s_add_u32 s60, s60, {W_Q}
    s_add_u32 s61, s60, {QS}
    s_mov_b32 s39, {2*QS}
    v_lshlrev_b32 v5, 4, v3
    v_mad_u32_u24 v7, v4, s39, v5
    v_bfe_u32 v5, v1, 2, 2
    v_and_b32 v6, 3, v1
    v_lshl_add_u32 v6, v5, 4, v6
    v_lshl_add_u32 v6, v4, 2, v6
    v_lshlrev_b32 v6, 1, v6""")
    prwait("qw", qat, 4)
    poll([f"buffer_load_dwordx4 v[{G+4*t}:{G+4*t+3}], v7, s[44:47], s{60+t} offen sc1" for t in range(2)], G, 8, TT, TT+1, 8, mode=1 if "P" in abl else 0, local=True)
    strip(G, 8)
    tred([G, G+4])
    A(f"""v_cvt_pk_bf16_f32 v{G}, v{G}, v{G+4}
    v_mov_b32 v{G+1}, 0xfffefffe
    v_pk_min_u16 v{G}, v{G}, v{G+1}
    ds_write_b16 v6, v{G} offset:{L_Q}
    ds_write_b16_d16_hi v6, v{G} offset:{L_Q+128}""")
    stamp(1)
    A(cload(BI, FA))
    census("c1", BI, FA)
    if "m" in abl: A("s_branch L_ml2")
    A(f"""s_lshl_b32 s63, s37, 5
    s_add_u32 s63, s63, s36
    s_mul_i32 s63, s63, {MLS}
    s_add_u32 s63, s63, {W_ML}
    s_lshl_b32 s39, s38, {mlw}
    s_add_u32 s66, s63, s39""")
    A(f"v_and_b32 v6, 16, v2\ns_mov_b64 exec, {(1 << (1 << (mlw - 4))) - 1:#x}")
    ldswait("mw", f"ds_read_b128 v[{XR}:{XR+3}], v6 offset:{L_ML}", f"v_max_u32 v{TT}, v{XR+1}, v{XR+3}\nv_cmp_eq_u32 vcc, -1, v{TT}", 16)
    for j in range(4): A(f"v_bfi_b32 v{PUB+j}, v{FF}, s5, v{XR+j}")
    lstore(f"buffer_store_dwordx4 v[{PUB}:{PUB+3}], v2, s[44:47], s66 offen")
    A(f"""s_mov_b64 exec, 0xff
    v_and_b32 v6, 3, v1
    v_lshlrev_b32 v6, 3, v6
    v_lshrrev_b32 v{TT}, 2, v1
    v_lshl_add_u32 v6, v{TT}, {mlw}, v6""")
    prwait("mg", mlat, 16)
    poll([f"buffer_load_dwordx2 v[{XR}:{XR+1}], v6, s[44:47], s63 offen sc1"], XR, 2, TT, TT+1, psleep, base_exec="0xff", local=True)
    strip(XR, 2)
    A(f"""v_max_f32_dpp v{TT}, v{XR}, v{XR} quad_perm:[1,0,3,2] row_mask:0xf bank_mask:0xf
    v_max_f32_dpp v{TT}, v{TT}, v{TT} quad_perm:[2,3,0,1] row_mask:0xf bank_mask:0xf
    v_max_f32_dpp v{TT}, v{TT}, v{TT} row_half_mirror row_mask:0xf bank_mask:0xf
    v_sub_f32 v{XR}, v{XR}, v{TT}
    v_mul_f32 v{XR}, {LOG2E:#x}, v{XR}
    v_exp_f32 v{XR}, v{XR}
    v_mul_f32 v{TT}, v{XR}, v{XR+1}
    v_add_f32_dpp v{TT}, v{TT}, v{TT} quad_perm:[1,0,3,2] row_mask:0xf bank_mask:0xf
    v_add_f32_dpp v{TT}, v{TT}, v{TT} quad_perm:[2,3,0,1] row_mask:0xf bank_mask:0xf
    v_add_f32_dpp v{TT}, v{TT}, v{TT} row_half_mirror row_mask:0xf bank_mask:0xf
    v_rcp_f32 v{TT}, v{TT}
    v_mul_f32 v{XR}, v{XR}, v{TT}
    v_and_b32 v6, 3, v1
    v_lshlrev_b32 v6, 2, v6
    s_lshl_b32 s39, s38, 2
    s_lshl_b32 s64, 0xf, s39
    s_mov_b32 s65, 0
    s_mov_b64 exec, s[64:65]
    ds_write_b32 v6, v{XR} offset:{L_C}
    s_mov_b64 exec, -1""")
    A("L_ml2:")
    stamp(2)
    if "g" in abl or "A" in abl: A("s_branch L_tr")
    A(f"""s_and_b32 s39, s35, 6
    s_cmp_lg_u32 s39, 0
    s_cbranch_scc1 L_tr""")
    srd(68, 26, 1024)
    A(f"""s_lshl_b32 s67, s34, 1
    s_add_u32 s67, s67, s38          ; cq
    s_lshl_b32 s58, s67, 6
    s_lshl_b32 s39, s37, 10
    s_add_u32 s59, s58, s39
    s_mul_i32 s60, s34, {GS}
    s_lshl_b32 s39, s37, 8
    s_add_u32 s60, s60, s39
    s_lshl_b32 s39, s38, 7
    s_add_u32 s60, s60, s39
    s_add_u32 s60, s60, {W_G}
    s_add_u32 s61, s60, {48*GS}
    v_and_b32 v6, 7, v1
    v_lshlrev_b32 v5, 3, v6
    buffer_load_dwordx2 v[{XR}:{XR+1}], v5, s[68:71], s58 offen
    buffer_load_dwordx2 v[{XR+2}:{XR+3}], v5, s[40:43], s59 offen
    v_lshrrev_b32 v7, 3, v1
    v_lshlrev_b32 v5, 4, v6
    s_mov_b32 s39, {8*GS}
    v_mad_u32_u24 v7, v7, s39, v5""")
    gloads = [f"buffer_load_dwordx4 v[{G+4*t}:{G+4*t+3}], v7, s[44:47], s{60+t} offen sc1" for t in range(2)]
    poll(gloads, G, 8, TT, TT+1, psleep, mode=2 if "L" in abl or "G" in abl else 1 if "S" in abl else 0)
    strip(G, 8)
    for i in range(4): A(f"v_add_f32_dpp v{G+i}, v{G+4+i}, v{G+i} quad_perm:[0,1,2,3] row_mask:0xe bank_mask:0xf")
    for i in range(4): A(f"v_add_f32_dpp v{G+i}, v{G+i}, v{G+i} row_ror:8 row_mask:0xf bank_mask:0xf")
    tred([G])
    A(f"""v_bfe_u32 v5, v1, 2, 1
    v_and_b32 v7, 3, v1
    v_lshl_add_u32 v7, v5, 4, v7
    v_lshl_add_u32 v7, v4, 2, v7
    v_lshlrev_b32 v7, 2, v7
    ds_write_b32 v7, v{G} offset:{L_GT}
    v_lshlrev_b32 v7, 4, v6
    s_waitcnt lgkmcnt(0)
    ds_read_b128 v[{G}:{G+3}], v7 offset:{L_GT}
    s_waitcnt lgkmcnt(0)""")
    rbf2(G, G+1); rbf2(G+2, G+3)
    unpack(G+4, XR, 2)
    for i in range(4): A(f"v_add_f32 v{G+i}, v{G+i}, v{G+4+i}")
    rbf2(G, G+1); rbf2(G+2, G+3)
    for r in range(4):
        A(f"""v_mul_f32 v{TT}, {LOG2E ^ 0x80000000:#x}, v{G+r}
        v_exp_f32 v{TT}, v{TT}
        v_add_f32 v{TT}, 1.0, v{TT}
        v_rcp_f32 v{TT}, v{TT}
        v_mul_f32 v{G+r}, v{G+r}, v{TT}""")
    rbf2(G, G+1); rbf2(G+2, G+3)
    unpack(G+4, XR+2, 2)
    A(f"""v_lshlrev_b32 v6, 5, v6
    ds_write_b128 v6, v[{G}:{G+3}] offset:{L_G}
    ds_write_b128 v6, v[{G+4}:{G+7}] offset:{L_G+16}
    s_branch L_tr""")
    A("L_wo:")
    srd(48, 16, 0 if "o" in abl else 0x400000)
    A(f"""s_and_b32 s56, s3, 1
    s_lshl_b32 s60, s36, 17
    s_lshl_b32 s39, s56, 10
    s_add_u32 s60, s60, s39
    s_mul_i32 s39, s56, {PITCH}
    s_add_u32 m0, s39, {L_WO}
    s_mov_b32 s64, 64""")
    prwait("ws", woat, 4)
    stamp(1)
    if "w" in abl: A("s_branch L_wo2")
    A("L_wo1:")
    A(f"""s_waitcnt vmcnt({kw-1})
    buffer_load_dwordx4 v2, s[48:51], s60 offen {woflags} lds
    s_add_u32 s60, s60, 0x800
    s_add_u32 m0, m0, {2*PITCH}
    s_sub_u32 s64, s64, 1
    s_cmp_lg_u32 s64, 0
    s_cbranch_scc1 L_wo1""")
    A("L_wo2:")
    ldswait("wq", f"ds_read_b32 v{TT+1}, v7 offset:{L_Q}", f"v_cmp_eq_u32 vcc, -1, v{TT+1}", 4)
    A(f"""v_mov_b32 v{TT}, 0
    ds_read_b32 v{TT}, v{TT} offset:{L_TG}
    s_waitcnt lgkmcnt(0)
    v_readfirstlane_b32 s5, v{TT}
    s_lshl_b32 s39, s56, 2
    s_and_b32 s5, s5, 0xff
    v_mov_b32 v{TT}, s39
    s_waitcnt vmcnt(0)
    ds_write_b32 v{TT}, v{FF} offset:{L_WF}""")
    stamp(2)
    A("L_tr:")
    if ctl:
        ctl_init()
        A("s_cmp_lg_u32 s3, 0\ns_cbranch_scc1 L_tr2")
        ctl_loop("ca", cmid)
        A("L_tr2:")
    stamp(3)
    wowaitf("wf")
    stamp(4)
    A(f"""v_bfe_u32 v{TT}, v1, 2, 2
    v_lshl_add_u32 v{TT}, v4, 3, v{TT}
    v_and_b32 v7, 3, v1
    v_lshlrev_b32 v7, {5 if u4 else 3}, v7
    s_mov_b32 s39, {PITCH}
    v_mad_u32_u24 v7, v{TT}, s39, v7
    s_lshl_b32 s39, s3, 8
    s_add_u32 s39, s39, {L_WO}
    v_add_u32 v7, s39, v7
    v_add_u32 v6, {64*PITCH}, v7""")
    for cb in range(8):
        for ks in range(4):
            r = W + 4 * (cb * 4 + ks)
            off = (ks % 2) * 32 * PITCH + ((cb >> 2) * 128 + (cb & 3) * 8 if u4 else cb * 32)
            A(f"ds_read_b64_tr_b16 v[{r}:{r+1}], v{7 if ks < 2 else 6} offset:{off}")
            A(f"ds_read_b64_tr_b16 v[{r+2}:{r+3}], v{7 if ks < 2 else 6} offset:{off+4*PITCH}")
    OA = 72
    CC = 88
    DD = 92
    UU = 44
    A(f"""v_and_b32 v6, 3, v1
    v_lshlrev_b32 v6, 8, v6
    v_lshl_add_u32 v6, v4, 4, v6
    v_mov_b32 v5, 0
    v_lshlrev_b32 v7, 2, v1
    s_lshl_b32 s59, s37, 5
    s_add_u32 s59, s59, s36
    s_lshl_b32 s59, s59, 1
    s_add_u32 s59, s59, s38
    s_mul_i32 s59, s59, {US}
    s_lshl_b32 s39, s3, 9
    s_add_u32 s59, s59, s39
    s_add_u32 s59, s59, {W_U}
    s_waitcnt lgkmcnt(0)""")
    if sm:
        A(f"""v_lshl_add_u32 v6, v4, 4, v6
        v_and_b32 v7, 4, v1
        v_lshl_add_u32 v6, v7, 2, v6
        v_cmp_eq_u32 vcc, 0, v7
        v_mov_b32 v7, 0xeeee
        v_mov_b32 v{UU}, 0x4444
        v_cndmask_b32 v7, v7, v{UU}, vcc
        s_mov_b32 s56, 0x00ff00ff
        s_mov_b32 s57, 0x00ff00ff""")
        if dry: A("s_mov_b32 s58, 0\ns_branch L_dry\nL_dry2:")
        for i in range(16): A(f"v_mov_b32 v{OA+i}, 0\nv_mov_b32 v{DD+i}, 0")
    if ctl:
        A("s_cmp_lg_u32 s3, 0\ns_cbranch_scc1 L_tr3")
        ctl_loop("cb", c9)
        if wu == 1: A(f"buffer_load_dword v36, off, s[44:47], s59 {wuf}")
        if wu == 2: A(f"v_lshlrev_b32 v36, 5, v1\nbuffer_load_dword v36, v36, s[44:47], s59 offen {wuf}")
        A("L_tr3:")
    if wbat:
        A(f"s_cmp_lg_u32 s3, 3\ns_cbranch_scc1 L_tr4\ns_and_b32 s39, s35, {wbm}\ns_cmp_lg_u32 s39, {5 & wbm}\ns_cbranch_scc1 L_tr4")
        prwait("wb", wbat, 8)
        A(f"buffer_wbl2 {wbf}")
        A("L_tr4:")
    stamp(6)
    if tprio: A(f"s_setprio {tprio}")
    A("s_barrier")
    if dry: A("L_dry:")
    if sm:
        A(f"""s_mov_b64 exec, s[56:57]
        ds_read_b128 v[{OA}:{OA+3}], v6 offset:{L_O}
        ds_read_b128 v[{OA+4}:{OA+7}], v6 offset:{L_O+128}
        s_not_b64 exec, exec
        ds_read_b128 v[{OA+8}:{OA+11}], v6 offset:{L_O}
        ds_read_b128 v[{OA+12}:{OA+15}], v6 offset:{L_O+128}
        s_mov_b64 exec, -1
        ds_read_b128 v[{CC}:{CC+3}], v5 offset:{L_C}""")
        def smf(q, t):
            cb = 4 * (q & 1) + (q >> 1) + 2 * (t >> 1)
            r = W + 16 * cb + 8 * (t & 1)
            return f"v_smfmac_f32_16x16x64_bf16 v[{DD+4*q}:{DD+4*q+3}], v[{OA+4*t}:{OA+4*t+3}], v[{r}:{r+7}], v7"
        def fm(q): return [f"v_{'mul' if r == 0 else 'fmac'}_f32 v{UU+q}, v{DD+4*q+r}, v{CC+r}" for r in range(4)]
        def fin(j): return [f"v_permlane16_swap_b32 v{UU+2*j}, v{UU+2*j+1}", f"v_add_f32 v{UU+2*j}, v{UU+2*j}, v{UU+2*j+1}", f"v_add_u32 v{PUB+j}, 0x80, v{UU+2*j}",
                            f"v_bfi_b32 v{PUB+j}, v{FF}, s5, v{PUB+j}", f"v_permlane32_swap_b32 v{PUB+j}, v{PUB+2+j}"]
        if sm == 1: seq = [(q, t) for q in range(4) for t in range(4)]; fill = {6: fm(0)[:2], 7: fm(0)[2:], 10: fm(1)[:2], 11: fm(1)[2:], 12: fin(0)[:2], 13: fin(0)[2:], 14: fm(2)[:2], 15: fm(2)[2:]}; last = fm(3) + fin(1)
        else: seq = [(q + 2 * p, t) for p in range(2) for t in range(4) for q in range(2)]; fill = {10: fm(0)[:2], 11: fm(0)[2:], 12: fm(1)[:2], 13: fm(1)[2:], 14: fin(0)[:2], 15: fin(0)[2:]}; last = [x for pr in zip(fm(2), fm(3)) for x in pr] + fin(1)
        if pk:
            def fm(q):
                d = DD + 4 * q
                return [f"v_pk_mul_f32 v[{d}:{d+1}], v[{d}:{d+1}], v[{CC}:{CC+1}]", f"v_pk_fma_f32 v[{d}:{d+1}], v[{d+2}:{d+3}], v[{CC+2}:{CC+3}], v[{d}:{d+1}]", f"v_add_f32 v{UU+q}, v{d}, v{d+1}"]
        if sm == 3: seq = [(q, t) for t in range(4) for q in range(4)]; fill = {}; last = [x for pr in zip(fm(0), fm(1), fm(2), fm(3)) for x in pr] + [x for pr in zip(fin(0), fin(1)) for x in pr]
        if sm == 4:
            seq = [(0,0),(1,0),(2,0),(0,1),(1,1),(2,1),(0,2),(1,2),(3,0),(0,3),(1,3),(3,1),(2,2),(3,2),(2,3),(3,3)]
            fill = {12: fm(0), 13: fm(1), 14: fin(0)[:2], 15: fin(0)[2:]}; last = [x for pr in zip(fm(2), fm(3)) for x in pr] + fin(1)
        got = 0
        for i, (q, t) in enumerate(seq):
            if t >= got: A(f"s_waitcnt lgkmcnt({4-t})"); got = t + 1
            A(smf(q, t))
            if i in fill:
                if got < 5: A("s_waitcnt lgkmcnt(0)"); got = 5
                for x in fill[i]: A(x)
        if got < 5: A("s_waitcnt lgkmcnt(0)")
        if dry: A("s_xor_b32 s58, s58, 1")
        for x in last: A(x)
        if dry: A("s_cbranch_scc1 L_dry2")
        A(f"s_mov_b32 exec_hi, 0\nbuffer_store_dwordx4 v[{PUB}:{PUB+3}], v2, s[44:47], s59 offen {usf}")
    else:
        for ks in range(4):
            A(f"ds_read_b128 v[{OA+4*ks}:{OA+4*ks+3}], v6 offset:{L_O+ks*64}")
        A(f"ds_read_b128 v[{CC}:{CC+3}], v5 offset:{L_C}")
        for ks in range(4):
            A(f"s_waitcnt lgkmcnt({4-ks})")
            for cb in range(8):
                r = W + 4 * (cb * 4 + ks)
                d = DD + 4 * cb
                A(f"v_mfma_f32_16x16x32_bf16 v[{d}:{d+3}], v[{OA+4*ks}:{OA+4*ks+3}], v[{r}:{r+3}], {'0' if ks == 0 else f'v[{d}:{d+3}]'}")
        A("s_waitcnt lgkmcnt(0)")
        if u4:
            for r in range(4):
                for cb in range(8):
                    A(f"v_{'mul' if r == 0 else 'fmac'}_f32_dpp v{UU+cb%4}, v{DD+4*cb+r}, v{CC+r} quad_perm:[0,1,2,3] row_mask:{0x5 << (cb//4):#x} bank_mask:0xf")
            for j in range(4): A(f"v_add_u32 v{PUB+j}, 0x80, v{UU+j}")
            for j in range(4): A(f"v_bfi_b32 v{PUB+j}, v{FF}, s5, v{PUB+j}")
            if "h" in abl: A("s_bitcmp1_b32 s3, 0\ns_cbranch_scc1 L_end")
            if "i" in abl: A("s_cmp_lg_u32 s3, 0\ns_cbranch_scc1 L_end")
            if "U" not in abl: A(f"s_mov_b32 exec_hi, 0\nbuffer_store_dwordx4 v[{PUB}:{PUB+3}], v2, s[44:47], s59 offen {usf}")
        else:
            for r in range(4):
                for cb in range(8):
                    A(f"v_{'mul' if r == 0 else 'fmac'}_f32_dpp v{UU+cb//4+2*(cb%4)}, v{DD+4*cb+r}, v{CC+r} quad_perm:[0,1,2,3] row_mask:{1<<(cb%4):#x} bank_mask:0xf")
            for j in range(2):
                for gq in range(1, 4):
                    A(f"v_mov_b32_dpp v{UU+j}, v{UU+j+2*gq} quad_perm:[0,1,2,3] row_mask:{1<<gq:#x} bank_mask:0xf")
            tagv(PUB, UU, FF); tagv(PUB+1, UU+1, FF)
            if "U" not in abl: A(f"""buffer_store_dword v{PUB}, v7, s[44:47], s59 offen sc1
            buffer_store_dword v{PUB+1}, v7, s[44:47], s59 offen offset:256 sc1""")
    if stamps:
        stamp(7)
        A(f"s_cmp_lg_u32 s3, {hst}\ns_cbranch_scc1 L_end")
        A("s_lshl_b32 s90, s74, 4\ns_add_u32 s90, s90, s75\ns_mov_b32 s91, 0")
        write_stamps(8, 8)
    A("L_end:")
    A("s_endpgm")
    E.raw(f""".section .rodata,"a"
.p2align 6
.amdhsa_kernel {KN}
  .amdhsa_next_free_vgpr 256
  .amdhsa_next_free_sgpr 102
  .amdhsa_accum_offset 256
  .amdhsa_group_segment_fixed_size 0
  .amdhsa_kernarg_size 104
  .amdhsa_user_sgpr_count 2
  .amdhsa_user_sgpr_kernarg_segment_ptr 1
  .amdhsa_system_sgpr_workgroup_id_x 1
  .amdhsa_float_denorm_mode_32 3
.end_amdhsa_kernel""")
    return E.text()

if __name__ == "__main__":
    kw_ = {}
    out = sys.argv[1]
    for a in sys.argv[2:]:
        kk, v = a.split("=")
        kw_[kk] = int(v) if (v.lstrip("-").isdigit() and kk != "abl") else v.replace("+", " ")
    open(out, "w").write(gen(**kw_))
```

```python
import sys, struct
from emit import Emit
KN = "recurrent_scan__mha_block_cached__mixer_channel_mlp__decode_kernel"
HEADER = open("recurrent_scan__mha_block_cached__mixer_channel_mlp__decode.s.ref").read().split("; Override launch")[0]

L_Q  = 0x000
L_WF = 0x100
L_PR = 0x110
L_TG = 0x108
L_KB = 0x120
L_GT = 0x140
L_O  = 0x800
L_ML = 0xC00
L_C  = 0xC40
L_G  = 0xC80
L_T  = 0x1000
L_WO = 0x5000
PITCH = 1040
LDS_BYTES = L_WO + 128 * PITCH
W_EP = 0x0
W_C  = 0x1000
LOG2E = 0x3fb8aa3b
SCALE = 0x3db504f3
POLL_LIMIT = 0x20000
def f2u(x): return struct.unpack("<I", struct.pack("<f", x))[0]

def gen(pst=0, k=6, kp=6, NS=48, npro=48, dt=2, kq=16, kqb=4, kw=3, km=8, kvflags="nt", wflags="nt", woflags="nt", mflags="nt", stamps=0, hst=2, abl="",
        sprio=3, hprio=0, fsleep=2, gap=40, hx=0, hk=0, QS=1024, HS=1024, GS=1024, US=2048, pad=0x40000, psleep=32, idle=3, MLS=256, mlw=7, ks="0:5,244:10", u4=1, lf="nt", cre=3, force=0, c2=4, cpos=1, perm=0, ulf="sc1", usf="sc1", osf="", fp=1, fmax=16, fthr=9, fs2=0, esf="", diag=0, ctl=1, cP=16, cS=2, c0=80, c1=236, c9=250, cmid=160, kb=2, m0=2, gn=6, cD=2, csl=1, cfl="", cstr=128, tau0=232, jm=3, gl=0, lg=0, ge=0, gsl=4, wdl=0, kbat=999, kb2=5, x7=0, tl=3, pk=1, dry=0, tprio=3, wu=0, wuf="", fb=0, fq=1, nb=0, bs=3, fe=4, sm=3, tmo=0, csf="", wbat=0, wbf="sc1", wbm=31, m1=6, tA=0, ga=1, gsm=1, pstep=3, pub0=2, glf="nt", cs=8, gi=0, gx=0, gq=8, gws=0, gstr=32, dcal=8, gsk=16, gcm=1, cx=0, rdp=2, wd=0, wst=0, wb=0x2000,
        qat=28, woat=40, m2at=56, mlat=166):
    sched = sorted((int(x.split(':')[0]), int(x.split(':')[1])) for x in ks.split(','))
    kp = sched[0][1]
    if lg: gl = lg
    def up(x): return (x + pad - 1) // pad * pad
    W_H = up(wb); W_G = up(W_H + 112 * HS); W_ML = up(W_G + 112 * GS); W_U = up(W_ML + 128 * MLS); W_Q = up(W_U + 256 * US); W_GX = up(W_Q + 256 * QS); W_END = up(W_GX + 8 * 16 * gstr)
    assert W_END <= 0x20000000
    E = Emit()
    A = E
    E.raw(HEADER.rstrip())
    E.raw(f"; @launch grid=(256,1,1) block=(512,1,1) lds={LDS_BYTES}")
    E.raw('.amdgcn_target "amdgcn-amd-amdhsa--gfx950"\n.text')
    E.raw(f".globl {KN}\n.p2align 8\n.type {KN},@function\n{KN}:")

    def srd(r, lo, size):
        A(f"s_mov_b32 s{r}, s{lo}\ns_mov_b32 s{r+1}, s{lo+1}\ns_mov_b32 s{r+2}, {size:#x}\ns_mov_b32 s{r+3}, 0x20000")
    def srdws(): srd(44, 32, W_END)
    def swapadd(v, t, sw, op="add_f32", A=A):
        A(f"v_mov_b32 v{t}, v{v}\nv_permlane{sw}_swap_b32 v{v}, v{t}\nv_{op} v{v}, v{v}, v{t}")
    def allred(v, t, op="add_f32", A=A):
        for kk in (8, 4, 2, 1):
            A(f"v_{op}_dpp v{v}, v{v}, v{v} row_ror:{kk} row_mask:0xf bank_mask:0xf")
        swapadd(v, t, 16, op, A); swapadd(v, t, 32, op, A)
    def red16x(v, t):
        for p in ("row_ror:4", "row_ror:8"):
            A(f"v_add_f32_dpp v{v}, v{v}, v{v} {p} row_mask:0xf bank_mask:0xf")
        swapadd(v, t, 16); swapadd(v, t, 32)
    def rbf(v):
        A(f"v_cvt_pk_bf16_f32 v{v}, v{v}, v{v}\nv_and_b32 v{v}, 0xffff0000, v{v}")
    def rbf2(a, b, A=A):
        A(f"v_cvt_pk_bf16_f32 v{b}, v{a}, v{b}\nv_lshlrev_b32 v{a}, 16, v{b}\nv_and_b32 v{b}, 0xffff0000, v{b}")
    def unpack(dst, src, n):
        for i in range(n):
            A(f"v_lshlrev_b32 v{dst+2*i}, 16, v{src+i}\nv_and_b32 v{dst+2*i+1}, 0xffff0000, v{src+i}")
    def ln_stats(f, n, mb, rd, t, red):
        A(f"v_add_f32 v{mb}, v{f}, v{f+1}\nv_add_f32 v{t+1}, v{f+2}, v{f+3}")
        for j in range(4, n, 2): A(f"v_add_f32 v{mb}, v{mb}, v{f+j}\nv_add_f32 v{t+1}, v{t+1}, v{f+j+1}")
        A(f"v_add_f32 v{mb}, v{mb}, v{t+1}")
        red(mb, t)
        A(f"v_mul_f32 v{mb}, 0x3b000000, v{mb}")
        A(f"v_sub_f32 v{t+1}, v{f}, v{mb}\nv_sub_f32 v{t+2}, v{f+1}, v{mb}\nv_mul_f32 v{rd}, v{t+1}, v{t+1}\nv_mul_f32 v{t}, v{t+2}, v{t+2}")
        for j in range(2, n, 2):
            A(f"v_sub_f32 v{t+1}, v{f+j}, v{mb}\nv_sub_f32 v{t+2}, v{f+j+1}, v{mb}\nv_fmac_f32 v{rd}, v{t+1}, v{t+1}\nv_fmac_f32 v{t}, v{t+2}, v{t+2}")
        A(f"v_add_f32 v{rd}, v{rd}, v{t}")
        red(rd, t)
        A(f"v_mul_f32 v{rd}, 0x3b000000, v{rd}")
        rbf2(mb, rd)
        A(f"v_add_f32 v{rd}, 0x3727c5ac, v{rd}")
        rbf(rd)
        A(f"v_sqrt_f32 v{rd}, v{rd}")
        rbf(rd)
        A(f"v_rcp_f32 v{rd}, v{rd}")
    def ln_apply(f, n, mb, rd, pack=None):
        for j in range(n): A(f"v_sub_f32 v{f+j}, v{f+j}, v{mb}")
        for j in range(0, n, 2): rbf2(f+j, f+j+1)
        for j in range(n): A(f"v_mul_f32 v{f+j}, v{f+j}, v{rd}")
        if pack is not None:
            for j in range(0, n, 2): A(f"v_cvt_pk_bf16_f32 v{pack+j//2}, v{f+j}, v{f+j+1}")
        else:
            for j in range(0, n, 2): rbf2(f+j, f+j+1)
    def masks(mk, t):
        A(f"""v_and_b32 v{t}, 1, v1
        v_lshlrev_b32 v{t}, 4, v{t}
        s_mov_b32 s39, 0xffff
        v_lshlrev_b32_e64 v{t}, v{t}, s39
        v_bfe_u32 v{t+1}, v1, 1, 2""")
        for kk in range(4):
            A(f"v_cmp_eq_u32 vcc, {kk}, v{t+1}\nv_cndmask_b32 v{mk+kk}, 0, v{t}, vcc")
    def stamp(i):
        if stamps: A(f"s_memrealtime s[{80+2*i}:{81+2*i}]")
    def write_stamps(base, n):
        if not stamps: return
        A("s_waitcnt lgkmcnt(0)")
        A("s_mov_b32 s76, s32\ns_mov_b32 s77, s33\ns_mov_b32 s78, 0x20000000\ns_mov_b32 s79, 0x20000")
        A(f"s_lshl_b32 s39, s2, 7\ns_add_u32 s39, s39, {0x10000000 + base*8}")
        A("s_mov_b64 exec, 1\nv_mov_b32 v20, 0")
        for i in range(n):
            A(f"v_mov_b32 v22, s{80+2*i}\nv_mov_b32 v23, s{81+2*i}\nbuffer_store_dwordx2 v[22:23], v20, s[76:79], s39 offen offset:{i*8}\ns_nop 1")
    def tags():
        A("s_add_u32 s4, s6, 1\ns_and_b32 s5, s4, 0xff")
    def check(d, n, a0, a1, grp):
        A(f"v_xor_b32 v{a0}, s5, v{d}\nv_xor_b32 v{a1}, s5, v{d+1}")
        for i in range(2, n):
            a = a0 if i % 2 == 0 else a1
            A(f"v_bitop3_b32 v{a}, v{d+i}, v{a}, s5 bitop3:0xde")
        A(f"v_or_b32 v{a0}, v{a0}, v{a1}\nv_and_b32 v{a0}, 0xff, v{a0}")
        for p in ("quad_perm:[1,0,3,2]", "quad_perm:[2,3,0,1]", "row_half_mirror")[:grp]:
            A(f"v_or_b32_dpp v{a0}, v{a0}, v{a0} {p} row_mask:0xf bank_mask:0xf")
        A(f"v_cmp_ne_u32 vcc, 0, v{a0}")
    lab = [0]
    tid = [0]
    def tmark(nm):
        if not tmo: return
        tid[0] += 1
        sys.stderr.write(f"timeout id {tid[0]} = {nm}\n")
        A(f"v_mov_b32 v0, {4*tid[0]}\nglobal_store_dword v0, v0, s[30:31] sc1")
    def poll(loads, d, n, a0, a1, sleep, base_exec="-1", first_issued=False, mode=0, grp=3, local=False):
        if mode:
            if mode == 1:
                for l in loads: A(l)
            A("s_waitcnt vmcnt(0)")
            return
        lab[0] += 1
        L = f"L_pl{lab[0]}"
        A(f"s_mov_b32 s72, {POLL_LIMIT}")
        if not first_issued:
            for l in loads: A(l.replace("sc1", lf) if local else l)
        A(f"{L}:")
        A("s_waitcnt vmcnt(0)")
        check(d, n, a0, a1, grp)
        A(f"s_cbranch_vccz {L}d")
        if sleep: A(f"s_sleep {sleep}")
        A("s_mov_b64 exec, vcc")
        for l in loads: A(l)
        A(f"s_mov_b64 exec, {base_exec}\ns_sub_u32 s72, s72, 1\ns_cbranch_scc0 {L}\ns_waitcnt vmcnt(0)")
        tmark(L + " " + loads[0])
        A(f"{L}d:")
    def tred(ds):
        for d in ds: A(f"v_permlane32_swap_b32 v{d}, v{d+2}\nv_permlane32_swap_b32 v{d+1}, v{d+3}")
        for d in ds: A(f"v_add_f32 v{d}, v{d}, v{d+2}\nv_add_f32 v{d+1}, v{d+1}, v{d+3}")
        for d in ds: A(f"v_permlane16_swap_b32 v{d}, v{d+1}")
        for d in ds: A(f"v_add_f32 v{d}, v{d}, v{d+1}")
    def cval():
        A("s_getreg_b32 s7, hwreg(HW_REG_XCC_ID)\ns_and_b32 s7, s7, 15\ns_lshl_b32 s7, s7, 8\ns_or_b32 s7, s7, s5")
    def cload(d, a):
        return f"buffer_load_dwordx2 v[{d}:{d+1}], v{a}, s[44:47], s73 offen {lf}"
    def caddr(a):
        A(f"v_and_b32 v{a}, 0x1f0, v2\ns_lshl_b32 s73, s34, 9\ns_add_u32 s73, s73, {W_C}")
    def census(nm, d, a):
        A(f"s_mov_b32 s72, {cre}\ns_mov_b32 s74, 1")
        A(f"L_{nm}:")
        A(f"""s_waitcnt vmcnt(0)
        v_xor_b32 v{d}, s7, v{d}
        v_bitop3_b32 v{d}, v{d+1}, v{d}, s7 bitop3:0xde
        v_cmp_ne_u32 vcc, 0, v{d}
        s_cbranch_vccz L_{nm}d
        s_sleep 8
        {cload(d, a)}
        s_sub_u32 s72, s72, 1
        s_cbranch_scc0 L_{nm}
        s_waitcnt vmcnt(0)
        s_mov_b32 s74, 0""")
        A(f"L_{nm}d:")
        if stamps: A("s_and_b32 s75, s72, 15")
        if force: A(f"s_mov_b32 s74, {force - 1}")
        if diag == 1 and nm == "c1":
            A(f"s_cmp_eq_u32 s74, 1\ns_cbranch_scc1 L_dg\ns_mov_b32 s72, 40")
            A("L_dg0:")
            A("s_sleep 100\ns_sub_u32 s72, s72, 1\ns_cbranch_scc0 L_dg0")
            A("L_dg:")
    def lstore(st_):
        lab[0] += 1
        L = f"L_st{lab[0]}"
        A(f"s_cmp_eq_u32 s74, 0\ns_cbranch_scc1 {L}\n{st_}\ns_branch {L}d")
        A(f"{L}:\n{st_} sc1")
        A(f"{L}d:")
    def strip(d, n):
        for i in range(n): A(f"v_and_b32 v{d+i}, 0xffffff00, v{d+i}")
    def tagv(dst, src, ff):
        A(f"v_add_u32 v{dst}, 0x80, v{src}\nv_bfi_b32 v{dst}, v{ff}, s5, v{dst}")

    A("""s_cmp_ge_u32 s2, 256
    s_cbranch_scc1 L_end""")
    if perm == 1: A("s_lshr_b32 s3, s2, 3\ns_and_b32 s2, s2, 7\ns_lshl_b32 s2, s2, 5\ns_or_b32 s2, s2, s3")
    if perm == 2: A("s_cmp_lt_u32 s2, 2\ns_cselect_b32 s3, 1, 0\ns_xor_b32 s2, s2, s3")
    if perm == 3: A("s_lshr_b32 s3, s2, 7\ns_xor_b32 s2, s2, s3")
    stamp(0)
    if diag >= 2: A("s_memrealtime s[80:81]")
    A("""s_load_dwordx16 s[8:23], s[0:1], 0
    s_load_dwordx8 s[24:31], s[0:1], 64
    s_load_dwordx2 s[32:33], s[0:1], 96
    v_lshrrev_b32 v2, 6, v0
    v_and_b32 v1, 63, v0
    s_and_b32 s34, s2, 7
    v_readfirstlane_b32 s3, v2
    s_lshr_b32 s35, s2, 3
    s_bfe_u32 s36, s35, 0x20001
    s_lshl_b32 s39, s34, 2
    s_add_u32 s36, s36, s39          ; h
    s_xor_b32 s36, s36, HXX
    s_lshr_b32 s37, s35, 3           ; b
    s_and_b32 s38, s35, 1            ; sp
    s_cmp_lt_u32 s3, 4
    s_cbranch_scc1 L_H""".replace("s_xor_b32 s36, s36, HXX", f"s_xor_b32 s36, s36, {hx}" if hx else ""))
    if hk: A(f"s_xor_b32 s36, s36, {hk}")

    T = 8
    Q = 24
    MK = 28
    S = 32
    AO = 40
    ACC = 48
    TMP = 52
    RB = 64
    if sprio: A(f"s_setprio {sprio}")
    A(f"""s_sub_u32 s56, s3, 4
    s_lshl_b32 s57, s37, 5
    s_add_u32 s57, s57, s36
    s_lshl_b32 s57, s57, 20
    s_lshl_b32 s58, s38, 19
    s_add_u32 s57, s57, s58
    s_lshl_b32 s58, s56, 10
    s_add_u32 s57, s57, s58
    s_mov_b32 s59, s57
    v_lshlrev_b32 v2, 4, v1
    s_waitcnt lgkmcnt(0)""")
    if pst == 2: stamp(5)
    srd(40, 10, 0x8000000)
    st = dict(ii=0, ci=0, landed=0, cnt=0)
    def slot(i): return RB + 4 * (i % NS)
    def kat(ii): return [kk for (a, kk) in sched if ii >= a][-1]
    def cact(ii): return ctl and ii >= c0 + 4 and kat(ii) < 8
    def kcur(): return kat(st["ii"] + 3 * wd) + ((kb2 if st["ii"] >= kbat else kb) if cact(st["ii"]) else 0)
    def issue():
        kk = kcur()
        ii = st["ii"]
        if ii >= 256 or ii - st["ci"] >= NS: return False
        if cact(ii):
            if ii % rdp == 0: A("s_waitcnt lgkmcnt(0)\nv_readfirstlane_b32 s64, v62")
            A(f"s_cmp_gt_u32 s64, {ii}\ns_cbranch_scc1 L_wk{ii}\ns_waitcnt vmcnt({kat(ii)-1})")
            A(f"L_wk{ii}:")
        if ii - (kk - 1) > st["landed"]:
            A(f"s_waitcnt vmcnt({kk-1})"); st["landed"] = ii - (kk - 1)
        if cact(ii): pass
        elif kat(ii) < kk:
            for w_ in (1, 2, 3):
                if kat(ii + w_ * wd) != kat(ii + w_ * wd - 1): A(f"s_cmp_ge_u32 s56, {w_}\ns_cselect_b64 vcc, -1, 0")
            A(f"s_cbranch_vccnz L_wk{ii}\ns_waitcnt vmcnt({kat(ii)-1})")
            A(f"L_wk{ii}:")
        r = slot(ii)
        A(f"buffer_load_dwordx4 v[{r}:{r+3}], v2, s[{40 if ii < 128 else 48}:{43 if ii < 128 else 51}], s59 offen {kvflags}")
        if ii == 127: A("s_mov_b32 s59, s57")
        elif ii < 255: A("s_add_u32 s59, s59, 4096")
        if cact(ii + 1) and (ii + 1) % rdp == 0: A(f"ds_read_b32 v62, v7 offset:{L_KB}")
        if ii in (qat, woat, m2at, mlat) or (ctl and ii >= c0): A(f"v_mov_b32 v6, {ii}\nds_write_b32 v7, v6 offset:{L_PR}")
        st["ii"] += 1; st["cnt"] = 0
        return True
    def landed(i):
        if i >= st["landed"]:
            A(f"s_waitcnt vmcnt({st['ii'] - i - 1})"); st["landed"] = i + 1
    def consumed(i):
        st["ci"] = i + 1
        if i < kcur() or st["ii"] - st["ci"] <= kcur() + dt or i % 2 == 1: issue()
        if st["ii"] - st["ci"] < kcur() + dt: issue()
    def AH(text):
        for t in text.strip().split("\n"):
            A(t); st["cnt"] += 1
            if st["cnt"] >= gap: issue()
    for i in range(npro):
        issue()
        if pst == 1 and i in (11, 23, 35): stamp({11: 5, 23: 6, 35: 7}[i])
        if pst == 2 and i in (kp, 2*kp): stamp({kp: 6, 2*kp: 7}[i])
        if i == kp - 1:
            A("s_barrier")
            srd(48, 12, 0x8000000)
            masks(MK, TMP)
            A(f"""s_mov_b32 s60, 0xaaaaaaaa
            s_mov_b32 s61, 0xaaaaaaaa
            s_mov_b32 s62, 0xcccccccc
            s_mov_b32 s63, 0xcccccccc
            s_mov_b32 s65, {SCALE:#x}
            s_mov_b32 s66, {LOG2E:#x}
            v_and_b32 v3, 15, v1
            v_lshlrev_b32 v3, 4, v3
            s_lshl_b32 s39, s56, 2
            v_mov_b32 v7, s39
            s_mov_b32 s72, {POLL_LIMIT}""")
    stamp(1)
    A("L_QW:")
    A(f"""ds_read_b128 v[{Q}:{Q+3}], v3 offset:{L_Q}
    s_waitcnt lgkmcnt(0)
    v_max3_u32 v{TMP}, v{Q}, v{Q+1}, v{Q+2}
    v_max_u32 v{TMP}, v{TMP}, v{Q+3}
    v_cmp_eq_u32 vcc, -1, v{TMP}
    s_cbranch_vccz L_QD
    s_sleep 1
    s_sub_u32 s72, s72, 1
    s_cbranch_scc0 L_QW""")
    tmark("QW")
    A("L_QD:")
    A(f"v_mov_b32 v5, 0\nds_read_b32 v5, v5 offset:{L_TG}")
    stamp(2)
    for g in range(8):
        pend = None
        for c in range(16):
            i = 16 * g + c
            r = slot(i)
            landed(i)
            A(f"v_dot2_f32_bf16 v{T+c}, v{r}, v{Q}, 0")
            for kk in range(1, 4):
                A(f"v_dot2_f32_bf16 v{T+c}, v{r+kk}, v{Q+kk}, v{T+c}")
            if pend: A(pend)
            consumed(i)
            if c < 8: pend = f"v_add_f32_dpp v{T+c}, v{T+c}, v{T+c} row_ror:8 row_mask:0xf bank_mask:0x3"
            else:     pend = f"v_add_f32_dpp v{T+c-8}, v{T+c}, v{T+c} row_ror:8 row_mask:0xf bank_mask:0xc"
        A(pend)
        for i in range(4): A(f"v_add_f32_dpp v{T+i}, v{T+i}, v{T+i} row_half_mirror row_mask:0xf bank_mask:0x5")
        for i in range(4): A(f"v_add_f32_dpp v{T+i}, v{T+i+4}, v{T+i+4} row_half_mirror row_mask:0xf bank_mask:0xa")
        for i in range(4): A(f"v_add_f32_dpp v{T+i}, v{T+i}, v{T+i} quad_perm:[2,3,0,1] row_mask:0xf bank_mask:0xf")
        for i in range(2): A(f"v_cndmask_b32 v{T+i}, v{T+i}, v{T+i+2}, s[62:63]")
        for i in range(2): A(f"v_add_f32_dpp v{T+i}, v{T+i}, v{T+i} quad_perm:[1,0,3,2] row_mask:0xf bank_mask:0xf")
        A(f"v_cndmask_b32 v{S+g}, v{T}, v{T+1}, s[60:61]")
    stamp(3)
    st["cnt"] = 20
    for j in range(0, 8, 2): rbf2(S+j, S+j+1, AH)
    for j in range(8): AH(f"v_mul_f32 v{S+j}, s65, v{S+j}")
    for j in range(0, 8, 2): rbf2(S+j, S+j+1, AH)
    M = TMP + 2; Lr = TMP + 3; M2 = TMP + 4
    AH(f"""v_max3_f32 v{M}, v{S}, v{S+1}, v{S+2}
    v_max3_f32 v{M}, v{M}, v{S+3}, v{S+4}
    v_max3_f32 v{M}, v{M}, v{S+5}, v{S+6}
    v_max_f32 v{M}, v{M}, v{S+7}""")
    allred(M, TMP, "max_f32", AH)
    AH(f"v_mul_f32 v{M2}, s66, v{M}")
    for j in range(8): AH(f"v_fma_f32 v{S+j}, v{S+j}, s66, -v{M2}")
    for j in range(8): AH(f"v_exp_f32 v{S+j}, v{S+j}")
    AH(f"v_add_f32 v{Lr}, v{S}, v{S+1}")
    for j in range(2, 8): AH(f"v_add_f32 v{Lr}, v{Lr}, v{S+j}")
    for j in range(8): AH(f"v_cvt_pk_bf16_f32 v{S+j}, v{S+j}, v{S+j}")
    allred(Lr, TMP, "add_f32", AH)
    AH(f"""v_min_u32 v{Lr}, -2, v{Lr}
    s_lshl_b32 s39, s56, 3
    v_mov_b32 v{TMP}, s39
    ds_write_b64 v{TMP}, v[{M}:{Lr}] offset:{L_ML}""")
    if sm:
        AH(f"""v_and_b32 v3, 14, v1
        v_lshlrev_b32 v3, 4, v3
        v_and_b32 v4, 1, v1
        v_lshl_add_u32 v3, v4, 3, v3
        v_lshrrev_b32 v4, 4, v1
        v_lshl_add_u32 v3, v4, 2, v3
        s_lshl_b32 s39, s56, 8
        s_add_u32 s39, s39, {L_O}
        v_add_u32 v3, s39, v3""")
    else: AH(f"""v_and_b32 v3, 15, v1
    v_lshlrev_b32 v3, 4, v3
    v_lshrrev_b32 v4, 4, v1
    v_lshl_add_u32 v3, v4, 3, v3
    s_lshl_b32 s39, s56, 8
    v_add_u32 v3, s39, v3""")
    def aprep(i):
        g, c = divmod(i, 16)
        for kk in range(4):
            A(f"v_and_b32_dpp v{AO+4*(i%2)+kk}, v{S+g}, v{MK+kk} row_newbcast:{c} row_mask:0xf bank_mask:0xf")
    FU = 128; FX = 160
    fset = [f"s_mov_b32 s44, s32\ns_mov_b32 s45, s33\ns_mov_b32 s46, {W_END:#x}\ns_mov_b32 s47, 0x20000\ns_mov_b32 s40, s28\ns_mov_b32 s41, s29\ns_mov_b32 s42, 4096\ns_waitcnt lgkmcnt(0)\nv_readfirstlane_b32 s4, v5",
        f"""s_lshl_b32 s67, s34, 1
        s_and_b32 s5, s4, 0xff
        s_add_u32 s67, s67, s38
        s_mul_i32 s8, s37, {64*US}
        s_lshl_b32 s39, s67, 7
        s_add_u32 s8, s8, s39
        s_add_u32 s8, s8, {W_U}
        v_lshrrev_b32 v8, 3, v1
        s_mov_b32 s39, {US}
        v_mul_u32_u24 v8, s39, v8
        v_and_b32 v9, 7, v1
        v_lshl_add_u32 v8, v9, 4, v8""",
        "\n".join(f"s_add_u32 s{8+t}, s8, {t*8*US}" for t in range(1, 8)),
        f"""v_lshrrev_b32 v10, 4, v1
        v_and_b32 v11, 4, v1
        v_add_u32 v10, v10, v11
        v_and_b32 v11, 3, v1
        v_lshl_add_u32 v9, v10, 2, v11
        v_lshlrev_b32 v9, 1, v9\n""" + ("v_lshlrev_b32 v10, 2, v1" if lg else "v_lshlrev_b32 v11, 2, v11\nv_lshl_add_u32 v10, v10, 5, v11"),
        f"""s_lshl_b32 s71, s37, 10
        s_lshl_b32 s39, s67, 6
        s_add_u32 s71, s71, s39
        s_mov_b32 s68, 0xff
        s_mov_b32 s69, 0xff
        s_mov_b32 s72, {POLL_LIMIT}
        s_and_b32 s39, s35, 6
        s_or_b32 s39, s39, s56
        s_cselect_b64 vcc, 0, -1""",
        ] + ["\n".join(f"v_not_b32 v{FU+8*j+i}, s5" for i in range(8)) for j in range(4)]
    fqloads = [f"buffer_load_dwordx4 v[{FU+4*t}:{FU+4*t+3}], v8, s[44:47], s{8+t} offen {ulf}" for t in range(8)]
    aprep(0)
    for i in range(128):
        r = slot(128 + i); a = AO + 4 * (i % 2)
        if fq and fe >= 2 and i == 129 - fe:
            assert st["ii"] == 256
            A("s_cbranch_vccz L_nf")
            for l in fqloads: A(l)
            for j in range(i, 128):
                A(f"s_waitcnt vmcnt({8 + 127 - j})")
                A(f"v_mfma_f32_16x16x32_bf16 v[{ACC}:{ACC+3}], v[{AO+4*(j%2)}:{AO+4*(j%2)+3}], v[{slot(128+j)}:{slot(128+j)+3}], v[{ACC}:{ACC+3}]")
                if j < 127: aprep(j + 1)
            A("s_branch L_nj")
            A("L_nf:")
        landed(128 + i)
        A(f"v_mfma_f32_16x16x32_bf16 v[{ACC}:{ACC+3}], v[{a}:{a+3}], v[{r}:{r+3}], {'0' if i == 0 else f'v[{ACC}:{ACC+3}]'}")
        if i < 127: aprep(i + 1)
        consumed(128 + i)
        if fq and 100 <= i < 100 + len(fset): A(fset[i - 100])
    if fq and fe >= 2: A("L_nj:")
    stamp(4)
    A(f"""v_cvt_pk_bf16_f32 v{TMP}, v{ACC}, v{ACC+1}
    v_cvt_pk_bf16_f32 v{TMP+1}, v{ACC+2}, v{ACC+3}
    s_mov_b32 exec_hi, 0
    {f"ds_write2_b32 v3, v{TMP}, v{TMP+1} offset1:4" if sm else f"ds_write_b64 v3, v[{TMP}:{TMP+1}] offset:{L_O}"}
    s_mov_b64 exec, -1""")
    if fq and fe == 1:
        A("s_cbranch_vccz L_nf")
        for l in fqloads: A(l)
        A("L_nf:")
    A(f"""s_waitcnt lgkmcnt(0)
    s_barrier
    s_cmp_lg_u32 s56, 0
    s_cbranch_scc1 {'L_wst' if wst else 'L_end'}""")
    if not pst: stamp(5); stamp(6)
    A(f"""s_and_b32 s39, s35, 6
    s_cmp_lg_u32 s39, 0
    s_cbranch_scc1 L_fend""")
    if "h" in abl: A("s_bitcmp1_b32 s34, 1\ns_cbranch_scc1 L_fend")
    if "i" in abl: A("s_and_b32 s39, s34, 6\ns_cbranch_scc1 L_fend")
    VO = 4; SO = 48
    if fq:
        U = FU; VO = 9; SO = 40
        uloads = fqloads
        if not fe:
            for l in uloads: A(l)
        if lg: A(f"ds_read_b32 v45, v10 offset:{L_G+256}")
        else: A(f"ds_read_b32 v44, v10 offset:{L_G}\nds_read_b32 v45, v10 offset:{L_G+16}")
        for r in range(nb):
            if bs: A(f"s_sleep {bs}")
            for l in uloads: A(l)
    else:
        U = 8
        srdws()
        A(f"""v_readfirstlane_b32 s4, v5
        s_lshl_b32 s67, s34, 1
        s_and_b32 s5, s4, 0xff
        s_add_u32 s67, s67, s38          ; cq
        s_mul_i32 s70, s37, {64*US}
        s_lshl_b32 s39, s67, 7
        s_add_u32 s70, s70, s39
        s_add_u32 s70, s70, {W_U}
        v_lshrrev_b32 v3, 3, v1
        s_mov_b32 s39, {US}
        v_mul_u32_u24 v3, s39, v3
        v_and_b32 v4, 7, v1
        v_lshl_add_u32 v3, v4, 4, v3""")
        for t in range(1, 8): A(f"s_add_u32 s{56+t}, s70, {t*8*US}")
        uloads = [f"buffer_load_dwordx4 v[{U+4*t}:{U+4*t+3}], v3, s[44:47], s{70 if t == 0 else 56+t} offen {ulf}" for t in range(8)]
        for l in uloads: A(l)
        if u4:
            A(f"""v_lshrrev_b32 v5, 4, v1
            v_and_b32 v6, 4, v1
            v_add_u32 v5, v5, v6
            v_and_b32 v6, 3, v1
            v_lshl_add_u32 v4, v5, 2, v6
            v_lshlrev_b32 v4, 1, v4
            v_lshlrev_b32 v6, 2, v6
            v_lshl_add_u32 v5, v5, 5, v6
            ds_read_b32 v44, v5 offset:{L_G}
            ds_read_b32 v45, v5 offset:{L_G+16}""")
        else:
            A(f"""v_lshlrev_b32 v5, 5, v4
            ds_read_b128 v[44:47], v5 offset:{L_G}
            ds_read_b128 v[48:51], v5 offset:{L_G+16}
            v_lshlrev_b32 v4, 3, v4""")
        A(f"""s_lshl_b32 s71, s37, 10
        s_lshl_b32 s39, s67, 6
        s_add_u32 s71, s71, s39""")
        srd(48, 28, 4096)
    if fp:
        X = FX if fq else 64
        if not fq: A(f"s_mov_b32 s68, 0xff\ns_mov_b32 s69, 0xff\ns_mov_b32 s72, {POLL_LIMIT}\ns_waitcnt vmcnt(0)")
        elif fq == 2: A(f"s_waitcnt vmcnt({8*nb})")
        def fchk(t):
            for i in range(4): A(f"v_xor_b32 v{X+4*t+i}, s5, v{U+4*t+i}")
            A(f"""v_or3_b32 v40, v{X+4*t}, v{X+4*t+1}, v{X+4*t+2}
            v_bitop3_b32 v40, v40, v{X+4*t+3}, s69 bitop3:0xa8
            v_or_b32_dpp v40, v40, v40 quad_perm:[1,0,3,2] row_mask:0xf bank_mask:0xf
            v_cmp_ne_u32 vcc, 0, v40""")
        def padd(d, a_):
            for i in (0, 2): A(f"v_pk_add_f32 v[{X+4*d+i}:{X+4*d+i+1}], v[{X+4*d+i}:{X+4*d+i+1}], v[{X+4*a_+i}:{X+4*a_+i+1}]")
        A("L_fp:")
        for t in range(8):
            A(f"s_bitcmp1_b32 s68, {t}\ns_cbranch_scc0 L_fp{t}")
            if tl == 3:
                A(f"s_bitset0_b32 s68, {t}")
                A(f"L_fc{t}:")
                fchk(t)
                A(f"""s_cbranch_vccz L_fo{t}
                s_mov_b64 exec, vcc
                {uloads[t]}
                s_mov_b64 exec, -1
                s_waitcnt vmcnt({fmax})
                s_sub_u32 s72, s72, 1
                s_cbranch_scc1 L_fpd
                s_cmp_eq_u32 s68, 0
                s_cbranch_scc1 L_fc{t}
                s_bitset1_b32 s68, {t}""")
                A(f"L_fo{t}:")
                A(f"s_cmp_eq_u32 s68, 0\ns_cbranch_scc1 L_fpd")
                A(f"L_fp{t}:")
                continue
            fchk(t)
            A(f"""s_bitset0_b32 s68, {t}
            s_cbranch_vccz L_fp{t}
            s_mov_b64 exec, vcc
            {uloads[t]}
            s_mov_b64 exec, -1""")
            if tl: A(f"s_cmp_eq_u32 s68, 0\ns_cbranch_scc1 L_ft{t}")
            A(f"s_bitset1_b32 s68, {t}")
            A(f"L_fp{t}:")
        if tl == 3: A("s_branch L_fp")
        else: A(f"""s_bcnt1_i32_b32 s39, s68
        s_cbranch_scc0 L_fpd
        s_cmp_lt_u32 s39, {fthr}
        s_cbranch_scc1 L_fpn
        s_waitcnt vmcnt(0)""")
        A("L_fpn:")
        if fs2: A(f"s_sleep {fs2}")
        if tl != 3: A(f"""s_waitcnt vmcnt({fmax})
        s_sub_u32 s72, s72, 1
        s_cbranch_scc0 L_fp""")
        tmark("fp")
        if tl in (1, 2):
            A("s_branch L_fpd")
            tree = [(0,4),(1,5),(2,6),(3,7),(0,2),(1,3),(0,1)]
            for t in range(8):
                late = [(t & 3, (t & 3) + 4), (t & 1, (t & 1) + 2), (0, 1)]
                A(f"L_ft{t}:")
                if tl == 2:
                    for e in tree:
                        if e not in late: padd(*e)
                A(f"L_fu{t}:")
                fchk(t)
                A(f"""s_cbranch_vccz {'L_fpd' if tl == 1 else f'L_fv{t}'}
                s_mov_b64 exec, vcc
                {uloads[t]}
                s_mov_b64 exec, -1
                s_waitcnt vmcnt({fmax})
                s_sub_u32 s72, s72, 1
                s_cbranch_scc0 L_fu{t}""")
                if tl == 1: A("s_branch L_fpd")
                else:
                    A(f"L_fv{t}:")
                    if not pst: stamp(6)
                    for e in late[:2]: padd(*e)
                    A("s_branch L_fpe")
        A("L_fpd:")
        if lg: A(f"ds_read_b32 v44, v10 offset:{L_G}")
        if not pst: stamp(6)
        U = X
        for s_ in (16, 8, 4):
            if s_ == 4 and tl == 2: A("L_fpe:")
            for i in range(0, s_, 2): A(f"v_pk_add_f32 v[{U+i}:{U+i+1}], v[{U+i}:{U+i+1}], v[{U+s_+i}:{U+s_+i+1}]")
    else:
        poll(uloads, U, 32, 40, 41, fsleep, first_issued=True, mode=2 if "F" in abl else 0)
        if not pst: stamp(6)
        strip(U, 32)
        for s_ in (16, 8, 4):
            for i in range(s_): A(f"v_add_f32 v{U+i}, v{U+i}, v{U+s_+i}")
    if u4:
        tred([U])
        if lg:
            A(f"s_waitcnt lgkmcnt(0)\nv_cmp_eq_u32 vcc, -1, v44\nv_add_f32_dpp v{U}, v{U}, v{U} row_ror:8 row_mask:0xf bank_mask:0xf")
            rbf(U)
            A("s_cbranch_vccnz L_gq\nL_gr:")
        else:
            A(f"v_add_f32_dpp v{U}, v{U}, v{U} row_ror:8 row_mask:0xf bank_mask:0xf\ns_waitcnt lgkmcnt(0)")
            rbf(U)
        A(f"v_mul_f32 v{U}, v{U}, v44")
        rbf(U)
        A(f"""v_add_f32 v{U}, v{U}, v45
        v_cvt_pk_bf16_f32 v{U}, v{U}, v{U}
        s_mov_b32 exec_lo, 0x00ff00ff
        s_mov_b32 exec_hi, 0x00ff00ff
        buffer_store_short v{U}, v{VO}, s[{SO}:{SO+3}], s71 offen {osf}""")
    else:
        for i in range(4): A(f"v_add_f32_dpp v{U+i}, v{U+i}, v{U+i} row_ror:8 row_mask:0xf bank_mask:0xf")
        for sw in (16, 32):
            for i in range(4): A(f"v_mov_b32 v{U+4+i}, v{U+i}")
            for i in range(4): A(f"v_permlane{sw}_swap_b32 v{U+i}, v{U+4+i}")
            for i in range(4): A(f"v_add_f32 v{U+i}, v{U+i}, v{U+4+i}")
        A("s_waitcnt lgkmcnt(0)")
        rbf2(U, U+1); rbf2(U+2, U+3)
        for i in range(4): A(f"v_mul_f32 v{U+i}, v{U+i}, v{44+i}")
        rbf2(U, U+1); rbf2(U+2, U+3)
        for i in range(4): A(f"v_add_f32 v{U+i}, v{U+i}, v{48+i}")
        A(f"""v_cvt_pk_bf16_f32 v{U}, v{U}, v{U+1}
        v_cvt_pk_bf16_f32 v{U+1}, v{U+2}, v{U+3}
        s_mov_b64 exec, 0xff
        buffer_store_dwordx2 v[{U}:{U+1}], v4, s[48:51], s71 offen""")
    A(f"""s_cmp_lg_u32 s2, 0
    s_cbranch_scc1 L_fend
    v_mov_b32 v41, s4
    s_mov_b64 exec, 1
    buffer_store_dword v41, off, s[44:47], 0 offset:{W_EP} {esf}""")
    if diag >= 2:
        A("L_dg2:")
        A(f"s_memrealtime s[82:83]\ns_waitcnt lgkmcnt(0)\ns_sub_u32 s82, s82, s80\ns_cmp_lt_u32 s82, {diag}\ns_cbranch_scc1 L_dg2")
    A("L_fend:")
    if not pst: stamp(7)
    write_stamps(0, 8)
    A("s_endpgm")
    if lg:
        A(f"""L_gq:
        ds_read_b32 v44, v10 offset:{L_G}
        s_waitcnt lgkmcnt(0)
        v_cmp_eq_u32 vcc, -1, v44
        s_cbranch_vccz L_gr
        s_sub_u32 s72, s72, 1
        s_cbranch_scc0 L_gq
        s_branch L_gr""")

    if wst:
        A("L_wst:")
        A(("" if wst == 2 else "s_mov_b32 s80, s86\ns_mov_b32 s81, s87\n") + "s_mov_b32 s82, s88\ns_mov_b32 s83, s89\ns_lshl_b32 s56, s56, 4\ns_add_u32 s32, s32, s56\ns_addc_u32 s33, s33, 0")
        write_stamps(8, 2)
        A("s_endpgm")
    W = 128
    XR = 8
    MB = 24; RD = 25; TT = 26
    FF = 29
    TR = 30
    TC = 31
    FA = 32
    BI = 36
    A0 = 40
    HACC = 52
    PUB = 68
    F = 72
    AP = 104
    A("L_H:")
    if hprio: A(f"s_setprio {hprio}")
    A(f"""v_lshlrev_b32 v2, 4, v1             ; lane*16
    v_and_b32 v3, 15, v1                  ; n / m
    v_lshrrev_b32 v4, 4, v1               ; g
    v_mov_b32 v{FF}, 0xff
    s_mov_b32 s67, 0
    v_mov_b32 v20, 0
    s_mov_b64 s[64:65], 0
    s_cmp_lg_u32 s3, 0
    s_cbranch_scc1 L_H1""")
    def tissue(fl):
        A(f"buffer_load_dwordx4 v7, s[48:51], s60 offen {fl} lds\ns_add_u32 s60, s60, s61\ns_add_u32 m0, m0, 0x400")
    def tloop(n, nm, depth, fl):
        if n <= 0: return
        A(f"s_mov_b32 s64, {n}")
        A(f"L_{nm}:")
        A(f"s_waitcnt vmcnt({depth-1})")
        tissue(fl)
        A(f"s_sub_u32 s64, s64, 1\ns_cmp_lg_u32 s64, 0\ns_cbranch_scc1 L_{nm}")
    def asel(sreg):
        for r in range(4): A(f"v_mov_b32 v{A0+r}, v{AP+r}")
        for t in range(1, 4):
            A(f"s_cmp_eq_u32 s{sreg}, {t}\ns_cselect_b64 vcc, -1, 0")
            for r in range(4): A(f"v_cndmask_b32 v{A0+r}, v{A0+r}, v{AP+4*t+r}, vcc")
    def amask():
        for ks in range(4):
            A(f"s_mov_b32 vcc_lo, {0x000f000f << (4*ks):#x}\ns_mov_b32 vcc_hi, {0x000f000f << (4*ks):#x}")
            for r in range(4): A(f"v_cndmask_b32 v{XR+4*ks+r}, 0, v{A0+r}, vcc")
    def frags(second):
        for ks in range(4):
            for cb in range(4):
                r = W + 4 * (4*ks + cb)
                A(f"ds_read_b64_tr_b16 v[{r}:{r+1}], v{FA} offset:{L_T+ks*4096+cb*8}")
                A(f"ds_read_b64_tr_b16 v[{r+2}:{r+3}], v{FA} offset:{L_T+ks*4096+cb*8+second}")
        A("s_waitcnt lgkmcnt(0)")
    def gemv(soff, drop, local=False, pre=None):
        for ks in range(4):
            for cb in range(4):
                r = W + 4 * (4*ks + cb); d = HACC + 4*cb; a = XR + 4*ks
                A(f"v_mfma_f32_16x16x32_bf16 v[{d}:{d+3}], v[{a}:{a+3}], v[{r}:{r+3}], {'0' if ks == 0 else f'v[{d}:{d+3}]'}")
        tred([HACC + 4*cb for cb in range(4)])
        for cb in range(4): tagv(PUB+cb, HACC+4*cb, FF)
        st_ = f"buffer_store_dwordx4 v[{PUB}:{PUB+3}], v2, s[44:47], s{soff} offen"
        if pre: pre()
        if drop: return
        if local: lstore(st_)
        else: A(st_ + " sc1")
    def ldswait(nm, rd, cmp, sl=8):
        A(f"s_mov_b32 s72, {POLL_LIMIT}")
        A(f"L_{nm}:")
        A(f"""{rd}
        s_waitcnt lgkmcnt(0)
        {cmp}
        s_cbranch_vccz L_{nm}d
        s_sleep {sl}
        s_sub_u32 s72, s72, 1
        s_cbranch_scc0 L_{nm}""")
        tmark(nm)
        A(f"L_{nm}d:")
    def prwait(nm, at, sl=8):
        A(f"v_mov_b32 v{TT}, 0")
        ldswait(nm, f"ds_read_b32 v{TT+1}, v{TT} offset:{L_PR}", f"v_cmp_gt_u32 vcc, {at}, v{TT+1}", sl)
    def wowaitf(nm):
        A(f"v_and_b32 v{TT}, 1, v1\nv_lshlrev_b32 v{TT}, 2, v{TT}")
        ldswait(nm, f"ds_read_b32 v{TT+1}, v{TT} offset:{L_WF}", f"v_cmp_eq_u32 vcc, 0, v{TT+1}")
    CV = FA + 2
    cq = 32 // cP
    def ctl_init():
        if gws: srd(76, 32, W_END)
        else: srd(76, 30, 256)
        A(f"""s_mul_i32 s96, s35, {cP}
        s_lshr_b32 s96, s96, 5
        s_add_u32 s96, s96, {c0}
        s_add_u32 s97, s35, 1
        s_lshl_b32 s98, s34, 9
        s_add_u32 s98, s98, {W_C}
        s_lshl_b32 s101, s35, 4
        s_add_u32 s101, s101, s98
        s_mul_i32 s60, s34, {cq * gq // 8}
        s_xor_b32 s60, s60, s35
        s_and_b32 s60, s60, {gq * cq - 1}
        s_mul_i32 s61, s34, {gstr}
        s_add_u32 s61, s61, {W_GX if gws else 0}
        s_mov_b32 s62, {W_GX if gws else 0}
        s_mov_b32 s39, {gstr}
        v_mul_u32_u24 v{CV+1}, s39, v1
        v_mov_b32 v{CV}, 0
        v_mov_b32 v41, 0""")
        if x7: A(f"s_cmp_eq_u32 s34, 7\ns_cselect_b32 s39, {x7}, 0\ns_add_u32 s97, s97, s39")
        if fb: A(f"s_and_b32 s39, s35, 6\ns_cselect_b32 s39, 0, {fb}\ns_sub_u32 s97, s97, s39")
    def red32(v, d):
        for p_ in ("quad_perm:[1,0,3,2]", "quad_perm:[2,3,0,1]", "row_half_mirror", "row_mirror"):
            for r in v: A(f"v_add_u32_dpp v{r}, v{r}, v{r} {p_} row_mask:0xf bank_mask:0xf")
        for r, dd in zip(v, d): A(f"v_readlane_b32 s{dd}, v{r}, 0\nv_readlane_b32 s39, v{r}, 16\ns_add_u32 s{dd}, s{dd}, s39")
    def ctl_loop(nm, upto):
        A(f"v_mov_b32 v{TT}, 0\nv_and_b32 v{TT+2}, 3, v1\nv_lshlrev_b32 v{TT+2}, 2, v{TT+2}\ns_cmp_eq_u32 s74, 0\ns_cbranch_scc1 L_{nm}x\ns_mov_b32 exec_hi, 0")
        A(f"L_{nm}:")
        A(f"""s_cmp_gt_u32 s96, {upto}
        s_cbranch_scc1 L_{nm}x
        v_add_u32 v{CV}, 1, v{CV}
        s_sub_u32 s39, s96, {c0 - gq}
        s_lshr_b32 s39, s39, {gq.bit_length()-1}
        v_mov_b32 v40, s39""")
        ldswait(nm + "w", f"ds_read_b32 v{TT+1}, v{TT} offset:{L_PR}", f"v_cmp_gt_u32 vcc, s96, v{TT+1}", csl)
        A(f"""s_mov_b32 exec_lo, 1
        buffer_store_dword v{CV}, off, s[44:47], s101 offset:12""")
        if lg and nm == "cb": A(f"s_cmp_gt_u32 s96, {c1}\ns_cbranch_scc1 L_{nm}x")
        A(f"""s_mov_b32 exec_lo, -1
        buffer_load_dwordx2 v[36:37], v2, s[44:47], s98 offen offset:8 {lf}""")
        if gx:
            A(f"""s_cmp_lg_u32 s60, 0
            s_cbranch_scc1 L_{nm}n
            s_mov_b32 exec_lo, 0xff
            buffer_load_dwordx2 v[38:39], v{CV+1}, s[76:79], s62 offen sc1
            s_mov_b32 exec_lo, 1
            buffer_store_dwordx2 v[40:41], off, s[76:79], s61 sc1
            s_mov_b32 exec_lo, -1
            s_waitcnt vmcnt(2)
            s_branch L_{nm}m""")
            A(f"L_{nm}n:")
        A("s_waitcnt vmcnt(0)")
        A(f"L_{nm}m:")
        A(f"""v_readfirstlane_b32 s99, v{TT+1}
        ds_read_b32 v{TT+1}, v{TT} offset:{L_PR}
        s_sub_u32 s99, s99, s96
        s_add_u32 s96, s96, {cP}
        s_mul_i32 s99, s99, {cq}
        s_add_u32 s99, s99, s97
        s_add_u32 s97, s97, 32""")
        red32([36, 37], [100, 63])
        A(f"""s_sub_i32 s99, s63, s99
        s_mul_i32 s99, s99, {gn}
        s_add_i32 s100, s100, s99
        s_ashr_i32 s100, s100, 3
        s_add_i32 s100, s100, {(m0 if nm == "ca" or m1 < 0 else m1) + cD}
        s_max_i32 s100, s100, 0
        s_waitcnt lgkmcnt(0)
        v_add_u32 v{TT+1}, s100, v{TT+1}""")
        if wdl and nm == "cb": A(f"v_lshrrev_b32 v36, {4 - wdl}, v{TT+2}\nv_add_u32 v{TT+1}, v36, v{TT+1}")
        A(f"ds_write_b32 v{TT+2}, v{TT+1} offset:{L_KB}")
        if gx:
            A(f"""s_cmp_lg_u32 s60, 0
            s_cbranch_scc1 L_{nm}
            s_cmp_lt_u32 s96, {c0 + cP + gsk}
            s_cbranch_scc1 L_{nm}
            s_cmp_gt_u32 s96, {c1 + cP}
            s_cbranch_scc1 L_{nm}
            s_waitcnt vmcnt(1)""")
            for p_ in ("quad_perm:[1,0,3,2]", "quad_perm:[2,3,0,1]", "row_half_mirror"):
                for r in (38, 39): A(f"v_add_u32_dpp v{r}, v{r}, v{r} {p_} row_mask:0xf bank_mask:0xf")
            A(f"""v_readfirstlane_b32 s99, v38
            v_readfirstlane_b32 s100, v39
            s_mul_i32 s99, s99, {cq * gq}
            s_add_i32 s99, s99, {dcal * cq * 8}
            s_lshl_b32 s63, s63, 3
            s_sub_i32 s99, s99, s63
            v_mov_b32 v41, s99
            s_ashr_i32 s100, s100, 3
            s_mul_i32 s100, s100, {gcm}
            s_sub_i32 s99, s99, s100
            s_mul_i32 s99, s99, {gx}
            s_ashr_i32 s99, s99, {3 + (cP // gq).bit_length() - 1}
            v_mov_b32 v38, s99
            s_mov_b32 exec_lo, 1
            buffer_store_dword v38, off, s[44:47], s101 offset:8
            s_mov_b32 exec_lo, -1""")
        A(f"s_branch L_{nm}")
        A(f"L_{nm}x:")
        A("s_mov_b64 exec, -1")
    def ctl2_init():
        A(f"""s_mov_b32 s96, {c0}
        s_mov_b32 s97, 0
        s_mov_b32 s98, {tau0 * cP}
        s_mov_b32 s101, 0
        s_mov_b32 s67, 0
        s_mul_i32 s61, s34, {gstr}
        s_add_u32 s61, s61, {W_GX}
        s_mov_b32 s62, {W_GX - ga * 8 * gstr}
        s_mov_b32 s39, {gstr}
        v_mul_u32_u24 v{CV+1}, s39, v1
        v_mov_b32 v38, -1
        v_mov_b32 v40, s5""")
        if tA: A(f"s_lshl_b32 s97, s80, 4\ns_add_u32 s97, s97, {tA * 16}\ns_or_b32 s97, s97, 1")
    def ctl2_loop(nm, upto):
        A(f"v_mov_b32 v{TT}, 0\nv_and_b32 v{TT+2}, 3, v1\nv_lshlrev_b32 v{TT+2}, 2, v{TT+2}\ns_mov_b64 exec, 0xff")
        A(f"L_{nm}:")
        A(f"""s_cmp_gt_u32 s96, {upto}
        s_cbranch_scc1 L_{nm}x""")
        ldswait(nm + "w", f"ds_read_b32 v{TT+1}, v{TT} offset:{L_PR}\ns_memrealtime s[64:65]", f"v_cmp_gt_u32 vcc, s96, v{TT+1}", csl)
        A(f"""v_readfirstlane_b32 s99, v{TT+1}
        s_lshl_b32 s64, s64, 4
        s_sub_u32 s99, s99, s96
        s_mul_i32 s99, s99, {tau0}
        s_sub_u32 s64, s64, s99
        s_sub_u32 s63, s96, {c0}
        s_and_b32 s39, s63, {cP - 1}
        s_cbranch_scc1 L_{nm}c""")
        if tA: A(f"s_branch L_{nm}c")
        A(f"""s_waitcnt vmcnt(0)
        v_cmp_ne_u32 vcc, s5, v38
        v_subrev_u32 v39, s64, v39
        v_add_u32_dpp v39, v39, v39 quad_perm:[1,0,3,2] row_mask:0xf bank_mask:0xf
        v_add_u32_dpp v39, v39, v39 quad_perm:[2,3,0,1] row_mask:0xf bank_mask:0xf
        v_add_u32_dpp v39, v39, v39 row_half_mirror row_mask:0xf bank_mask:0xf
        v_readfirstlane_b32 s99, v39
        s_cbranch_vccnz L_{nm}k
        s_ashr_i32 s99, s99, 3
        s_add_u32 s99, s99, s64
        s_cmp_eq_u32 s97, 0
        s_cbranch_scc1 L_{nm}f
        s_sub_u32 s100, s99, s101
        s_sub_u32 s100, s100, s98
        s_ashr_i32 s100, s100, {gsm}
        s_add_u32 s98, s98, s100""")
        A(f"L_{nm}f:")
        A(f"""s_mul_i32 s97, s98, {ga + 1}
        s_add_u32 s97, s97, s99
        s_or_b32 s97, s97, 1
        s_sub_u32 s101, s99, s98""")
        A(f"L_{nm}k:")
        A(f"""s_add_u32 s101, s101, s98
        s_lshr_b32 s63, s63, {cP.bit_length() - 1}
        s_mul_i32 s63, s63, {pstep}
        s_add_u32 s63, s63, {pub0}
        s_and_b32 s63, s63, 31
        s_cmp_lg_u32 s63, s35
        s_cbranch_scc1 L_{nm}l
        v_mov_b32 v41, s64
        s_mov_b64 exec, 1
        buffer_store_dwordx2 v[40:41], off, s[44:47], s61 sc1
        s_mov_b64 exec, 0xff""")
        A(f"L_{nm}l:")
        A(f"""s_add_u32 s61, s61, {8 * gstr}
        s_cmp_lt_u32 s62, {W_GX}
        s_cbranch_scc1 L_{nm}q
        buffer_load_dwordx2 v[38:39], v{CV+1}, s[44:47], s62 offen {glf}""")
        A(f"L_{nm}q:")
        A(f"s_add_u32 s62, s62, {8 * gstr}")
        A(f"L_{nm}c:")
        A(f"""s_add_u32 s96, s96, {cs}
        s_cmp_eq_u32 s97, 0
        s_cbranch_scc1 L_{nm}
        s_sub_u32 s100, s64, s97              ; 16 * lag
        s_lshr_b32 s39, s98, {(cP // cs).bit_length() - 1}
        s_add_u32 s97, s97, s39""")
        if gi: A(f"""s_mul_i32 s39, s100, {gi}
        s_add_i32 s67, s67, s39
        s_min_i32 s67, s67, {(cs - m0) << 12}
        s_max_i32 s67, s67, {-m0 << 12}""")
        A(f"""s_mul_i32 s100, s100, {gn}
        s_add_i32 s100, s100, s67
        s_ashr_i32 s100, s100, 12
        s_add_i32 s100, s100, {m0 + cD}
        s_max_i32 s100, s100, 0
        v_add_u32 v{TT+1}, s100, v{TT+1}
        ds_write_b32 v{TT+2}, v{TT+1} offset:{L_KB}
        s_branch L_{nm}""")
        A(f"L_{nm}x:")
        A("s_mov_b64 exec, -1")
    if ctl == 2: ctl_init, ctl_loop = ctl2_init, ctl2_loop
    A(f"""s_lshl_b32 s57, s36, 2
    s_add_u32 s57, s57, s37
    s_lshl_b32 s57, s57, 1
    s_add_u32 s57, s57, s38
    s_mov_b32 m0, {L_T}
    s_lshl_b32 s60, s37, 20
    s_lshl_b32 s39, s36, 8
    s_add_u32 s60, s60, s39
    s_lshl_b32 s39, s38, 7
    s_add_u32 s60, s60, s39
    s_mov_b32 s61, {8*8192}
    v_lshrrev_b32 v{TR}, 3, v1
    v_and_b32 v{TC}, 7, v1
    v_lshlrev_b32 v{TC}, 4, v{TC}
    v_lshl_add_u32 v7, v{TR}, 13, v{TC}
    v_and_b32 v{FA+1}, 3, v1              ; b / c
    v_lshlrev_b32 v5, 10, v{FA+1}
    v_bfe_u32 v{FA+2}, v1, 2, 2           ; q4 / r
    v_lshl_add_u32 v5, v{FA+2}, 6, v5
    v_lshl_add_u32 v5, v4, 4, v5
    s_waitcnt lgkmcnt(0)""")
    srd(40, 8, 4096)
    srd(48, 14, 0 if "q" in abl else 0x400000)
    for t in range(4): A(f"buffer_load_dwordx4 v[{XR+4*t}:{XR+4*t+3}], v5, s[40:43], 0 offen offset:{t*256}")
    kq0 = min(kq, kqb)
    for i in range(kq0): tissue(wflags)
    A("s_barrier")
    for i in range(kq - kq0): tissue(wflags)
    srdws()
    A(f"""s_mul_i32 s57, s57, {QS}
    s_add_u32 s57, s57, {W_Q}
    v_lshl_add_u32 v{FA}, v4, 3, v{FA+2}
    v_lshlrev_b32 v{FA}, 7, v{FA}
    v_lshl_add_u32 v{FA}, v{FA+1}, 5, v{FA}
    s_waitcnt vmcnt({kq})""")
    unpack(F, XR, 16)
    ln_stats(F, 32, MB, RD, TT, red16x)
    ln_apply(F, 32, MB, RD, pack=AP)
    tloop(16 - kq, "tq", kq, wflags)
    caddr(6)
    if cpos == 0: A(cload(BI, 6))
    asel(37)
    amask()
    A(f"v_mov_b32 v{TT}, 0")
    ldswait("tg", f"ds_read_b64 v[{PUB}:{PUB+1}], v{TT} offset:{L_TG}", f"v_cmp_eq_u32 vcc, 0, v{PUB+1}", 2)
    A(f"v_readfirstlane_b32 s5, v{PUB}\ns_waitcnt vmcnt({1-cpos})")
    if cpos == 1: A(cload(BI, 6))
    A("s_and_b32 s5, s5, 0xff")
    cval()
    frags(512)
    gemv(57, "P" in abl, True, lambda: census("c0", BI, 6))
    stamp(1)
    if gl: A("s_mov_b32 s66, -1")
    if "A" in abl: A("s_branch L_tr")
    A(f"""s_mov_b32 m0, {L_T}
    s_cmp_eq_u32 s34, 7
    s_cbranch_scc1 L_tr
    s_cmp_ge_u32 s37, 2
    s_cbranch_scc1 L_m2
    s_lshl_b32 s62, s34, 4
    s_add_u32 s62, s62, s35               ; tile id = 4*cb1 + ksl
    s_and_b32 s63, s62, 3
    s_mul_i32 s60, s63, {128*3584}
    s_lshr_b32 s39, s62, 2
    s_lshl_b32 s39, s39, 7
    s_add_u32 s60, s60, s39
    s_mov_b32 s61, {8*3584}
    s_mov_b32 s39, 3584
    v_mad_u32_u24 v7, v{TR}, s39, v{TC}""")
    srd(48, 20, 0 if "1" in abl else 512*1792*2)
    for i in range(km): tissue(mflags)
    unpack(F, AP, 16)
    ln_stats(F, 32, MB, RD, TT, red16x)
    asel(63)
    unpack(F, A0, 4)
    ln_apply(F, 8, MB, RD, pack=A0)
    amask()
    tloop(16 - km, "t1", km, mflags)
    A(f"""s_mul_i32 s62, s62, {HS}
    s_add_u32 s62, s62, {W_H}
    s_waitcnt vmcnt(0)""")
    frags(512)
    gemv(62, "S" in abl, True)
    stamp(2)
    A("s_branch L_tr")
    A("L_m2:")
    srd(48, 24, 0 if "2" in abl else 1792*1024)
    srd(68, 22, 1792*2)
    A(f"""s_lshl_b32 s62, s34, 1
    s_and_b32 s39, s37, 1
    s_add_u32 s62, s62, s39               ; ks2
    s_add_u32 s63, s35, {c2}
    s_and_b32 s63, s63, 7                 ; cb2
    s_lshl_b32 s60, s62, 17
    s_lshl_b32 s39, s63, 7
    s_add_u32 s60, s60, s39
    s_mov_b32 s61, 0x2000
    v_lshl_add_u32 v7, v{TR}, 10, v{TC}
    v_lshrrev_b32 v5, 1, v4
    v_and_b32 v6, 1, v4
    v_lshlrev_b32 v6, 1, v6
    v_lshl_add_u32 v6, v5, 4, v6          ; 16(g>>1) + 2(g&1)
    v_lshl_add_u32 v{FA}, v{FA+2}, 2, v6
    v_lshlrev_b32 v{FA}, 7, v{FA}
    v_lshl_add_u32 v{FA}, v{FA+1}, 5, v{FA}
    v_lshl_add_u32 v6, v{FA+2}, 5, v6
    v_lshlrev_b32 v6, 1, v6
    s_lshl_b32 s39, s62, 8""")
    for r in range(4): A(f"buffer_load_dword v{BI+r}, v6, s[68:71], s39 offen offset:{8*r}")
    tloop(16, "t2", km, mflags)
    A(f"""s_mul_i32 s56, s62, {8*HS}
    s_add_u32 s56, s56, {W_H}
    s_add_u32 s57, s56, {HS}
    s_add_u32 s58, s56, {2*HS}
    s_add_u32 s59, s56, {3*HS}
    s_mov_b32 s39, {4*HS}
    v_lshlrev_b32 v7, 8, v{FA+1}
    v_lshl_add_u32 v7, v4, 5, v7
    v_bfe_u32 v5, v1, 2, 1
    v_lshl_add_u32 v7, v5, 7, v7         ; b*256 + (q4&1)*128 + g*32
    v_bfe_u32 v5, v1, 3, 1
    v_mad_u32_u24 v5, v5, s39, v7
    s_lshl_b32 s62, s62, 3
    s_add_u32 s62, s62, s63
    s_mul_i32 s62, s62, {GS}
    s_add_u32 s62, s62, {W_G}
    s_waitcnt vmcnt(0)""")
    frags(128)
    prwait("wm", m2at, 16)
    hloads = [f"buffer_load_dwordx4 v[{F+4*t}:{F+4*t+3}], v5, s[44:47], s{56+t//2} offen offset:{16*(t%2)} sc1" for t in range(8)]
    poll(hloads, F, 32, TT, TT+1, psleep, mode=2 if "L" in abl else 1 if "S" in abl else 0, grp=0, local=True)
    strip(F, 32)
    for s_ in (16, 8):
        for i in range(s_): A(f"v_add_f32 v{F+i}, v{F+i}, v{F+s_+i}")
    for j in range(0, 8, 2): rbf2(F+j, F+j+1)
    for r in range(4): A(f"v_lshlrev_b32 v{F+8+r}, 16, v{BI+r}\nv_and_b32 v{F+12+r}, 0xffff0000, v{BI+r}")
    for j in range(8): A(f"v_add_f32 v{F+j}, v{F+j}, v{F+8+j}")
    for j in range(0, 8, 2): rbf2(F+j, F+j+1)
    cg = -2.0 * 1.4426950408889634 * 0.7978845608028654
    for ins in ("v_mul_f32 v{t}, v{x}, v{x}", f"v_mul_f32 v{{t}}, {f2u(0.044715):#x}, v{{t}}", "v_add_f32 v{t}, 1.0, v{t}", "v_mul_f32 v{t}, v{t}, v{x}",
                f"v_mul_f32 v{{t}}, {f2u(cg):#x}, v{{t}}", "v_exp_f32 v{t}, v{t}", "v_add_f32 v{t}, 1.0, v{t}", "v_rcp_f32 v{t}, v{t}", "v_mul_f32 v{x}, v{x}, v{t}"):
        for j in range(8): A(ins.format(t=F+8+j, x=F+j))
    for r in range(4): A(f"v_cvt_pk_bf16_f32 v{A0+r}, v{F+2*r}, v{F+2*r+1}")
    amask()
    gemv(62, "S" in abl or "G" in abl or gl, pre=(lambda: A(f"s_and_b32 s39, s35, {jm}\ns_cbranch_scc1 L_tr")) if "j" in abl else None)
    if gl:
        for j in range(4): A(f"v_mov_b32 v{120+j}, v{PUB+j}")
        A("s_mov_b32 s66, s62")
    stamp(2)
    A("s_branch L_tr")
    A("L_H1:")
    A(f"""v_mov_b32 v{TT}, -1
    v_mov_b32 v{TT+1}, 0
    v_lshlrev_b32 v7, 2, v1
    ds_write_b32 v7, v{TT} offset:{L_Q}
    s_mov_b64 exec, 0xffff
    ds_write_b32 v7, v{TT} offset:{L_ML}
    ds_write_b32 v7, v{TT+1} offset:{L_WF}
    s_mov_b64 exec, -1
    s_waitcnt lgkmcnt(0)
    s_load_dword s6, s[32:33], {W_EP}
    s_barrier""")
    srd(40, 8, 4096)
    srdws()
    A("s_cmp_lg_u32 s3, 1\ns_cbranch_scc1 L_wo")
    caddr(FA)
    A("s_lshl_b32 s39, s35, 4\ns_add_u32 s39, s39, s73\ns_waitcnt lgkmcnt(0)")
    tags()
    cval()
    for j in range(4): A(f"v_mov_b32 v{PUB+j}, {'s7' if j < 2 else 0}")
    A(f"s_mov_b64 exec, 1\nbuffer_store_dwordx4 v[{PUB}:{PUB+3}], off, s[44:47], s39 {csf}")
    if gws:
        A(f"s_cmp_lg_u32 s35, 0\ns_cbranch_scc1 L_gi\ns_mul_i32 s39, s34, {gstr}\ns_add_u32 s39, s39, {W_GX}\nbuffer_store_dwordx2 v[{PUB+2}:{PUB+3}], off, s[44:47], s39 sc1")
        A("L_gi:")
    A("s_mov_b64 exec, -1")
    G = F
    A(f"""v_mov_b32 v{PUB}, s4
    v_mov_b32 v{PUB+1}, 1
    ds_write_b64 v{TT+1}, v[{PUB}:{PUB+1}] offset:{L_TG}
    s_mul_i32 s60, s36, {8*QS}
    s_lshl_b32 s39, s37, 8
    s_add_u32 s60, s60, s39
    s_add_u32 s60, s60, {W_Q}
    s_add_u32 s61, s60, {QS}
    s_mov_b32 s39, {2*QS}
    v_lshlrev_b32 v5, 4, v3
    v_mad_u32_u24 v7, v4, s39, v5
    v_bfe_u32 v5, v1, 2, 2
    v_and_b32 v6, 3, v1
    v_lshl_add_u32 v6, v5, 4, v6
    v_lshl_add_u32 v6, v4, 2, v6
    v_lshlrev_b32 v6, 1, v6""")
    prwait("qw", qat, 4)
    poll([f"buffer_load_dwordx4 v[{G+4*t}:{G+4*t+3}], v7, s[44:47], s{60+t} offen sc1" for t in range(2)], G, 8, TT, TT+1, 8, mode=1 if "P" in abl else 0, local=True)
    strip(G, 8)
    tred([G, G+4])
    A(f"""v_cvt_pk_bf16_f32 v{G}, v{G}, v{G+4}
    v_mov_b32 v{G+1}, 0xfffefffe
    v_pk_min_u16 v{G}, v{G}, v{G+1}
    ds_write_b16 v6, v{G} offset:{L_Q}
    ds_write_b16_d16_hi v6, v{G} offset:{L_Q+128}""")
    stamp(1)
    A(cload(BI, FA))
    census("c1", BI, FA)
    if "m" in abl: A("s_branch L_ml2")
    A(f"""s_lshl_b32 s63, s37, 5
    s_add_u32 s63, s63, s36
    s_mul_i32 s63, s63, {MLS}
    s_add_u32 s63, s63, {W_ML}
    s_lshl_b32 s39, s38, {mlw}
    s_add_u32 s66, s63, s39""")
    A(f"v_and_b32 v6, 16, v2\ns_mov_b64 exec, {(1 << (1 << (mlw - 4))) - 1:#x}")
    ldswait("mw", f"ds_read_b128 v[{XR}:{XR+3}], v6 offset:{L_ML}", f"v_max_u32 v{TT}, v{XR+1}, v{XR+3}\nv_cmp_eq_u32 vcc, -1, v{TT}", 16)
    for j in range(4): A(f"v_bfi_b32 v{PUB+j}, v{FF}, s5, v{XR+j}")
    lstore(f"buffer_store_dwordx4 v[{PUB}:{PUB+3}], v2, s[44:47], s66 offen")
    A(f"""s_mov_b64 exec, 0xff
    v_and_b32 v6, 3, v1
    v_lshlrev_b32 v6, 3, v6
    v_lshrrev_b32 v{TT}, 2, v1
    v_lshl_add_u32 v6, v{TT}, {mlw}, v6""")
    prwait("mg", mlat, 16)
    poll([f"buffer_load_dwordx2 v[{XR}:{XR+1}], v6, s[44:47], s63 offen sc1"], XR, 2, TT, TT+1, psleep, base_exec="0xff", local=True)
    strip(XR, 2)
    A(f"""v_max_f32_dpp v{TT}, v{XR}, v{XR} quad_perm:[1,0,3,2] row_mask:0xf bank_mask:0xf
    v_max_f32_dpp v{TT}, v{TT}, v{TT} quad_perm:[2,3,0,1] row_mask:0xf bank_mask:0xf
    v_max_f32_dpp v{TT}, v{TT}, v{TT} row_half_mirror row_mask:0xf bank_mask:0xf
    v_sub_f32 v{XR}, v{XR}, v{TT}
    v_mul_f32 v{XR}, {LOG2E:#x}, v{XR}
    v_exp_f32 v{XR}, v{XR}
    v_mul_f32 v{TT}, v{XR}, v{XR+1}
    v_add_f32_dpp v{TT}, v{TT}, v{TT} quad_perm:[1,0,3,2] row_mask:0xf bank_mask:0xf
    v_add_f32_dpp v{TT}, v{TT}, v{TT} quad_perm:[2,3,0,1] row_mask:0xf bank_mask:0xf
    v_add_f32_dpp v{TT}, v{TT}, v{TT} row_half_mirror row_mask:0xf bank_mask:0xf
    v_rcp_f32 v{TT}, v{TT}
    v_mul_f32 v{XR}, v{XR}, v{TT}
    v_and_b32 v6, 3, v1
    v_lshlrev_b32 v6, 2, v6
    s_lshl_b32 s39, s38, 2
    s_lshl_b32 s64, 0xf, s39
    s_mov_b32 s65, 0
    s_mov_b64 exec, s[64:65]
    ds_write_b32 v6, v{XR} offset:{L_C}
    s_mov_b64 exec, -1""")
    A("L_ml2:")
    stamp(2)
    if "g" in abl or "A" in abl: A("s_branch L_tr")
    A(f"""s_and_b32 s39, s35, 6
    s_cmp_lg_u32 s39, 0
    s_cbranch_scc1 L_tr""")
    LG = 8; LX = 48
    lgl = [f"buffer_load_dwordx4 v[{LG+4*t}:{LG+4*t+3}], v20, s[44:47], s{64+t} offen sc1" for t in range(2)]
    if lg:
        srd(68, 26, 1024)
        A(f"""s_lshl_b32 s58, s34, 1
        s_add_u32 s58, s58, s38
        s_lshl_b32 s58, s58, 6
        s_lshl_b32 s39, s37, 10
        s_add_u32 s59, s58, s39
        v_and_b32 v5, 4, v1
        v_add_u32 v5, v5, v4
        v_and_b32 v6, 3, v1
        v_lshl_add_u32 v5, v5, 2, v6
        v_lshlrev_b32 v5, 1, v5
        buffer_load_ushort v16, v5, s[68:71], s58 offen
        buffer_load_ushort v17, v5, s[40:43], s59 offen
        s_mul_i32 s64, s34, {GS}
        s_lshl_b32 s39, s37, 8
        s_add_u32 s64, s64, s39
        s_lshl_b32 s39, s38, 7
        s_add_u32 s64, s64, s39
        s_add_u32 s64, s64, {W_G}
        s_add_u32 s65, s64, {48*GS}
        v_lshrrev_b32 v20, 3, v1
        v_and_b32 v5, 0x70, v2
        s_mov_b32 s39, {8*GS}
        v_mad_u32_u24 v20, v20, s39, v5
        v_lshlrev_b32 v21, 2, v1
        v_mov_b32 v18, -1
        s_mov_b32 s67, 1
        s_waitcnt vmcnt(0)
        v_lshlrev_b32 v16, 16, v16
        v_lshlrev_b32 v17, 16, v17
        ds_write_b32 v21, v18 offset:{L_G}
        ds_write_b32 v21, v17 offset:{L_G+256}
        s_branch L_tr""")
    else:
        srd(68, 26, 1024)
        A(f"""s_lshl_b32 s67, s34, 1
    s_add_u32 s67, s67, s38          ; cq
    s_lshl_b32 s58, s67, 6
    s_lshl_b32 s39, s37, 10
    s_add_u32 s59, s58, s39
    s_mul_i32 s60, s34, {GS}
    s_lshl_b32 s39, s37, 8
    s_add_u32 s60, s60, s39
    s_lshl_b32 s39, s38, 7
    s_add_u32 s60, s60, s39
    s_add_u32 s60, s60, {W_G}
    s_add_u32 s61, s60, {48*GS}
    v_and_b32 v6, 7, v1
    v_lshlrev_b32 v5, 3, v6
    buffer_load_dwordx2 v[{XR}:{XR+1}], v5, s[68:71], s58 offen
    buffer_load_dwordx2 v[{XR+2}:{XR+3}], v5, s[40:43], s59 offen
    v_lshrrev_b32 v7, 3, v1
    v_lshlrev_b32 v5, 4, v6
    s_mov_b32 s39, {8*GS}
    v_mad_u32_u24 v7, v7, s39, v5""")
        gloads = [f"buffer_load_dwordx4 v[{G+4*t}:{G+4*t+3}], v7, s[44:47], s{60+t} offen sc1" for t in range(2)]
        poll(gloads, G, 8, TT, TT+1, psleep, mode=2 if "L" in abl or "G" in abl or "j" in abl or "k" in abl else 1 if "S" in abl else 0)
        strip(G, 8)
        for i in range(4): A(f"v_add_f32_dpp v{G+i}, v{G+4+i}, v{G+i} quad_perm:[0,1,2,3] row_mask:0xe bank_mask:0xf")
        for i in range(4): A(f"v_add_f32_dpp v{G+i}, v{G+i}, v{G+i} row_ror:8 row_mask:0xf bank_mask:0xf")
        tred([G])
        A(f"""v_bfe_u32 v5, v1, 2, 1
    v_and_b32 v7, 3, v1
    v_lshl_add_u32 v7, v5, 4, v7
    v_lshl_add_u32 v7, v4, 2, v7
    v_lshlrev_b32 v7, 2, v7
    ds_write_b32 v7, v{G} offset:{L_GT}
    v_lshlrev_b32 v7, 4, v6
    s_waitcnt lgkmcnt(0)
    ds_read_b128 v[{G}:{G+3}], v7 offset:{L_GT}
    s_waitcnt lgkmcnt(0)""")
        rbf2(G, G+1); rbf2(G+2, G+3)
        unpack(G+4, XR, 2)
        for i in range(4): A(f"v_add_f32 v{G+i}, v{G+i}, v{G+4+i}")
        rbf2(G, G+1); rbf2(G+2, G+3)
        for r in range(4):
            A(f"""v_mul_f32 v{TT}, {LOG2E ^ 0x80000000:#x}, v{G+r}
        v_exp_f32 v{TT}, v{TT}
        v_add_f32 v{TT}, 1.0, v{TT}
        v_rcp_f32 v{TT}, v{TT}
        v_mul_f32 v{G+r}, v{G+r}, v{TT}""")
        rbf2(G, G+1); rbf2(G+2, G+3)
        unpack(G+4, XR+2, 2)
        A(f"""v_lshlrev_b32 v6, 5, v6
    ds_write_b128 v6, v[{G}:{G+3}] offset:{L_G}
    ds_write_b128 v6, v[{G+4}:{G+7}] offset:{L_G+16}
    s_branch L_tr""")
    A("L_wo:")
    srd(48, 16, 0 if "o" in abl else 0x400000)
    A(f"""s_and_b32 s56, s3, 1
    s_lshl_b32 s60, s36, 17
    s_lshl_b32 s39, s56, 10
    s_add_u32 s60, s60, s39
    s_mul_i32 s39, s56, {PITCH}
    s_add_u32 m0, s39, {L_WO}
    s_mov_b32 s64, 64""")
    prwait("ws", woat, 4)
    stamp(1)
    if "w" in abl: A("s_branch L_wo2")
    A("L_wo1:")
    A(f"""s_waitcnt vmcnt({kw-1})
    buffer_load_dwordx4 v2, s[48:51], s60 offen {woflags} lds
    s_add_u32 s60, s60, 0x800
    s_add_u32 m0, m0, {2*PITCH}
    s_sub_u32 s64, s64, 1
    s_cmp_lg_u32 s64, 0
    s_cbranch_scc1 L_wo1""")
    A("L_wo2:")
    ldswait("wq", f"ds_read_b32 v{TT+1}, v7 offset:{L_Q}", f"v_cmp_eq_u32 vcc, -1, v{TT+1}", 4)
    A(f"""v_mov_b32 v{TT}, 0
    ds_read_b32 v{TT}, v{TT} offset:{L_TG}
    s_waitcnt lgkmcnt(0)
    v_readfirstlane_b32 s5, v{TT}
    s_lshl_b32 s39, s56, 2
    s_and_b32 s5, s5, 0xff
    v_mov_b32 v{TT}, s39
    s_waitcnt vmcnt(0)
    ds_write_b32 v{TT}, v{FF} offset:{L_WF}""")
    stamp(2)
    A("L_tr:")
    if ctl:
        ctl_init()
        A("s_cmp_lg_u32 s3, 0\ns_cbranch_scc1 L_tr2")
        ctl_loop("ca", cmid)
        A("L_tr2:")
    stamp(3)
    wowaitf("wf")
    stamp(4)
    A(f"""v_bfe_u32 v{TT}, v1, 2, 2
    v_lshl_add_u32 v{TT}, v4, 3, v{TT}
    v_and_b32 v7, 3, v1
    v_lshlrev_b32 v7, {5 if u4 else 3}, v7
    s_mov_b32 s39, {PITCH}
    v_mad_u32_u24 v7, v{TT}, s39, v7
    s_lshl_b32 s39, s3, 8
    s_add_u32 s39, s39, {L_WO}
    v_add_u32 v7, s39, v7
    v_add_u32 v6, {64*PITCH}, v7""")
    for cb in range(8):
        for ks in range(4):
            r = W + 4 * (cb * 4 + ks)
            off = (ks % 2) * 32 * PITCH + ((cb >> 2) * 128 + (cb & 3) * 8 if u4 else cb * 32)
            A(f"ds_read_b64_tr_b16 v[{r}:{r+1}], v{7 if ks < 2 else 6} offset:{off}")
            A(f"ds_read_b64_tr_b16 v[{r+2}:{r+3}], v{7 if ks < 2 else 6} offset:{off+4*PITCH}")
    OA = 72
    CC = 88
    DD = 92
    UU = 44
    A(f"""v_and_b32 v6, 3, v1
    v_lshlrev_b32 v6, 8, v6
    v_lshl_add_u32 v6, v4, 4, v6
    v_mov_b32 v5, 0
    v_lshlrev_b32 v7, 2, v1
    s_lshl_b32 s59, s37, 5
    s_add_u32 s59, s59, s36
    s_lshl_b32 s59, s59, 1
    s_add_u32 s59, s59, s38
    s_mul_i32 s59, s59, {US}
    s_lshl_b32 s39, s3, 9
    s_add_u32 s59, s59, s39
    s_add_u32 s59, s59, {W_U}
    s_waitcnt lgkmcnt(0)""")
    if sm:
        A(f"""v_lshl_add_u32 v6, v4, 4, v6
        v_and_b32 v7, 4, v1
        v_lshl_add_u32 v6, v7, 2, v6
        v_cmp_eq_u32 vcc, 0, v7
        v_mov_b32 v7, 0xeeee
        v_mov_b32 v{UU}, 0x4444
        v_cndmask_b32 v7, v7, v{UU}, vcc
        s_mov_b32 s56, 0x00ff00ff
        s_mov_b32 s57, 0x00ff00ff""")
        if dry: A("s_mov_b32 s58, 0\ns_branch L_dry\nL_dry2:")
        for i in range(16): A(f"v_mov_b32 v{OA+i}, 0\nv_mov_b32 v{DD+i}, 0")
    if ctl:
        A("s_cmp_lg_u32 s3, 0\ns_cbranch_scc1 L_tr3")
        ctl_loop("cb", c9)
        if gl > 1:
            A("s_cmp_eq_u32 s66, -1\ns_cbranch_scc1 L_gl")
            prwait("gw", gl, 1)
            A(f"buffer_store_dwordx4 v[120:123], v2, s[44:47], s66 offen sc1")
            A("L_gl:")
        if wu == 1: A(f"buffer_load_dword v36, off, s[44:47], s59 {wuf}")
        if wu == 2: A(f"v_lshlrev_b32 v36, 5, v1\nbuffer_load_dword v36, v36, s[44:47], s59 offen {wuf}")
        A("L_tr3:")
    if wbat:
        A(f"s_cmp_lg_u32 s3, 3\ns_cbranch_scc1 L_tr4\ns_and_b32 s39, s35, {wbm}\ns_cmp_lg_u32 s39, {5 & wbm}\ns_cbranch_scc1 L_tr4")
        prwait("wb", wbat, 8)
        A(f"buffer_wbl2 {wbf}")
        A("L_tr4:")
    if lg and ge:
        A("s_cmp_eq_u32 s67, 0\ns_cbranch_scc1 L_ge")
        prwait("gv", ge, 2)
        for l in lgl: A(l)
        A("L_ge:")
    stamp(6)
    if tprio: A(f"s_setprio {tprio}")
    A("s_barrier")
    if dry: A("L_dry:")
    if gl == 1:
        A(f"s_cmp_lg_u32 s3, 0\ns_cbranch_scc1 L_gl\ns_cmp_eq_u32 s66, -1\ns_cbranch_scc1 L_gl\nbuffer_store_dwordx4 v[120:123], v2, s[44:47], s66 offen sc1")
        A("L_gl:")
    if sm:
        A(f"""s_mov_b64 exec, s[56:57]
        ds_read_b128 v[{OA}:{OA+3}], v6 offset:{L_O}
        ds_read_b128 v[{OA+4}:{OA+7}], v6 offset:{L_O+128}
        s_not_b64 exec, exec
        ds_read_b128 v[{OA+8}:{OA+11}], v6 offset:{L_O}
        ds_read_b128 v[{OA+12}:{OA+15}], v6 offset:{L_O+128}
        s_mov_b64 exec, -1
        ds_read_b128 v[{CC}:{CC+3}], v5 offset:{L_C}""")
        if lg and not ge:
            A("s_cmp_eq_u32 s67, 0\ns_cbranch_scc1 L_ge")
            for l in lgl: A(l)
            A("L_ge:")
        def smf(q, t):
            cb = 4 * (q & 1) + (q >> 1) + 2 * (t >> 1)
            r = W + 16 * cb + 8 * (t & 1)
            return f"v_smfmac_f32_16x16x64_bf16 v[{DD+4*q}:{DD+4*q+3}], v[{OA+4*t}:{OA+4*t+3}], v[{r}:{r+7}], v7"
        def fm(q): return [f"v_{'mul' if r == 0 else 'fmac'}_f32 v{UU+q}, v{DD+4*q+r}, v{CC+r}" for r in range(4)]
        def fin(j): return [f"v_permlane16_swap_b32 v{UU+2*j}, v{UU+2*j+1}", f"v_add_f32 v{UU+2*j}, v{UU+2*j}, v{UU+2*j+1}", f"v_add_u32 v{PUB+j}, 0x80, v{UU+2*j}",
                            f"v_bfi_b32 v{PUB+j}, v{FF}, s5, v{PUB+j}", f"v_permlane32_swap_b32 v{PUB+j}, v{PUB+2+j}"]
        if sm == 1: seq = [(q, t) for q in range(4) for t in range(4)]; fill = {6: fm(0)[:2], 7: fm(0)[2:], 10: fm(1)[:2], 11: fm(1)[2:], 12: fin(0)[:2], 13: fin(0)[2:], 14: fm(2)[:2], 15: fm(2)[2:]}; last = fm(3) + fin(1)
        else: seq = [(q + 2 * p, t) for p in range(2) for t in range(4) for q in range(2)]; fill = {10: fm(0)[:2], 11: fm(0)[2:], 12: fm(1)[:2], 13: fm(1)[2:], 14: fin(0)[:2], 15: fin(0)[2:]}; last = [x for pr in zip(fm(2), fm(3)) for x in pr] + fin(1)
        if pk:
            def fm(q):
                d = DD + 4 * q
                return [f"v_pk_mul_f32 v[{d}:{d+1}], v[{d}:{d+1}], v[{CC}:{CC+1}]", f"v_pk_fma_f32 v[{d}:{d+1}], v[{d+2}:{d+3}], v[{CC+2}:{CC+3}], v[{d}:{d+1}]", f"v_add_f32 v{UU+q}, v{d}, v{d+1}"]
        if sm == 3: seq = [(q, t) for t in range(4) for q in range(4)]; fill = {}; last = [x for pr in zip(fm(0), fm(1), fm(2), fm(3)) for x in pr] + [x for pr in zip(fin(0), fin(1)) for x in pr]
        if sm == 4:
            seq = [(0,0),(1,0),(2,0),(0,1),(1,1),(2,1),(0,2),(1,2),(3,0),(0,3),(1,3),(3,1),(2,2),(3,2),(2,3),(3,3)]
            fill = {12: fm(0), 13: fm(1), 14: fin(0)[:2], 15: fin(0)[2:]}; last = [x for pr in zip(fm(2), fm(3)) for x in pr] + fin(1)
        got = 0
        for i, (q, t) in enumerate(seq):
            if t >= got: A(f"s_waitcnt lgkmcnt({4-t})"); got = t + 1
            A(smf(q, t))
            if i in fill:
                if got < 5: A("s_waitcnt lgkmcnt(0)"); got = 5
                for x in fill[i]: A(x)
        if got < 5: A("s_waitcnt lgkmcnt(0)")
        if dry: A("s_xor_b32 s58, s58, 1")
        for x in last: A(x)
        if dry: A("s_cbranch_scc1 L_dry2")
        A(f"s_mov_b32 exec_hi, 0\nbuffer_store_dwordx4 v[{PUB}:{PUB+3}], v2, s[44:47], s59 offen {usf}")
    else:
        for ks in range(4):
            A(f"ds_read_b128 v[{OA+4*ks}:{OA+4*ks+3}], v6 offset:{L_O+ks*64}")
        A(f"ds_read_b128 v[{CC}:{CC+3}], v5 offset:{L_C}")
        for ks in range(4):
            A(f"s_waitcnt lgkmcnt({4-ks})")
            for cb in range(8):
                r = W + 4 * (cb * 4 + ks)
                d = DD + 4 * cb
                A(f"v_mfma_f32_16x16x32_bf16 v[{d}:{d+3}], v[{OA+4*ks}:{OA+4*ks+3}], v[{r}:{r+3}], {'0' if ks == 0 else f'v[{d}:{d+3}]'}")
        A("s_waitcnt lgkmcnt(0)")
        if u4:
            for r in range(4):
                for cb in range(8):
                    A(f"v_{'mul' if r == 0 else 'fmac'}_f32_dpp v{UU+cb%4}, v{DD+4*cb+r}, v{CC+r} quad_perm:[0,1,2,3] row_mask:{0x5 << (cb//4):#x} bank_mask:0xf")
            for j in range(4): A(f"v_add_u32 v{PUB+j}, 0x80, v{UU+j}")
            for j in range(4): A(f"v_bfi_b32 v{PUB+j}, v{FF}, s5, v{PUB+j}")
            if "h" in abl: A("s_bitcmp1_b32 s3, 0\ns_cbranch_scc1 L_end")
            if "i" in abl: A("s_cmp_lg_u32 s3, 0\ns_cbranch_scc1 L_end")
            if "U" not in abl: A(f"s_mov_b32 exec_hi, 0\nbuffer_store_dwordx4 v[{PUB}:{PUB+3}], v2, s[44:47], s59 offen {usf}")
        else:
            for r in range(4):
                for cb in range(8):
                    A(f"v_{'mul' if r == 0 else 'fmac'}_f32_dpp v{UU+cb//4+2*(cb%4)}, v{DD+4*cb+r}, v{CC+r} quad_perm:[0,1,2,3] row_mask:{1<<(cb%4):#x} bank_mask:0xf")
            for j in range(2):
                for gq in range(1, 4):
                    A(f"v_mov_b32_dpp v{UU+j}, v{UU+j+2*gq} quad_perm:[0,1,2,3] row_mask:{1<<gq:#x} bank_mask:0xf")
            tagv(PUB, UU, FF); tagv(PUB+1, UU+1, FF)
            if "U" not in abl: A(f"""buffer_store_dword v{PUB}, v7, s[44:47], s59 offen sc1
            buffer_store_dword v{PUB+1}, v7, s[44:47], s59 offen offset:256 sc1""")
    if lg:
        stamp(7)
        A(f"""s_cmp_eq_u32 s67, 0
        s_cbranch_scc1 L_gx
        s_mov_b64 exec, -1
        s_mov_b32 s72, {POLL_LIMIT}
        s_waitcnt vmcnt(1)""")
        A("L_gp:")
        for i in range(8): A(f"v_xor_b32 v{LX+i}, s5, v{LG+i}")
        A(f"""v_or3_b32 v{TT}, v{LX}, v{LX+1}, v{LX+2}
        v_or3_b32 v{TT+1}, v{LX+3}, v{LX+4}, v{LX+5}
        v_or3_b32 v{TT}, v{TT}, v{LX+6}, v{LX+7}
        v_bitop3_b32 v{TT}, v{TT}, v{TT+1}, v{FF} bitop3:0xa8
        v_cmp_ne_u32 vcc, 0, v{TT}
        s_cbranch_vccz L_gd
        s_sleep {gsl}
        {lgl[0]}
        {lgl[1]}
        s_sub_u32 s72, s72, 1
        s_waitcnt vmcnt(0)
        s_cbranch_scc0 L_gp""")
        A("L_gd:")
        for i in range(4): A(f"v_add_f32_dpp v{LX+i}, v{LX+4+i}, v{LX+i} quad_perm:[0,1,2,3] row_mask:0xe bank_mask:0xf")
        tred([LX])
        A(f"v_add_f32_dpp v{LX}, v{LX}, v{LX} row_ror:8 row_mask:0xf bank_mask:0xf")
        rbf(LX)
        A(f"v_add_f32 v{LX}, v{LX}, v16")
        rbf(LX)
        A(f"""v_mul_f32 v{TT}, {LOG2E ^ 0x80000000:#x}, v{LX}
        v_exp_f32 v{TT}, v{TT}
        v_add_f32 v{TT}, 1.0, v{TT}
        v_rcp_f32 v{TT}, v{TT}
        v_mul_f32 v{LX}, v{LX}, v{TT}""")
        rbf(LX)
        A(f"ds_write_b32 v21, v{LX} offset:{L_G}")
        if stamps: stamp(4)
        A("L_gx:")
    if stamps:
        if not lg: stamp(7)
        A(f"s_cmp_lg_u32 s3, {hst}\ns_cbranch_scc1 L_end")
        A("s_lshl_b32 s90, s74, 4\ns_add_u32 s90, s90, s75\ns_mov_b32 s91, 0")
        write_stamps(8, 8)
    A("L_end:")
    A("s_endpgm")
    E.raw(f""".section .rodata,"a"
.p2align 6
.amdhsa_kernel {KN}
  .amdhsa_next_free_vgpr 256
  .amdhsa_next_free_sgpr 102
  .amdhsa_accum_offset 256
  .amdhsa_group_segment_fixed_size 0
  .amdhsa_kernarg_size 104
  .amdhsa_user_sgpr_count 2
  .amdhsa_user_sgpr_kernarg_segment_ptr 1
  .amdhsa_system_sgpr_workgroup_id_x 1
  .amdhsa_float_denorm_mode_32 3
.end_amdhsa_kernel""")
    return E.text()

if __name__ == "__main__":
    kw_ = {}
    out = sys.argv[1]
    for a in sys.argv[2:]:
        kk, v = a.split("=")
        kw_[kk] = int(v) if (v.lstrip("-").isdigit() and kk != "abl") else v.replace("+", " ")
    open(out, "w").write(gen(**kw_))
```
